```python
import torch

def _softmax(x, axis=-1):
    return torch.softmax(x, dim=axis)
def _gelu(x):
    return torch.nn.functional.gelu(x, approximate="tanh")
def _silu(x):
    return torch.nn.functional.silu(x)
def _sigmoid(x):
    return torch.sigmoid(x)
def _layernorm(x, axis=-1, eps=1e-5):
    m = x.mean(dim=axis, keepdim=True)
    v = x.var(dim=axis, keepdim=True, unbiased=False)
    return (x - m) / torch.sqrt(v + eps)
def _scatter_add(tgt, idx, src, axis=0):
    return tgt.clone().index_add_(axis, idx, src)
def _segment_sum(src, seg, n):
    out = torch.zeros((n,) + src.shape[1:], dtype=src.dtype)
    return out.index_add_(0, seg, src)
def _pad(x, pw):
    flat = tuple(v for pair in reversed(pw) for v in pair)
    return torch.nn.functional.pad(x, flat)

kernel_name = 'recurrent_scan__sliding_block_cached__glu_gated_reglu__decode'

def setup_inputs():

    _w = (lambda a: (lambda t: t.to(torch.bfloat16) if t.is_floating_point() else t)(torch.as_tensor(a)))
    def _A_setup():
        B, Sq, D = 2, 1, 576
        Hq, Hkv, Sk, Dh = 32, 16, 32768, 128
        assert Hq % Hkv == 0, (Hq, Hkv)
        return {
            "x": _w((lambda *s: torch.randn(*s, dtype=torch.bfloat16) * 0.2)(B, Sq, D)),
            "k_cache": _w((lambda *s: torch.randn(*s, dtype=torch.bfloat16) * 1.6)(B, Hkv, Sk, Dh)),
            "v_cache": _w((lambda *s: torch.randn(*s, dtype=torch.bfloat16) * 1.6)(B, Hkv, Sk, Dh)),
            "wq": _w((lambda *s: torch.randn(*s, dtype=torch.bfloat16) * 1.6)(D, Hq * Dh) * (D ** -0.5)),
            "wo": _w((lambda *s: torch.randn(*s, dtype=torch.bfloat16) * 1.6)(Hq * Dh, D) * ((Hq * Dh) ** -0.5)),
        }
    _A_in = _A_setup()

    def _B_setup():
        B, S, D, F = 2, 1, 576, 4608
        return {
            "x": _w((lambda *s: torch.randn(*s, dtype=torch.bfloat16) * 0.2)(B, S, D)),
            "W_gate": _w((lambda *s: torch.randn(*s, dtype=torch.bfloat16) * 0.8)(D, F) * (2.0 / D) ** 0.5),
            "W_up": _w((lambda *s: torch.randn(*s, dtype=torch.bfloat16) * 0.8)(D, F) * (2.0 / D) ** 0.5),
            "W_down": _w((lambda *s: torch.randn(*s, dtype=torch.bfloat16) * 0.8)(F, D) * (1.0 / F) ** 0.5),
        }
    _B_in = _B_setup()

    return {
        "A_x": _A_in["x"],
        "A_k_cache": _A_in["k_cache"],
        "A_v_cache": _A_in["v_cache"],
        "A_wq": _A_in["wq"],
        "A_wo": _A_in["wo"],
        "B_x": _B_in["x"],
        "B_W_gate": _B_in["W_gate"],
        "B_W_up": _B_in["W_up"],
        "B_W_down": _B_in["W_down"],
    }

def reference(A_x, A_k_cache, A_v_cache, A_wq, A_wo, B_x, B_W_gate, B_W_up, B_W_down):
    def _A_ref(x, k_cache, v_cache, wq, wo):
        B, Sq, D = x.shape
        Hq, Dh = 32, 128
        Hkv, Sk = k_cache.shape[1], k_cache.shape[2]
        W = min(4096, max(256, Sk // 4))
        rep = Hq // Hkv
        q = (lambda x, *d: x.permute(*d))((x @ wq).reshape(B, Sq, Hq, Dh), 0, 2, 1, 3)
        k = (lambda x, n, axis: torch.repeat_interleave(x, n, dim=axis))(k_cache[:, :, Sk - W:, :], rep, axis=1)
        v = (lambda x, n, axis: torch.repeat_interleave(x, n, dim=axis))(v_cache[:, :, Sk - W:, :], rep, axis=1)
        scores = torch.einsum("bhqd,bhkd->bhqk", q, k) * (Dh ** -0.5)
        p = _softmax(scores, axis=-1)
        o = torch.einsum("bhqk,bhkd->bhqd", p, v)
        return (lambda x, *d: x.permute(*d))(o, 0, 2, 1, 3).reshape(B, Sq, Hq * Dh) @ wo

    def _B_ref(x, W_gate, W_up, W_down):
        gate = torch.einsum("bsd,df->bsf", x, W_gate)
        up = torch.einsum("bsd,df->bsf", x, W_up)
        gate = gate * (lambda x, dt: x.to(dt))(gate > 0, gate.dtype)
        h = gate * up
        return torch.einsum("bsf,fd->bsd", h, W_down)

    x = A_x
    xn = _layernorm(x, axis=-1)
    s = _A_ref(xn, A_k_cache, A_v_cache, A_wq, A_wo)
    g = _silu(_B_ref(xn, B_W_gate, B_W_up, B_W_down))
    return x + s * g
```

```python
import re

TRANS = ('v_exp_f32', 'v_log_f32', 'v_rcp_f32', 'v_rsq_f32', 'v_sqrt_f32', 'v_sin_f32', 'v_cos_f32')

def regs_of(tok):
    tok = tok.strip()
    tok = tok.lstrip('-')
    if tok.startswith('abs(') or tok.startswith('|'):
        tok = tok.replace('abs(', '').replace(')', '').replace('|', '')
    m = re.fullmatch(r'([vs])(\d+)', tok)
    if m: return {(m.group(1), int(m.group(2)))}
    m = re.fullmatch(r'([vs])\[(\d+):(\d+)\]', tok)
    if m: return {(m.group(1), i) for i in range(int(m.group(2)), int(m.group(3)) + 1)}
    if tok == 'vcc': return {('s', 106), ('s', 107)}
    if tok == 'm0': return {('s', 124)}
    if tok == 'exec': return {('s', 126), ('s', 127)}
    return set()

class Ins:
    def __init__(self, line):
        self.line = line
        t = line.split(';')[0].strip()
        self.is_label = t.endswith(':')
        self.is_dir = t.startswith('.') or t == ''
        self.states = 1
        self.kind = None
        self.wr = set(); self.rd = set()
        self.mfma_c = set(); self.mfma_ab = set(); self.store_data = set()
        self.dpp = False; self.trans = False; self.permlane = False; self.rdlane = False; self.ldsdma = False
        if self.is_label or self.is_dir:
            self.states = 0; return
        parts = t.split(None, 1)
        op = parts[0]; self.op = op
        rest = parts[1] if len(parts) > 1 else ''
        ops = []; cur = ''; depth = 0
        for ch in rest:
            if ch == '[': depth += 1
            if ch == ']': depth -= 1
            if ch == ',' and depth == 0: ops.append(cur.strip()); cur = ''
            else: cur += ch
        if cur.strip(): ops.append(cur.strip())
        mods = ''
        if ops:
            last = ops[-1].split(None, 1)
            ops[-1] = last[0]
            mods = last[1] if len(last) > 1 else ''
        self.ops = ops; self.mods = mods
        R = [regs_of(o) for o in ops]
        if op == 's_nop':
            self.kind = 'salu'; self.states = int(ops[0], 0) + 1
        elif op.startswith('v_mfma'):
            self.kind = 'mfma'; self.wr = R[0]; self.mfma_ab = R[1] | R[2]; self.mfma_c = R[3]; self.rd = R[1] | R[2] | R[3]
        elif op.startswith('v_permlane'):
            self.kind = 'valu'; self.permlane = True; self.wr = R[0] | R[1]; self.rd = R[0] | R[1]
        elif op.startswith('v_readlane') or op.startswith('v_readfirstlane'):
            self.kind = 'valu'; self.rdlane = True; self.wr = R[0]; self.rd = set().union(*R[1:])
        elif op.startswith('v_'):
            self.kind = 'valu'
            self.wr = set(R[0]); srcs = R[1:]
            if op.startswith(('v_add_co', 'v_sub_co', 'v_addc_co', 'v_subrev_co')):
                self.wr |= R[1]; srcs = R[2:]
            self.rd = set().union(*srcs) if srcs else set()
            if op.startswith(('v_fmac', 'v_pk_fmac', 'v_dot2c')): self.rd |= R[0]
            if any(k in mods for k in ('quad_perm', 'row_', 'wave_')) or op.endswith('_dpp'):
                self.dpp = True; self.rd |= R[0]
            base = op.replace('_e32', '').replace('_e64', '')
            self.trans = base in TRANS
        elif op.startswith(('buffer_', 'global_')):
            self.kind = 'vmem'
            lds = ' lds' in (' ' + mods)
            if 'load' in op and not lds:
                self.wr = R[0]; self.rd = set().union(*R[1:])
            elif lds:
                self.ldsdma = True; self.rd = set().union(*R) | {('s', 124)}
            else:
                self.rd = set().union(*R)
                if 'x4' in op or 'x3' in op:
                    self.store_data = R[0] if op.startswith('buffer_') else R[1]
                if 'atomic' in op and 'sc0' in mods: self.wr = R[0]
        elif op.startswith('ds_'):
            self.kind = 'ds'
            if 'read' in op or 'rtn' in op or 'permute' in op or 'swizzle' in op:
                self.wr = R[0]; self.rd = set().union(*R[1:])
            else:
                self.rd = set().union(*R)
        else:
            self.kind = 'salu'
            if op.startswith(('s_cmp', 's_cbranch', 's_branch', 's_waitcnt', 's_barrier', 's_endpgm', 's_setprio', 's_sleep', 's_bitcmp')):
                self.rd = set().union(*R) if R else set()
            elif R:
                self.wr = R[0]; self.rd = set().union(*R[1:]) if len(R) > 1 else set()
                if 'saveexec' in op: self.wr = self.wr | regs_of('exec')

def vonly(s): return {r for r in s if r[0] == 'v'}
def sonly(s): return {r for r in s if r[0] == 's'}

def need(p, c):
    n = 0
    if p.kind == 'valu':
        wv = vonly(p.wr); ws = sonly(p.wr)
        if c.kind == 'mfma' and wv & c.rd: n = max(n, 2)
        if c.kind == 'valu' and c.dpp and wv & c.rd: n = max(n, 2)
        if c.kind == 'valu' and c.permlane and wv & c.rd: n = max(n, 2)
        if c.kind == 'valu' and c.rdlane and wv & c.rd: n = max(n, 1)
        if p.trans and c.kind in ('valu', 'ds', 'vmem') and wv & c.rd and not c.trans: n = max(n, 1)
        if p.trans and c.kind == 'valu' and wv & c.rd: n = max(n, 1)
        if ws:
            if c.kind == 'valu' and ws & c.rd: n = max(n, 4 if c.rdlane else 2)
            if c.kind == 'valu' and c.op.startswith('v_cndmask') and len(c.ops) == 3 and ('s', 106) in ws: n = max(n, 2)
            if c.kind == 'vmem' and ws & c.rd: n = max(n, 5)
            if c.kind == 'salu' and ws & c.rd: n = max(n, 1)
    if p.kind == 'mfma':
        if c.kind == 'mfma':
            if p.wr & c.mfma_ab: n = max(n, 8)
            if p.wr & c.mfma_c and (p.wr != c.mfma_c or p.op != c.op): n = max(n, 6)
            if p.wr & c.wr and not (p.wr & c.mfma_c): n = max(n, 8)
        elif c.kind in ('valu', 'vmem', 'ds'):
            if p.wr & (c.rd | c.wr): n = max(n, 8)
            if c.kind == 'valu' and p.mfma_c & c.wr: n = max(n, 3)
    if p.kind == 'salu' and ('s', 124) in p.wr and c.ldsdma: n = max(n, 1)
    if p.kind == 'vmem' and p.store_data and (p.store_data & c.wr): n = max(n, 2)
    return n

def hazard_pass(lines):
    out = []; hist = []
    for ln in lines:
        ins = Ins(ln)
        if ins.states == 0:
            out.append(ln); continue
        dist = 0; req = 0
        for p in reversed(hist[-12:]):
            r = need(p, ins) - dist
            req = max(req, r)
            dist += p.states
            if dist >= 10: break
        if req > 0:
            nop = Ins(f's_nop {req-1}')
            out.append(f'    s_nop {req-1}'); hist.append(nop)
        out.append(ln); hist.append(ins)
        if ins.op in ('s_branch', 's_endpgm'): hist = []
    return out
```

```python
import sys, struct
from asmlib import hazard_pass

KNAME = "recurrent_scan__sliding_block_cached__glu_gated_reglu__decode_kernel"
def f2u(x): return struct.unpack('<I', struct.pack('<f', x))[0]

BASE = 131072
O_CP, O_CO, O_CK, O_CG, O_CQ, O_CH, O_CY, O_CX = 0, 4, 8, 12, 16, 20, 24, 28
O_FAR, O_CGF, O_CV, O_CYS, O_CW = 32, 36, 40, 44, 48
STG = 49152
O_NZ = 1024
O_KD, O_VD, O_PD = 64, 96, 128
O_ZERO = 256
O_QT = 512
O_XB = 1024
O_ML = 3328
O_HS = 3456
O_PT = 3840
O_GP = 7936
O_OP = 20480
LDS_TOTAL = BASE + 28672
OB = 0x1000; MLB = 0x41000; FB = 0x51000; HB = 0xD0000; RS = 3200; WS_SPAN = 0x200000
STAMP_OFF = 512 << 20
TAGM = 0x3ff
LOG2E = f2u(1.4426950408889634)
SCALE = f2u(128 ** -0.5)
SPIN_MAX = 200000

HEADER = """; Kernarg layout for this problem (96 bytes, ptrs only, base s[0:1]):
; Hand-offs between workgroups go through d_ws as 16-byte granules whose dwords carry a per-launch tag.
"""

def gen(diag=False, opts=None):
    opts = dict(dict(p3all=8, dvt=13, ho=2, wdpre=4, do=4, pto=0, codepf=0, fcw=1, dwst=1, po=1, py=1, ps=1, osleep=1, ssleep=1, slate=1), **(opts or {}))
    NTK = ' nt' if opts.get('ntk', True) else ''
    NTV = ' nt' if opts.get('ntv', True) else ''
    NT = ' nt' if opts.get('ntw', True) else ''
    P1 = ' sc1' if opts.get('p1sc1') else ''
    FS = opts.get('fs', 4736)
    BAR = opts.get('bar', 1)
    PAT = opts.get('pat', 'r'); KVN = 131072 if PAT == 'i' else 0x100000
    L = []
    def e(s): L.append('    ' + s)
    def lab(s): L.append(s + ':')
    stamp_idx = {}
    def stamp(i):
        if diag: e(f's_memrealtime s[{64+2*i}:{65+2*i}]')
    def srd(d, lo, hi, off, nrec):
        if off is None:
            e(f's_mov_b32 s{d}, s{lo}'); e(f's_mov_b32 s{d+1}, s{hi}')
        else:
            e(f's_add_u32 s{d}, s{lo}, {off}'); e(f's_addc_u32 s{d+1}, s{hi}, 0')
        e(f's_mov_b32 s{d+2}, {nrec}'); e(f's_mov_b32 s{d+3}, 0x20000')
    DPP = lambda m: f'{m} row_mask:0xf bank_mask:0xf'
    X1 = DPP('quad_perm:[1,0,3,2]'); X2 = DPP('quad_perm:[2,3,0,1]'); HM = DPP('row_half_mirror'); RM = DPP('row_mirror')
    def masks(d):
        t, h = d + 4, d + 5
        e(f'v_and_b32 v{t}, 1, v2'); e(f'v_lshlrev_b32 v{t}, 4, v{t}')
        e(f'v_mov_b32 v{h}, 0xffff'); e(f'v_lshlrev_b32 v{h}, v{t}, v{h}')
        e(f'v_bfe_u32 v{t}, v2, 1, 2')
        for j in range(4):
            e(f'v_cmp_eq_u32 vcc, {j}, v{t}')
            e(f'v_cndmask_b32 v{d+j}, 0, v{h}, vcc')
    def tag(d, n=4, tv=None):
        for k in range(n): e(f'v_bfi_b32 v{d+k}, s45, v{tv}, v{d+k}')
    def finish_tag_setup(tv):
        e('s_add_u32 s60, s7, 1'); e(f's_and_b32 s7, s60, {TAGM}'); e(f's_movk_i32 s45, {TAGM}')
        e(f'v_mov_b32 v{tv}, s7')
    def untag(regs, acc, dst=None):
        dst = dst or regs
        for r, d in zip(regs, dst): e(f'v_xor_b32 v{d}, s7, v{r}')
        e(f'v_or3_b32 v{acc}, v{dst[0]}, v{dst[1]}, v{dst[2]}')
        rest = dst[3:]
        while rest:
            if len(rest) >= 2:
                e(f'v_or3_b32 v{acc}, v{acc}, v{rest[0]}, v{rest[1]}'); rest = rest[2:]
            else:
                e(f'v_or_b32 v{acc}, v{acc}, v{rest[0]}'); rest = rest[1:]
    def poll_tail(acc, lpoll, lok, sleep=2):
        e(f'v_and_b32 v{acc}, s45, v{acc}')
        e(f'v_cmp_ne_u32 vcc, 0, v{acc}')
        e(f's_cbranch_vccz {lok}')
        if sleep: e(f's_sleep {sleep}')
        e('s_add_u32 s46, s46, 1'); e(f's_and_b32 s44, s46, {opts.get("flushmask", 0xff)}'); e(f's_cbranch_scc1 {lpoll}')
        e('buffer_wbl2 sc1'); e('buffer_inv sc1'); e('s_waitcnt vmcnt(0)')
        e(f's_cmp_le_u32 s46, {SPIN_MAX}'); e(f's_cbranch_scc1 {lpoll}')
    DK = opts.get('dk', 3); DV = opts.get('dv', 3); DG = opts.get('dg', 0); DW = opts.get('dw', 0); DO = opts.get('do', 3)
    def thr(i, d):
        if d and i >= d: e(f's_waitcnt vmcnt({d-1})')
    def spin(name, off, target, areg=15, treg=16, sleep=1):
        lab(name)
        e(f'ds_read_b32 v{treg}, v{areg} offset:{off}')
        e('s_waitcnt lgkmcnt(0)')
        e(f'v_readfirstlane_b32 s44, v{treg}')
        e(f's_cmp_ge_u32 s44, {target}'); e(f's_cbranch_scc1 {name}_ok')
        e(f's_sleep {sleep}'); e(f's_branch {name}')
        lab(name + '_ok')
    def signal(off, areg=15, one=18, rtn=None):
        e('s_mov_b64 exec, 1')
        if rtn is None: e(f'ds_add_u32 v{areg}, v{one} offset:{off}')
        else: e(f'ds_add_rtn_u32 v{rtn}, v{areg}, v{one} offset:{off}')
        e('s_mov_b64 exec, -1')
    def ppoll(name, D, base, dst, addr, soff, pre=None, post=None, sleep=0):
        def ld(k):
            if pre: e(pre)
            e(f'buffer_load_dwordx4 v[{base+4*k}:{base+4*k+3}], v{addr}, s[36:39], {soff} offen sc1')
            if post: e(post)
        acc = dst + 4
        lab(name)
        for k in range(D - 1): ld(k)
        lab(name + '_l')
        for k in range(D):
            ld((k + D - 1) % D)
            e(f's_waitcnt vmcnt({D-1})')
            untag([base + 4 * k + i for i in range(4)], acc, dst=[dst + i for i in range(4)])
            e(f'v_and_b32 v{acc}, s45, v{acc}')
            e(f'v_cmp_ne_u32 vcc, 0, v{acc}')
            e(f's_cbranch_vccz {name}_ok')
            if sleep: e(f's_sleep {sleep}')
        e('s_add_u32 s46, s46, 1'); e(f's_and_b32 s44, s46, {max(1, 256 // D) * 2 - 1 if False else 63}'); e(f's_cbranch_scc1 {name}_l')
        e('s_waitcnt vmcnt(0)')
        e('buffer_wbl2 sc1'); e('buffer_inv sc1'); e('s_waitcnt vmcnt(0)')
        e(f's_cmp_le_u32 s46, {SPIN_MAX}'); e(f's_cbranch_scc1 {name}')
        lab(name + '_ok')
    def tile_addr(rows=None):
        for m in range(3):
            e(f'v_add_u32 v8, {64*m}, v0'); e('v_mul_u32_u24 v9, 2731, v8'); e('v_lshrrev_b32 v9, 16, v9')
            if rows is not None: e(f'v_lshl_add_u32 v{rows+m}, v9, 2, v{rows+3}')
            e('v_and_b32 v10, 2, v9'); e('v_lshlrev_b32 v10, 4, v10')
            e(f'v_mul_u32_u24 v9, {1152-384}, v9'); e(f'v_lshl_add_u32 v{4+m}, v8, 4, v9')
            e(f'v_xor_b32 v{4+m}, v{4+m}, v10'); e(f'v_xor_b32 v{49+m}, 64, v{4+m}')
        e('v_bfe_u32 v10, v0, 2, 2'); e('v_lshl_add_u32 v10, v3, 3, v10'); e('v_mul_u32_u24 v10, 384, v10'); e('v_and_b32 v11, 3, v0'); e('v_lshl_add_u32 v10, v11, 3, v10')
        e('s_lshl_b32 s44, s3, 6'); e('v_add_u32 v10, s44, v10')
        e('v_and_b32 v11, 24, v0'); e('v_lshlrev_b32 v11, 2, v11'); e('v_xor_b32 v10, v10, v11'); e('v_xor_b32 v52, 32, v10')
        e('v_lshlrev_b32 v11, 2, v0')
    def red32(r):
        e(f'v_permlane16_swap_b32 v{r}, v{r+2}'); e(f'v_permlane16_swap_b32 v{r+1}, v{r+3}')
        e(f'v_add_f32 v{r}, v{r}, v{r+2}'); e(f'v_add_f32 v{r+1}, v{r+1}, v{r+3}')
        e(f'v_permlane32_swap_b32 v{r}, v{r+1}')
        e(f'v_add_f32 v{r}, v{r}, v{r+1}')
        for m in ('row_ror:8', 'row_ror:4', 'row_ror:2'):
            e(f'v_add_f32_dpp v{r}, v{r}, v{r} {DPP(m)}')
    def rnd(r):
        e(f'v_cvt_pk_bf16_f32 v{r}, v{r}, v{r}'); e(f'v_and_b32 v{r}, s50, v{r}')
    def endwave():
        e('s_branch L_fin' if diag else 's_endpgm')


    L.append(HEADER.rstrip())
    L.append(f"; @launch grid=(256,1,1) block=(1024,1,1) lds={LDS_TOTAL}")
    L.append('.amdgcn_target "amdgcn-amd-amdhsa--gfx950"')
    L.append('.text'); L.append(f'.globl {KNAME}'); L.append('.p2align 8'); L.append(f'.type {KNAME},@function'); lab(KNAME)
    e('s_cmp_ge_u32 s2, 256'); e('s_cbranch_scc1 L_end')
    e('s_load_dwordx16 s[8:23], s[0:1], 0')
    e('s_load_dwordx8 s[24:31], s[0:1], 64')
    if diag:
        for i in range(64, 96): e(f's_mov_b32 s{i}, 0')
    stamp(0)
    if opts.get('hold'): e('s_memrealtime s[62:63]')
    e('v_lshrrev_b32 v1, 6, v0'); e('v_and_b32 v0, 63, v0')
    e('s_and_b32 s4, s2, 7'); e('v_readfirstlane_b32 s3, v1')
    if opts.get('xx'): e(f's_xor_b32 s4, s4, {opts["xx"]}')
    e('s_lshl_b32 s4, s4, 1'); e('s_lshr_b32 s5, s2, 7'); e('s_add_u32 s4, s4, s5')
    e('s_bfe_u32 s5, s2, 0x40003')
    e('v_and_b32 v2, 15, v0'); e('v_lshrrev_b32 v3, 4, v0')
    e('s_mul_i32 s53, s4, 9'); e('s_add_u32 s53, s53, s5')
    e('s_mul_i32 s51, s53, 171'); e('s_lshr_b32 s51, s51, 10')
    e('s_mul_i32 s52, s51, 6'); e('s_sub_u32 s52, s53, s52')
    if diag: e('s_mov_b32 s61, s3')
    e('s_cmp_ge_u32 s3, 8'); e('s_cbranch_scc1 L_A')
    def layernorm():
        e(f'v_add_u32 v113, {BASE+O_XB}, v113')
        e('s_mov_b32 s50, 0xffff0000'); e(f's_mov_b32 s48, {f2u(1.0/576)}'); e(f's_mov_b32 s49, {f2u(1e-5)}')
        e('s_waitcnt vmcnt(5)')
        X = list(range(22, 40))
        for k in range(9):
            e(f'v_lshlrev_b32 v{X[2*k]}, 16, v{104+k}'); e(f'v_and_b32 v{X[2*k+1]}, s50, v{104+k}')
        def half_allreduce(a, t):
            for m in (X1, X2, HM, RM): e(f'v_add_f32_dpp v{a}, v{a}, v{a} {m}')
            e(f'v_mov_b32 v{t}, v{a}'); e(f'v_permlane16_swap_b32 v{a}, v{t}'); e(f'v_add_f32 v{a}, v{a}, v{t}')
        e(f'v_pk_add_f32 v[40:41], v[22:23], v[24:25]')
        for k in range(4, 18, 2): e(f'v_pk_add_f32 v[40:41], v[40:41], v[{X[k]}:{X[k+1]}]')
        e('v_add_f32 v40, v40, v41')
        half_allreduce(40, 41)
        e('v_mul_f32 v40, s48, v40')
        e('v_mov_b32 v42, 0'); e('v_mov_b32 v43, 0')
        for k in range(0, 18, 2):
            e(f'v_sub_f32 v44, v{X[k]}, v40'); e(f'v_sub_f32 v45, v{X[k+1]}, v40')
            e('v_fmac_f32 v42, v44, v44'); e('v_fmac_f32 v43, v45, v45')
        e('v_add_f32 v42, v42, v43')
        half_allreduce(42, 43)
        e('v_mul_f32 v42, s48, v42')
        e('v_cvt_pk_bf16_f32 v40, v40, v42')
        e('v_and_b32 v42, s50, v40'); e('v_lshlrev_b32 v40, 16, v40')
        e('v_add_f32 v42, s49, v42'); e('v_cvt_pk_bf16_f32 v42, v42, v42'); e('v_and_b32 v42, s50, v42')
        e('v_sqrt_f32 v42, v42'); e('v_cvt_pk_bf16_f32 v42, v42, v42'); e('v_and_b32 v42, s50, v42')
        e('v_rcp_f32 v42, v42')
        for k in range(9):
            a, b = X[2*k], X[2*k+1]
            e(f'v_sub_f32 v{a}, v{a}, v40'); e(f'v_sub_f32 v{b}, v{b}, v40')
            e(f'v_cvt_pk_bf16_f32 v{104+k}, v{a}, v{b}')
            e(f'v_lshlrev_b32 v{a}, 16, v{104+k}'); e(f'v_and_b32 v{b}, s50, v{104+k}')
            e(f'v_mul_f32 v{a}, v{a}, v42'); e(f'v_mul_f32 v{b}, v{b}, v42')
            e(f'v_cvt_pk_bf16_f32 v{104+k}, v{a}, v{b}')
        for k in range(0, 8, 2): e(f'ds_write2_b32 v113, v{104+k}, v{105+k} offset0:{k} offset1:{k+1}')
        e('ds_write_b32 v113, v112 offset:32')
        signal(O_CX)
        stamp(11)
    e('s_sub_u32 s44, s5, 9'); e('s_mul_i32 s47, s51, 384'); e('s_lshl_b32 s48, s4, 9'); e('s_lshr_b32 s49, s3, 2'); e('s_lshl_b32 s49, s49, 8'); e('s_add_u32 s48, s48, s49')
    e('s_mul_i32 s59, s4, 7'); e('s_add_u32 s59, s59, s44'); e('s_add_u32 s59, s59, 144')
    e('s_movk_i32 s49, 0x2000')
    e('s_cmp_lt_u32 s5, 9')
    e('s_cselect_b32 s44, s52, s44')
    e('s_cselect_b32 s47, s47, s48')
    e('s_cselect_b32 s55, 9216, s49')
    e('s_cselect_b32 s59, s53, s59')
    e('s_and_b32 s54, s3, 3'); e('s_mul_i32 s58, s54, 144'); e('s_add_u32 s58, s58, 5')
    e('s_lshl_b32 s44, s44, 2'); e('s_add_u32 s54, s54, s44'); e('s_mul_i32 s54, s54, 24')
    e('s_cmp_eq_u32 s5, 15'); e('s_cselect_b32 s54, s58, s54')
    e('s_mul_i32 s44, s54, s55'); e('s_cselect_b32 s55, 0xc000, s55'); e('s_add_u32 s44, s44, s47')
    e('s_mul_i32 s47, s55, 6'); e('v_mul_u32_u24 v10, s47, v3'); e('v_lshl_add_u32 v10, v2, 4, v10')
    e('v_lshrrev_b32 v11, 3, v2'); e(f'v_mul_u32_u24 v11, {9216-128}, v11'); e('v_add_u32 v11, v10, v11')
    e('s_mul_i32 s34, s55, 23'); e('s_add_u32 s34, s34, 256'); e('s_mov_b32 s35, 0x20000')
    e('s_waitcnt lgkmcnt(0)')
    e('s_cmp_lt_u32 s3, 4'); e('s_cselect_b32 s56, s20, s22'); e('s_cselect_b32 s57, s21, s23')
    e('s_cmp_lt_u32 s5, 9'); e('s_cselect_b32 s56, s56, s14'); e('s_cselect_b32 s57, s57, s15')
    e('s_add_u32 s32, s56, s44'); e('s_addc_u32 s33, s57, 0')
    e('s_cmp_lg_u32 s3, 0'); e('s_cbranch_scc1 L_B_nx')
    srd(40, 8, 9, None, 2304)
    e('v_lshrrev_b32 v22, 5, v0'); e('v_and_b32 v23, 31, v0')
    e('v_mul_u32_u24 v113, 1152, v22'); e('v_mad_u32_u24 v113, v23, 36, v113')
    e('buffer_load_dwordx4 v[104:107], v113, s[40:43], 0 offen')
    e('buffer_load_dwordx4 v[108:111], v113, s[40:43], 0 offen offset:16')
    e('buffer_load_dword v112, v113, s[40:43], 0 offen offset:32')
    lab('L_B_nx')
    D1 = opts.get('d1', 3)
    def d0load(t, so): e(f'buffer_load_dwordx4 v[{64+4*t}:{67+4*t}], v10, s[32:35], {so} offen{NT}')
    def d1load(p, so): e(f'buffer_load_dwordx4 v[{88+4*p}:{91+4*p}], v11, s[32:35], {so} offen offset:256{NT}')
    d0load(0, '0'); d0load(1, 's55')
    e('s_lshl_b32 s44, s55, 1')
    e('s_cmp_ge_u32 s5, 9'); e('s_cbranch_scc1 L_B_dq')
    e('s_add_u32 s34, s34, 128')
    seq = [('1', 0, 0), ('0', 2, 2), ('0', 3, 3), ('1', 1, 2), ('0', 4, 4), ('0', 5, 5), ('1', 2, 4)]
    for n, (kind, idx, row) in enumerate(seq):
        i = n + 2
        if i == D1: e('s_barrier')
        thr(i, D1)
        if row: e(f's_mov_b32 s44, {row*9216}')
        so = 's44' if row else '0'
        (d0load if kind == '0' else d1load)(idx, so)
    e('s_branch L_B_isd')
    lab('L_B_dq')
    for t in range(2, 5):
        if t == D1: e('s_barrier')
        thr(t, D1)
        d0load(t, 's44')
        e('s_add_u32 s44, s44, s55')
    if D1 >= 5: e('s_barrier')
    e('s_cmp_lg_u32 s5, 15'); e('s_cbranch_scc1 L_B_isd')
    thr(5, D1)
    d0load(5, 's44')
    lab('L_B_isd')
    e(f'v_mov_b32 v15, {BASE}'); e('v_mov_b32 v18, 1')
    e('s_lshl_b32 s44, s3, 2'); e('v_add_u32 v9, s44, v15')
    if 'ho' in opts: e(f's_waitcnt vmcnt({opts["ho"]})')
    signal(O_PD, areg=9)
    e('s_cmp_lg_u32 s3, 0'); e('s_cbranch_scc1 L_B_noln')
    layernorm()
    lab('L_B_noln')
    stamp(1)
    e('s_load_dword s7, s[30:31], 0')
    masks(4)
    e('s_cmp_eq_u32 s5, 15'); e('s_cselect_b32 s44, 72, 12')
    e('v_lshrrev_b32 v9, 3, v2'); e('v_mul_u32_u24 v9, 1152, v9'); e('v_mad_u32_u24 v9, v3, s44, v9')
    e('s_lshl_b32 s44, s54, 1'); e('s_and_b32 s44, s44, -4'); e(f's_add_u32 s44, s44, {BASE+O_XB}'); e('v_add_u32 v9, s44, v9')
    e('s_mov_b32 s48, 0x01000100'); e('s_mov_b32 s49, 0x03020302')
    e('v_lshlrev_b32 v8, 4, v0')
    e('v_lshlrev_b32 v12, 4, v2'); e('v_lshl_add_u32 v12, v3, 7, v12')
    e('s_mul_i32 s44, s3, 1536'); e(f's_add_u32 s44, s44, {BASE+O_GP}'); e('v_add_u32 v13, s44, v8'); e('v_add_u32 v14, s44, v12')
    for k in range(4): e(f'v_mov_b32 v{56+k}, 0')
    spin('L_x_wait', O_CX, 1, sleep=2)
    e('s_cmp_eq_u32 s5, 15'); e('s_cbranch_scc1 L_B_xs')
    for p in range(3): e(f'ds_read2_b32 v[{24+2*p}:{25+2*p}], v9 offset0:{p} offset1:{p}')
    e('s_branch L_B_xd')
    lab('L_B_xs')
    for p in range(3): e(f'ds_read2_b32 v[{24+2*p}:{25+2*p}], v9 offset0:{6*p} offset1:{6*p+3}')
    e('s_mov_b32 s48, s49')
    lab('L_B_xd')
    e('s_waitcnt lgkmcnt(0)')
    stamp(2)
    for t in range(6):
        e(f'v_perm_b32 v31, v{24+t}, v{24+t}, s{48+(t&1)}')
        for j in range(4): e(f'v_and_b32 v{32+4*t+j}, v31, v{4+j}')
    e('s_waitcnt vmcnt(0)')
    e('s_cmp_eq_u32 s5, 15'); e('s_cbranch_scc1 L_B_m5')
    e('s_cmp_ge_u32 s5, 9'); e('s_cbranch_scc1 L_B_m0')
    for t in range(6):
        d = 60 if t % 2 == 0 else 100
        c = '0' if t < 2 else f'v[{d}:{d+3}]'
        e(f'v_mfma_f32_16x16x32_bf16 v[{d}:{d+3}], v[{32+4*t}:{35+4*t}], v[{88+4*(t>>1)}:{91+4*(t>>1)}], {c}')
    for k in range(4): e(f'v_add_f32_dpp v{60+k}, v{100+k}, v{60+k} {DPP("row_ror:8")}')
    lab('L_B_m5')
    e('v_mfma_f32_16x16x32_bf16 v[56:59], v[52:55], v[84:87], v[56:59]')
    lab('L_B_m0')
    for t in range(5):
        e(f'v_mfma_f32_16x16x32_bf16 v[56:59], v[{32+4*t}:{35+4*t}], v[{64+4*t}:{67+4*t}], v[56:59]')
    e('ds_write_b128 v13, v[56:59]')
    e('s_mov_b32 exec_lo, 0x00ff00ff'); e('s_mov_b32 exec_hi, 0x00ff00ff')
    e('ds_write_b128 v14, v[60:63] offset:1024')
    signal(O_CG)
    stamp(3)
    srd(36, 30, 31, None, WS_SPAN)
    finish_tag_setup(21)
    e('s_mov_b32 s46, 0')
    if opts.get('nopub1'): e('s_branch L_B_q')
    e('s_cmp_lg_u32 s3, 7'); e('s_cbranch_scc1 L_B_q')
    e(f'v_add_u32 v13, {BASE+O_GP}, v8'); e(f'v_add_u32 v14, {BASE+O_GP}, v12')
    e(f's_mul_i32 s56, s59, {RS}'); e(f's_add_u32 s56, s56, {HB}')
    spin('L_gu_wait', O_CG, 8)
    for m in range(2):
        for qd in range(4):
            r = 64 + 32 * m + 8 * qd
            e(f'ds_read_b128 v[{r}:{r+3}], v13 offset:{(4*m+qd)*1536}')
            e(f'ds_read_b128 v[{r+4}:{r+7}], v14 offset:{(4*m+qd)*1536+1024}')
        e('s_waitcnt lgkmcnt(0)')
        r0 = 64 + 32 * m
        for qd in range(1, 4):
            for k in range(0, 8, 2): e(f'v_pk_add_f32 v[{r0+k}:{r0+k+1}], v[{r0+k}:{r0+k+1}], v[{r0+8*qd+k}:{r0+8*qd+k+1}]')
        tag(r0, 8, 21)
    e('s_cmp_lg_u32 s5, 15'); e('s_cbranch_scc1 L_B_pl')
    for m in range(2): e(f'buffer_store_dwordx4 v[{64+32*m}:{67+32*m}], v8, s[36:39], s56 offen offset:{1536*m} sc1')
    e('s_branch L_B_x1')
    lab('L_B_pl')
    for m in range(2): e(f'buffer_store_dwordx4 v[{64+32*m}:{67+32*m}], v8, s[36:39], s56 offen offset:{1536*m}{P1}')
    e('s_cmp_ge_u32 s5, 9'); e('s_cbranch_scc1 L_B_xcc')
    e('s_mov_b32 exec_lo, 0x00ff00ff'); e('s_mov_b32 exec_hi, 0x00ff00ff')
    for m in range(2):
        e(f'buffer_store_dwordx4 v[{68+32*m}:{71+32*m}], v12, s[36:39], s56 offen offset:{1536*m+1024}{P1}')
    lab('L_B_xcc')
    e('s_getreg_b32 s44, hwreg(HW_REG_XCC_ID, 0, 4)'); e('s_lshl_b32 s44, s44, 16'); e('s_or_b32 s44, s44, s7')
    e('s_mov_b64 exec, 0xff')
    for k in range(4): e(f'v_mov_b32 v{72+k}, s44')
    e(f'buffer_store_dwordx4 v[72:75], v8, s[36:39], s56 offen offset:3072{P1}')
    e('s_mov_b64 exec, -1')
    e('s_branch L_B_x1')
    lab('L_B_q')
    e('s_cmp_lg_u32 s3, 0'); e('s_cbranch_scc1 L_B_x1')
    e('v_lshrrev_b32 v10, 5, v0'); e('v_and_b32 v11, 31, v0'); e('v_mul_u32_u24 v9, 1536, v10'); e('v_lshl_add_u32 v9, v11, 4, v9')
    e(f's_mul_i32 s54, s4, {7*RS}'); e('s_lshr_b32 s47, s5, 3'); e('s_lshl_b32 s47, s47, 9'); e('s_add_u32 s54, s54, s47'); e(f's_add_u32 s54, s54, {HB+144*RS}')
    e(f's_add_u32 s55, s54, {2*RS}'); e(f's_add_u32 s56, s54, {4*RS}'); e(f's_add_u32 s57, s54, {6*RS}'); e('s_sub_u32 s58, s54, s47')
    e('v_min_u32 v12, 5, v0'); e(f'v_mul_u32_u24 v12, {RS}, v12')
    spin('L_k_wait', O_CK, 1, sleep=4)
    stamp(9)
    if opts.get('nopoll1'): e('s_branch L_qok')
    lab('L_qpoll')
    for p in range(7):
        e(f'buffer_load_dwordx4 v[{24+4*p}:{27+4*p}], v9, s[36:39], s{54+p//2} offen offset:{(p&1)*RS} sc1')
    e('buffer_load_dwordx4 v[52:55], v12, s[36:39], s58 offen offset:3072 sc1')
    e('s_waitcnt vmcnt(0)')
    untag(list(range(24, 56)), 22)
    poll_tail(22, 'L_qpoll', 'L_qok', sleep=8)
    lab('L_qok')
    for p in range(1, 7):
        for k in (0, 2): e(f'v_pk_add_f32 v[{24+k}:{25+k}], v[{24+k}:{25+k}], v[{24+4*p+k}:{25+4*p+k}]')
    e('v_cvt_pk_bf16_f32 v24, v24, v25'); e('v_cvt_pk_bf16_f32 v25, v26, v27')
    e('v_lshlrev_b32 v9, 8, v10'); e('v_lshl_add_u32 v9, v2, 4, v9'); e('v_and_b32 v10, 1, v3'); e('v_lshl_add_u32 v9, v10, 3, v9'); e(f'v_add_u32 v9, {BASE}, v9')
    e(f'ds_write_b64 v9, v[24:25] offset:{O_QT}')
    e('s_getreg_b32 s44, hwreg(HW_REG_XCC_ID, 0, 4)'); e('s_lshl_b32 s44, s44, 16')
    e('v_cmp_ne_u32 vcc, s44, v52')
    e('s_cbranch_vccz L_near')
    signal(O_FAR)
    lab('L_near')
    signal(O_CQ)
    lab('L_B_x1')
    def kvoff():
        e('s_lshr_b32 s6, s5, 3'); e('s_lshl_b32 s6, s6, 4'); e('s_add_u32 s6, s6, s4'); e('s_lshl_b32 s6, s6, 23')
        if PAT == 'i': e('s_and_b32 s44, s5, 7'); e('s_lshl_b32 s44, s44, 17'); e('s_add_u32 s6, s6, s44')
        e('s_add_u32 s6, s6, 0x700000')
    kvoff()
    srd(32, 12, 13, 's6', KVN)
    def kvstart(d):
        if PAT == 'i': e(f's_lshl_b32 s{d}, s5, 13')
        elif PAT == 'm': e(f's_and_b32 s{d}, s5, 7'); e(f's_lshl_b32 s{d}, s{d}, 13')
        elif PAT == 'j': e(f's_and_b32 s{d}, s5, 7'); e(f's_lshl_b32 s{d}, s{d}, 15')
        elif PAT == 'r':
            e(f's_and_b32 s{d}, s5, 7'); e(f's_lshl_b32 s{d}, s{d}, 15'); e('s_add_u32 s44, s5, s4'); e('s_and_b32 s44, s44, 3'); e('s_lshl_b32 s44, s44, 13'); e(f's_add_u32 s{d}, s{d}, s44')
        elif PAT == 'r2':
            e(f's_and_b32 s{d}, s5, 7'); e(f's_lshl_b32 s{d}, s{d}, 15'); e('s_lshr_b32 s44, s5, 2'); e('s_and_b32 s44, s44, 2'); e('s_add_u32 s44, s44, s4'); e('s_and_b32 s44, s44, 3'); e('s_lshl_b32 s44, s44, 13'); e(f's_add_u32 s{d}, s{d}, s44')
        elif PAT in ('h', 'h2', 'h3'):
            e(f's_and_b32 s{d}, s5, 7'); e(f's_lshl_b32 s{d}, s{d}, 12')
            if PAT == 'h2': e('s_and_b32 s44, s4, 3'); e('s_lshl_b32 s44, s44, 10'); e(f's_add_u32 s{d}, s{d}, s44')
            if PAT == 'h3': e('s_add_u32 s44, s4, s3'); e('s_and_b32 s44, s44, 3'); e('s_lshl_b32 s44, s44, 10'); e(f's_add_u32 s{d}, s{d}, s44')
            e('s_lshl_b32 s44, s3, 15'); e(f's_add_u32 s{d}, s{d}, s44')
            return
        elif PAT == 'p':
            e(f's_and_b32 s{d}, s5, 7'); e(f's_lshl_b32 s{d}, s{d}, 13'); e('s_lshr_b32 s44, s3, 1'); e('s_lshl_b32 s44, s44, 16'); e(f's_add_u32 s{d}, s{d}, s44')
            e('s_and_b32 s44, s3, 1'); e('s_lshl_b32 s44, s44, 10'); e(f's_add_u32 s{d}, s{d}, s44')
            return
        e('s_lshl_b32 s44, s3, 10'); e(f's_add_u32 s{d}, s{d}, s44')
    def kvnext(d, n):
        if PAT == 'i':
            e(f's_add_u32 s{d}, s{d}, 0x2000'); e(f's_and_b32 s{d}, s{d}, 0x1ffff')
        elif PAT == 'm':
            e(f's_add_u32 s{d}, s{d}, 0x2000'); e(f's_and_b32 s{d}, s{d}, 0xffff'); e(f's_or_b32 s{d}, s{d}, {(n+1)*65536}')
        elif PAT == 'j':
            e(f's_add_u32 s{d}, s{d}, {0x2000 if n % 4 < 3 else 0x40000 - 0x6000}')
        elif PAT in ('h', 'h2', 'h3'):
            e(f's_add_u32 s44, s{d}, 0x400'); e('s_and_b32 s44, s44, 0xc00'); e(f's_andn2_b32 s{d}, s{d}, 0xc00'); e(f's_or_b32 s{d}, s{d}, s44')
            if n % 4 == 3:
                e(f's_add_u32 s44, s{d}, 0x1000'); e('s_and_b32 s44, s44, 0x7000'); e(f's_andn2_b32 s{d}, s{d}, 0x7000'); e(f's_or_b32 s{d}, s{d}, s44'); e(f's_add_u32 s{d}, s{d}, 0x40000')
        elif PAT == 'p':
            e(f's_add_u32 s{d}, s{d}, {0x800 if n % 4 < 3 else 0x40000 - 0x1800}')
        elif PAT in ('r', 'r2'):
            e(f's_add_u32 s44, s{d}, 0x2000'); e('s_and_b32 s44, s44, 0x6000'); e(f's_andn2_b32 s{d}, s{d}, 0x6000'); e(f's_or_b32 s{d}, s{d}, s44')
            if n % 4 == 3: e(f's_add_u32 s{d}, s{d}, 0x40000')
    kvstart(47)
    e('s_lshl_b32 s44, s3, 2'); e('v_add_u32 v9, s44, v15')
    stamp(5)
    spin('L_kd_wait', O_KD, 1, areg=9)
    stamp(4)
    def vloop(dv, dvt):
        for n in range(16):
            if n < dvt: thr(n, dv)
            else: thr(n, opts.get('dv2', 0))
            e(f'buffer_load_dwordx4 v[{64+4*n}:{67+4*n}], v8, s[32:35], s47 offen{NTV}')
            if n < 15: kvnext(47, n)
            if n == opts.get('vsig', -1): signal(O_VD, areg=9)
            if n == 15: signal(O_CV)
    if opts.get('dvwo'):
        e('s_sub_u32 s44, s5, 9'); e('s_cmp_ge_u32 s44, 6'); e('s_cbranch_scc1 L_v_mlp')
        vloop(opts['dvwo'], opts.get('dvtwo', 16))
        e('s_branch L_v_done')
        lab('L_v_mlp')
    vloop(DV, opts.get('dvt', 16))
    lab('L_v_done')
    stamp(6)
    e('v_lshrrev_b32 v10, 3, v2'); e('v_lshlrev_b32 v10, 11, v10'); e('v_lshl_add_u32 v10, v3, 6, v10')
    e('s_lshl_b32 s44, s3, 8'); e(f's_add_u32 s44, s44, {BASE+O_PT}'); e('v_add_u32 v10, s44, v10')
    e('v_lshrrev_b32 v12, 5, v0'); e('v_lshlrev_b32 v12, 3, v12'); e(f'v_add_u32 v12, {BASE+O_ML}, v12')
    e('v_and_b32 v11, 7, v0'); e('v_lshl_add_u32 v11, v11, 4, v12')
    e('s_lshl_b32 s44, s3, 4'); e('v_add_u32 v12, s44, v12')
    e(f's_mov_b32 s49, {LOG2E}')
    e(f'v_add_u32 v13, {BASE+O_OP}, v8'); e('s_lshl_b32 s44, s3, 10'); e('v_add_u32 v14, s44, v13')
    e('s_lshl_b32 s56, s4, 4'); e('s_add_u32 s56, s56, s5'); e('s_lshl_b32 s56, s56, 10'); e(f's_add_u32 s56, s56, {OB}')
    spin('L_p_wait', O_CP, 8)
    stamp(7)
    for k in range(4): e(f'ds_read_b128 v[{40+4*k}:{43+4*k}], v10 offset:{16*k}')
    e('ds_read_b32 v16, v11'); e('ds_read_b32 v17, v12'); e(f'ds_read_b32 v19, v15 offset:{O_FAR}')
    e('s_waitcnt lgkmcnt(6)')
    def pv_and(n):
        a = 24 + 4 * (n & 1)
        for j in range(4): e(f'v_and_b32 v{a+j}, v{40+n}, v{4+j}')
    pv_and(0)
    for n in range(16):
        if n == 3:
            e('s_waitcnt lgkmcnt(0)')
            e(f'v_max_f32_dpp v16, v16, v16 {X1}')
        if n == 4: e(f'v_max_f32_dpp v16, v16, v16 {X2}')
        if n == 5: e(f'v_max_f32_dpp v16, v16, v16 {HM}')
        if n == 6: e('v_sub_f32 v17, v17, v16'); e('v_mul_f32 v17, s49, v17')
        if n == 7: e('v_exp_f32 v17, v17')
        if n == 8: e('v_readfirstlane_b32 s57, v19')
        if n < 15: pv_and(n + 1)
        a = 24 + 4 * (n & 1)
        e(f's_waitcnt vmcnt({15-n})')
        c = '0' if n == 0 else 'v[32:35]'
        e(f'v_mfma_f32_16x16x32_bf16 v[32:35], v[{a}:{a+3}], v[{64+4*n}:{67+4*n}], {c}')
    stamp(8)
    e('v_pk_mul_f32 v[32:33], v[32:33], v[16:17] op_sel:[0,1]'); e('v_pk_mul_f32 v[34:35], v[34:35], v[16:17] op_sel:[0,1]')
    e('ds_write_b128 v14, v[32:35]')
    signal(O_CO, rtn=20)
    for w in range(8): e(f'ds_read_b128 v[{64+4*w}:{67+4*w}], v13 offset:{w*1024}')
    e('s_waitcnt lgkmcnt(8)')
    e('v_readfirstlane_b32 s44, v20')
    e('s_cmp_lg_u32 s44, 7'); e('s_cbranch_scc1 L_exit')
    def padd(a, b):
        for k in (0, 2): e(f'v_pk_add_f32 v[{a+k}:{a+k+1}], v[{a+k}:{a+k+1}], v[{b+k}:{b+k+1}]')
    e('s_waitcnt lgkmcnt(6)'); padd(64, 68)
    e('s_waitcnt lgkmcnt(4)'); padd(72, 76); padd(64, 72)
    e('s_waitcnt lgkmcnt(2)'); padd(80, 84); padd(64, 80)
    e('s_waitcnt lgkmcnt(0)'); padd(88, 92); padd(64, 88)
    tag(64, 4, 21)
    e('s_cmp_lg_u32 s57, 0'); e('s_cbranch_scc1 L_ofar')
    e('buffer_store_dwordx4 v[64:67], v8, s[36:39], s56 offen')
    lab('L_odone')
    if opts.get('wb') == 1:
        e('s_cmp_lg_u32 s5, 15'); e('s_cbranch_scc1 L_nowb'); e('s_bitcmp1_b32 s4, 0'); e('s_cbranch_scc1 L_nowb')
        e('buffer_wbl2 sc1')
        lab('L_nowb')
    stamp(10)
    if BAR:
        e('s_cmp_ge_u32 s5, 9'); e('s_cbranch_scc1 L_exit')
        e('s_barrier')
    else:
        signal(O_CO)
    endwave()
    lab('L_ofar')
    e('buffer_store_dwordx4 v[64:67], v8, s[36:39], s56 offen sc1')
    e('s_branch L_odone')

    lab('L_A')
    e('s_sub_u32 s3, s3, 8')
    e(f'v_mov_b32 v15, {BASE}'); e('v_mov_b32 v18, 1')
    e('s_cmp_lg_u32 s3, 0'); e('s_cbranch_scc1 L_A_n0')
    e('v_lshl_add_u32 v9, v0, 3, v15'); e('v_mov_b32 v10, 0'); e('v_mov_b32 v11, 0')
    e('ds_write_b64 v9, v[10:11]')
    lab('L_A_n0')
    if opts.get('codepf', True):
        e('s_cmp_lg_u32 s3, 1'); e('s_cbranch_scc1 L_A_n1')
        e('s_getpc_b64 s[40:41]')
        lab('L_pc')
        e(f's_sub_u32 s40, s40, L_pc-{KNAME}'); e('s_subb_u32 s41, s41, 0')
        e('s_bfe_u32 s44, s2, 0x20003'); e('s_mul_i32 s44, s44, 3072')
        e('v_lshlrev_b32 v9, 4, v0'); e('v_add_u32 v9, s44, v9')
        e('global_load_dwordx4 v[20:23], v9, s[40:41]'); e('global_load_dwordx4 v[24:27], v9, s[40:41] offset:1024')
        e('global_load_dwordx4 v[28:31], v9, s[40:41] offset:2048')
        lab('L_A_n1')
    kvoff()
    e('v_xor_b32 v4, v2, v3'); e('v_lshlrev_b32 v4, 4, v4'); e('v_lshl_add_u32 v4, v3, 8, v4')
    e('v_xor_b32 v5, 64, v4'); e('v_xor_b32 v6, 0x80, v4'); e('v_xor_b32 v7, 0xc0, v4')
    e('s_lshl_b32 s47, s3, 14'); e('s_mov_b32 m0, s47')
    kvstart(48)
    e('s_lshl_b32 s44, s3, 2'); e('v_add_u32 v53, s44, v15')
    e('s_mov_b32 s46, 0')
    e('s_waitcnt lgkmcnt(0)')
    srd(32, 10, 11, 's6', KVN)
    e('s_load_dword s7, s[30:31], 0')
    e('s_barrier')
    spin('L_pd_wait', O_PD, 1, areg=53)
    def kloop(dk):
        for n in range(16):
            thr(n, dk)
            e(f'buffer_load_dwordx4 v{4+(n&3)}, s[32:35], s48 offen{NTK} lds')
            if n < 15: e('s_add_u32 m0, m0, 0x400'); kvnext(48, n)
            if n == opts.get('ksig', 10): signal(O_CK)
            if n == opts.get('kdsig', 15):
                if 'ho' in opts: e(f's_waitcnt vmcnt({opts["ho"]})')
                signal(O_KD, areg=53)
    if opts.get('dkwo'):
        e('s_sub_u32 s44, s5, 9'); e('s_cmp_ge_u32 s44, 6'); e('s_cbranch_scc1 L_k_mlp')
        kloop(opts['dkwo'])
        e('s_branch L_k_done')
        lab('L_k_mlp')
    kloop(DK)
    lab('L_k_done')
    stamp(1)
    srd(36, 30, 31, None, WS_SPAN)
    for s in range(4):
        e(f'v_or_b32 v{4+s}, {4*s}, v3'); e(f'v_xor_b32 v{4+s}, v{4+s}, v2'); e(f'v_lshlrev_b32 v{4+s}, 4, v{4+s}')
        e(f'v_lshl_add_u32 v{4+s}, v2, 8, v{4+s}'); e(f'v_add_u32 v{4+s}, s47, v{4+s}')
    e('v_and_b32 v12, 1, v2'); e('v_lshlrev_b32 v12, 8, v12'); e('v_lshl_add_u32 v12, v3, 4, v12')
    e(f'v_add_u32 v12, {BASE+O_QT}, v12')
    e(f'v_mov_b32 v13, {BASE+O_ZERO}')
    e('v_lshrrev_b32 v14, 2, v2')
    for T in range(4):
        e(f'v_cmp_eq_u32 vcc, {T}, v14'); e(f'v_cndmask_b32 v{8+T}, v13, v12, vcc')
    spin('L_q_wait', O_CQ, 1)
    stamp(2)
    for T in range(4):
        for s in range(4):
            r = 64 + 16 * T + 4 * s
            e(f'ds_read_b128 v[{r}:{r+3}], v{8+T} offset:{64*s}')
        if T in (1, 2): e('s_waitcnt lgkmcnt(4)')
    def kread(T):
        e(f's_waitcnt vmcnt({12-4*T})')
        for s in range(4):
            r = 32 + 16 * (T & 1) + 4 * s
            e(f'ds_read_b128 v[{r}:{r+3}], v{4+s} offset:{4096*T}')
    e('s_waitcnt lgkmcnt(0)')
    kread(0)
    for T in range(4):
        if T < 3: kread(T + 1)
        e(f's_waitcnt lgkmcnt({4 if T < 3 else 0})')
        for s in range(4):
            r = 32 + 16 * (T & 1) + 4 * s; q = 64 + 16 * T + 4 * s
            c = '0' if (T == 0 and s == 0) else 'v[20:23]'
            e(f'v_mfma_f32_16x16x32_bf16 v[20:23], v[{q}:{q+3}], v[{r}:{r+3}], {c}')
        if T < 2: e('s_nop 7')
    finish_tag_setup(19)
    e(f's_mov_b32 s48, {SCALE}'); e(f's_mov_b32 s49, {LOG2E}'); e('s_mov_b32 s50, 0xffff0000')
    e('v_cvt_pk_bf16_f32 v24, v20, v21')
    e('v_lshlrev_b32 v20, 16, v24'); e('v_and_b32 v21, s50, v24')
    e('v_mul_f32 v20, s48, v20'); e('v_mul_f32 v21, s48, v21')
    e('v_cvt_pk_bf16_f32 v24, v20, v21')
    e('v_lshlrev_b32 v20, 16, v24'); e('v_and_b32 v21, s50, v24')
    def wave_reduce2(op, a, b, sa, sb):
        e(f'{op}_dpp v{a}, v{sa}, v{sa} {X1}'); e(f'{op}_dpp v{b}, v{sb}, v{sb} {X1}')
        for m in (X2, HM, RM, 'row_bcast:15 row_mask:0xa bank_mask:0xf', 'row_bcast:31 row_mask:0xc bank_mask:0xf'):
            e(f'{op}_dpp v{a}, v{a}, v{a} {m}'); e(f'{op}_dpp v{b}, v{b}, v{b} {m}')
    wave_reduce2('v_max_f32', 24, 26, 20, 21)
    e('v_readlane_b32 s54, v24, 63'); e('v_readlane_b32 s55, v26, 63')
    e('v_subrev_f32 v20, s54, v20'); e('v_subrev_f32 v21, s55, v21')
    e('v_mul_f32 v20, s49, v20'); e('v_mul_f32 v21, s49, v21')
    e('v_exp_f32 v20, v20'); e('v_exp_f32 v21, v21')
    e('v_and_b32 v28, 3, v0'); e('v_lshlrev_b32 v28, 6, v28'); e('v_and_b32 v29, 0x3c, v0'); e('v_add_u32 v28, v28, v29')
    e('s_lshl_b32 s44, s3, 8'); e(f's_add_u32 s44, s44, {BASE}'); e('v_add_u32 v28, s44, v28')
    e('v_cvt_pk_bf16_f32 v22, v20, v20'); e('v_cvt_pk_bf16_f32 v23, v21, v21')
    e(f'ds_write_b32 v28, v22 offset:{O_PT}'); e(f'ds_write_b32 v28, v23 offset:{O_PT+2048}')
    wave_reduce2('v_add_f32', 25, 27, 20, 21)
    e('s_lshl_b32 s44, s3, 4'); e(f's_add_u32 s44, s44, {BASE}'); e('v_mov_b32 v28, s44')
    e('s_mov_b32 exec_lo, 0'); e('s_mov_b32 exec_hi, 0x80000000')
    e(f'ds_write_b128 v28, v[24:27] offset:{O_ML}')
    signal(O_CP, rtn=17)
    e('s_waitcnt lgkmcnt(0)')
    stamp(4)
    e('v_readfirstlane_b32 s44, v17')
    if opts.get('nopub1'): e('s_branch L_A_role')
    e('s_cmp_lg_u32 s44, 7'); e('s_cbranch_scc1 L_A_role')
    e('v_and_b32 v20, 7, v0'); e('v_lshlrev_b32 v20, 4, v20'); e('v_and_b32 v21, 8, v0'); e('v_add_u32 v20, v21, v20')
    e(f'v_add_u32 v20, {BASE}, v20')
    e(f'ds_read_b64 v[22:23], v20 offset:{O_ML}'); e(f'ds_read_b32 v28, v15 offset:{O_FAR}')
    e('s_lshl_b32 s44, s4, 12'); e('s_lshl_b32 s47, s5, 8'); e('s_add_u32 s44, s44, s47'); e(f's_add_u32 s44, s44, {MLB}')
    e('v_lshlrev_b32 v21, 4, v0')
    e('s_waitcnt lgkmcnt(0)')
    e(f'v_max_f32_dpp v24, v22, v22 {X1}'); e(f'v_max_f32_dpp v24, v24, v24 {X2}'); e(f'v_max_f32_dpp v24, v24, v24 {HM}')
    e('v_sub_f32 v22, v22, v24'); e('v_mul_f32 v22, s49, v22'); e('v_exp_f32 v22, v22')
    e('v_mul_f32 v25, v22, v23')
    e(f'v_add_f32_dpp v25, v25, v25 {X1}'); e(f'v_add_f32_dpp v25, v25, v25 {X2}'); e(f'v_add_f32_dpp v25, v25, v25 {HM}')
    tag(24, 2, 19)
    e('v_mov_b32 v26, v24'); e('v_mov_b32 v27, v25')
    e('v_readfirstlane_b32 s47, v28')
    e('s_mov_b64 exec, 0xffff')
    e('s_cmp_lg_u32 s47, 0'); e('s_cbranch_scc1 L_mlfar')
    e(f'buffer_store_dwordx4 v[24:27], v21, s[36:39], s44 offen{P1}')
    e('s_branch L_mldone')
    lab('L_mlfar')
    e('buffer_store_dwordx4 v[24:27], v21, s[36:39], s44 offen sc1')
    lab('L_mldone')
    e('s_mov_b64 exec, -1')
    lab('L_A_role')
    e('s_cmp_lt_u32 s5, 9'); e('s_cbranch_scc1 L_A_mlp')
    e('s_cmp_eq_u32 s5, 15'); e('s_cbranch_scc1 L_exit')
    e('s_cmp_ge_u32 s5, 12'); e('s_cselect_b32 s53, 1, 0')
    e('s_mul_i32 s44, s53, 3'); e('s_sub_u32 s54, s5, 9'); e('s_sub_u32 s54, s54, s44')
    e('s_lshl_b32 s55, s4, 1'); e('s_add_u32 s55, s55, s53')
    e('s_lshl_b32 s44, s55, 3'); e('s_add_u32 s44, s44, s3'); e(f's_mul_i32 s44, s44, {16*1152}')
    e('s_mul_i32 s47, s54, 384'); e('s_add_u32 s44, s44, s47')
    srd(32, 16, 17, 's44', 15 * 1152 + 384)
    tile_addr()
    e('s_lshl_b32 s57, s4, 12'); e('s_lshl_b32 s47, s53, 7'); e('s_add_u32 s57, s57, s47'); e(f's_add_u32 s57, s57, {MLB}')
    e('v_lshlrev_b32 v8, 8, v2')
    e('s_lshl_b32 s58, s4, 4'); e('s_add_u32 s58, s58, s3'); e('s_lshl_b32 s58, s58, 10'); e('s_lshl_b32 s47, s53, 9'); e('s_add_u32 s58, s58, s47'); e(f's_add_u32 s58, s58, {OB}')
    e('v_lshrrev_b32 v12, 5, v0'); e('v_and_b32 v13, 31, v0'); e('v_lshlrev_b32 v7, 13, v12'); e('v_lshl_add_u32 v7, v13, 4, v7')
    e(f'v_mul_u32_u24 v12, {8*272}, v12'); e('v_lshl_add_u32 v12, v2, 4, v12'); e('v_and_b32 v13, 1, v3'); e('v_lshl_add_u32 v12, v13, 3, v12')
    e('s_mul_i32 s44, s3, 272'); e(f's_add_u32 s44, s44, {STG}'); e('v_add_u32 v12, s44, v12')
    e('v_mul_u32_u24 v9, 272, v2'); e('v_lshl_add_u32 v9, v3, 4, v9'); e(f'v_add_u32 v9, {STG}, v9')
    e('s_add_u32 s59, s55, 64'); e(f's_mul_i32 s59, s59, {FS}'); e('s_mul_i32 s47, s54, 1536'); e('s_add_u32 s59, s59, s47')
    e('s_lshl_b32 s44, s3, 8'); e('s_add_u32 s59, s59, s44'); e(f's_add_u32 s59, s59, {FB}')
    e('s_mul_i32 s44, s3, 6144'); e('s_mov_b32 m0, s44'); e('s_movk_i32 s47, 9216'); e('s_add_u32 s52, s3, 8')
    spin('L_wo_pwait', O_CP, 8, sleep=2)
    e('s_lshl_b32 s44, s3, 2'); e('v_add_u32 v53, s44, v15')
    spin('L_wo_vwait', O_CV, opts.get('cvwo', 8))
    stamp(5)
    if opts.get('pto', 1): e('buffer_load_dwordx4 v[28:31], v7, s[36:39], s58 offen sc1')
    e('buffer_load_dwordx4 v[20:23], v8, s[36:39], s57 offen sc1')
    for n in range(6):
        thr(n, DO)
        e(f"buffer_load_dwordx4 v{4+n if n < 3 else 46+n}, s[32:35], {'0' if n < 3 else 's47'} offen{NT} lds")
        if n < 5: e('s_add_u32 m0, m0, 0x400')
    stamp(6)
    e('s_waitcnt vmcnt(6)')
    e('s_branch L_mlchk')
    lab('L_mlpoll')
    e('buffer_load_dwordx4 v[20:23], v8, s[36:39], s57 offen sc1')
    e('s_waitcnt vmcnt(0)')
    lab('L_mlchk')
    untag([20, 21, 22, 23], 24)
    poll_tail(24, 'L_mlpoll', 'L_mlok', sleep=4)
    lab('L_mlok')
    e(f'v_max_f32_dpp v24, v20, v20 {X1}'); e(f'v_max_f32_dpp v24, v24, v24 {X2}'); e(f'v_max_f32_dpp v24, v24, v24 {HM}')
    e('v_sub_f32 v20, v20, v24'); e('v_mul_f32 v20, s49, v20'); e('v_exp_f32 v20, v20')
    e('v_mul_f32 v25, v20, v21')
    e(f'v_add_f32_dpp v25, v25, v25 {X1}'); e(f'v_add_f32_dpp v25, v25, v25 {X2}'); e(f'v_add_f32_dpp v25, v25, v25 {HM}')
    e('v_rcp_f32 v25, v25'); e('v_mul_f32 v14, v20, v25')
    e('v_readlane_b32 s54, v14, s3'); e('v_readlane_b32 s55, v14, s52')
    e('v_mov_b32 v14, s55'); e('s_mov_b32 exec_hi, 0'); e('v_mov_b32 v14, s54'); e('s_mov_b32 exec_hi, -1')
    e('s_waitcnt vmcnt(0)')
    e('buffer_load_dwordx4 v[20:23], v7, s[36:39], s58 offen sc1')
    stamp(7)
    if BAR:
        e('s_barrier')
        e('s_cmp_ge_u32 s3, 6'); e('s_cbranch_scc1 L_ochk')
    else:
        signal(O_CW)
        e('s_cmp_ge_u32 s3, 6'); e('s_cbranch_scc1 L_ochk')
        spin('L_w_wait', O_CW, 8, sleep=0)
    for tl in range(2):
        for s in range(4):
            for hf in range(2):
                r = 64 + 16 * tl + 4 * s + 2 * hf
                e(f'ds_read_b64_tr_b16 v[{r}:{r+1}], v{52 if tl else 10} offset:{12288*s + 1536*hf}')
        if tl == 0: e('s_waitcnt lgkmcnt(4)')
    e('s_branch L_ochk')
    lab('L_opoll')
    e('buffer_load_dwordx4 v[20:23], v7, s[36:39], s58 offen sc1')
    lab('L_ochk')
    e('s_waitcnt vmcnt(0)')
    untag([20, 21, 22, 23], 24)
    poll_tail(24, 'L_opoll', 'L_ook', sleep=opts.get('osleep', 1))
    lab('L_ook')
    stamp(8)
    e('v_pk_mul_f32 v[20:21], v[20:21], v[14:15] op_sel_hi:[1,0]'); e('v_pk_mul_f32 v[22:23], v[22:23], v[14:15] op_sel_hi:[1,0]')
    e('v_cvt_pk_bf16_f32 v20, v20, v21'); e('v_cvt_pk_bf16_f32 v21, v22, v23')
    e('ds_write_b64 v12, v[20:21]')
    e('s_waitcnt lgkmcnt(0)')
    e('s_barrier')
    stamp(11)
    if opts.get('wb') == 2:
        e('s_cmp_lg_u32 s3, 7'); e('s_cbranch_scc1 L_nowb'); e('s_cmp_lg_u32 s5, 9'); e('s_cbranch_scc1 L_nowb'); e('s_bitcmp1_b32 s4, 0'); e('s_cbranch_scc1 L_nowb')
        e('buffer_wbl2 sc1')
        lab('L_nowb')
    e('s_cmp_ge_u32 s3, 6'); e('s_cbranch_scc1 L_exit')
    for s in range(4): e(f'ds_read_b128 v[{32+4*s}:{35+4*s}], v9 offset:{64*s}')
    for s in range(4):
        e(f's_waitcnt lgkmcnt({3-s})')
        for tl in range(2):
            d = 24 + 4 * tl
            c = '0' if s == 0 else f'v[{d}:{d+3}]'
            e(f'v_mfma_f32_16x16x32_bf16 v[{d}:{d+3}], v[{64+16*tl+4*s}:{67+16*tl+4*s}], v[{32+4*s}:{35+4*s}], {c}')
    for r in range(4): e(f'v_add_f32_dpp v{24+r}, v{24+r}, v{24+r} row_half_mirror row_mask:0xf bank_mask:0x5')
    for r in range(4): e(f'v_add_f32_dpp v{24+r}, v{28+r}, v{28+r} row_half_mirror row_mask:0xf bank_mask:0xa')
    for m in (X1, X2):
        for r in range(4): e(f'v_add_f32_dpp v{24+r}, v{24+r}, v{24+r} {m}')
    if opts.get('dwst'):
        e('s_mov_b32 vcc_lo, 0xaaaaaaaa'); e('s_mov_b32 vcc_hi, 0xaaaaaaaa')
        e('v_cndmask_b32 v24, v24, v25, vcc'); e('v_cndmask_b32 v26, v26, v27, vcc')
        e('s_mov_b32 vcc_lo, 0xcccccccc'); e('s_mov_b32 vcc_hi, 0xcccccccc')
        e('v_cndmask_b32 v24, v24, v26, vcc')
        tag(24, 1, 19)
        e('buffer_store_dword v24, v11, s[36:39], s59 offen sc1')
    else:
        tag(24, 4, 19)
        e('s_mov_b32 exec_lo, 0x11111111'); e('s_mov_b32 exec_hi, 0x11111111')
        e('buffer_store_dwordx4 v[24:27], v11, s[36:39], s59 offen sc1')
    stamp(9)
    endwave()
    lab('L_A_mlp')
    e('s_cmp_eq_u32 s3, 7'); e('s_cbranch_scc1 L_A_fin')
    e('s_cmp_eq_u32 s3, 6'); e('s_cbranch_scc1 L_exit')
    e('s_cmp_ge_u32 s52, 3'); e('s_cselect_b32 s54, 1, 0')
    e('s_mul_i32 s55, s54, 3'); e('s_add_u32 s56, s55, s3'); e('s_sub_u32 s55, s52, s55')
    e('s_cmp_ge_u32 s3, 3'); e('s_cbranch_scc1 L_A_wd')
    e('s_cmp_ge_u32 s56, 4'); e('s_cselect_b32 s44, 7, 8'); e('s_cselect_b32 s47, 1024, 0')
    e('v_bfe_u32 v13, v0, 2, 2'); e('v_lshlrev_b32 v13, s44, v13'); e('v_mul_u32_u24 v9, 1536, v3'); e('v_add_u32 v13, v13, v9')
    e('v_lshrrev_b32 v9, 5, v0'); e('v_lshl_add_u32 v13, v9, 7, v13')
    e('v_and_b32 v9, 3, v0'); e('v_lshl_add_u32 v13, v9, 4, v13')
    e('v_min_u32 v12, 5, v0'); e(f'v_mul_u32_u24 v12, {RS}, v12')
    e(f's_mul_i32 s57, s51, {6*RS}'); e(f's_add_u32 s48, s57, {HB}'); e('s_add_u32 s57, s57, s47'); e('s_and_b32 s44, s56, 3'); e('s_lshl_b32 s44, s44, 6'); e('s_add_u32 s57, s57, s44')
    e(f's_add_u32 s57, s57, {HB}'); e(f's_add_u32 s58, s57, {2*RS}'); e(f's_add_u32 s59, s57, {4*RS}')
    e('v_bfe_u32 v10, v0, 2, 1'); e('v_lshl_add_u32 v10, v10, 2, v3'); e('v_lshl_add_u32 v10, v9, 3, v10'); e('s_lshl_b32 s44, s3, 5'); e('v_add_u32 v10, s44, v10')
    e('v_bfe_u32 v11, v0, 3, 1'); e('v_mul_u32_u24 v11, 192, v11'); e('v_lshl_add_u32 v11, v10, 1, v11'); e('v_add_u32 v11, v15, v11')
    e('v_lshl_add_u32 v10, v10, 2, v15')
    lab('L_hpoll')
    for l in range(3): e(f'buffer_load_dwordx4 v[{32+4*l}:{35+4*l}], v13, s[36:39], s{57+l} offen sc1')
    e('buffer_load_dwordx4 v[44:47], v12, s[36:39], s48 offen offset:3072 sc1')
    e('s_waitcnt vmcnt(0)')
    untag(list(range(32, 48)), 48)
    poll_tail(48, 'L_hpoll', 'L_hok', sleep=8)
    lab('L_hok')
    e('s_getreg_b32 s44, hwreg(HW_REG_XCC_ID, 0, 4)'); e('s_lshl_b32 s44, s44, 16')
    e('v_cmp_ne_u32 vcc, s44, v44')
    e('s_cbranch_vccz L_hnear')
    e('buffer_wbl2 sc1'); e('s_waitcnt vmcnt(0)')
    lab('L_hnear')
    for l in (1, 2):
        for k in (0, 2): e(f'v_pk_add_f32 v[{32+k}:{33+k}], v[{32+k}:{33+k}], v[{32+4*l+k}:{33+4*l+k}]')
    e('v_permlane32_swap_b32 v32, v34'); e('v_permlane32_swap_b32 v33, v35')
    e('v_add_f32 v32, v32, v34'); e('v_add_f32 v33, v33, v35')
    e('v_permlane16_swap_b32 v32, v33')
    e('v_cvt_pk_bf16_f32 v24, v32, v33')
    e('v_and_b32 v25, s50, v24'); e('v_lshlrev_b32 v24, 16, v24')
    e('v_cmp_lt_f32 vcc, 0, v24'); e('v_cndmask_b32 v26, 0, 1.0, vcc')
    e('v_mul_f32 v24, v24, v26'); e('v_mul_f32 v24, v24, v25')
    e('v_cvt_pk_bf16_f32 v24, v24, v24')
    e(f'ds_write_b16 v11, v24 offset:{O_HS}')
    e(f'v_or_b32_dpp v25, v24, v24 {DPP("row_ror:8")}'); e('v_lshlrev_b32 v25, 17, v25')
    e(f'ds_write_b32 v10, v25 offset:{O_NZ}')
    signal(O_CH)
    stamp(5)
    lab('L_A_wd')
    e('s_lshl_b32 s56, s51, 1'); e('s_add_u32 s56, s56, s54')
    e('s_mul_i32 s44, s56, 6'); e('s_add_u32 s44, s44, s3'); e(f's_mul_i32 s44, s44, {16*1152}')
    e('s_mul_i32 s47, s55, 384'); e('s_add_u32 s44, s44, s47')
    srd(32, 24, 25, 's44', 15 * 1152 + 384)
    e('s_lshl_b32 s44, s3, 6'); e('v_add_u32 v57, s44, v15')
    tile_addr(rows=54)
    e(f's_mul_i32 s59, s56, {FS}'); e('s_mul_i32 s47, s55, 1536'); e('s_add_u32 s59, s59, s47')
    e('s_lshl_b32 s44, s3, 8'); e('s_add_u32 s59, s59, s44'); e(f's_add_u32 s59, s59, {FB}')
    e('v_lshrrev_b32 v9, 3, v2'); e('v_mul_u32_u24 v9, 192, v9'); e('v_lshl_add_u32 v9, v3, 4, v9'); e('v_add_u32 v9, v15, v9')
    e('s_mul_i32 s44, s3, 6144'); e('s_mov_b32 m0, s44'); e('s_movk_i32 s47, 9216')
    spin('L_h_wait', O_CH, 3, sleep=4)
    for s in range(3): e(f'ds_read_b128 v[{32+4*s}:{35+4*s}], v9 offset:{O_HS+64*s}')
    if opts.get('skip', 1):
        for m in range(3):
            e(f'ds_read_b32 v{58+m}, v{54+m} offset:{O_NZ}'); e(f'ds_read_b32 v{61+m}, v{54+m} offset:{O_NZ+32}')
        e('v_bfrev_b32 v8, 1')
        e('s_waitcnt lgkmcnt(0)')
        for n in range(6):
            r = 4 + n if n < 3 else 46 + n
            e(f'v_cmp_ne_u32 vcc, 0, v{58+n}'); e(f'v_cndmask_b32 v{r}, v8, v{r}, vcc')
    spin('L_wd_pwait', O_CP, 8, sleep=2)
    WPRE = opts.get('wdpre', 2)
    def wdload(n):
        e(f"buffer_load_dwordx4 v{4+n if n < 3 else 46+n}, s[32:35], {'0' if n < 3 else 's47'} offen{NT} lds")
        if n < 5: e('s_add_u32 m0, m0, 0x400')
    if WPRE:
        spin('L_v_wait', O_CV, opts.get('cvwd', 8))
        for n in range(WPRE): wdload(n)
    stamp(8)
    if BAR: e('s_barrier')
    if WPRE < 6:
        if not BAR: spin('L_o_wait', O_CO, opts.get('wdco', 9), sleep=0)
        for n in range(WPRE, 6): wdload(n)
    stamp(10)
    e('s_waitcnt vmcnt(0)')
    stamp(7)
    if BAR: e('s_barrier')
    else:
        signal(O_CW)
        spin('L_wd_wait', O_CW, 6, sleep=0)
    for s in range(3):
        for tl in range(2):
            for hf in range(2):
                r = 64 + 16 * tl + 4 * s + 2 * hf
                e(f'ds_read_b64_tr_b16 v[{r}:{r+1}], v{52 if tl else 10} offset:{12288*s + 1536*hf}')
    for s in range(3):
        for tl in range(2):
            e(f's_waitcnt lgkmcnt({10-4*s-2*tl})')
            d = 24 + 4 * tl
            c = '0' if s == 0 else f'v[{d}:{d+3}]'
            e(f'v_mfma_f32_16x16x32_bf16 v[{d}:{d+3}], v[{64+16*tl+4*s}:{67+16*tl+4*s}], v[{32+4*s}:{35+4*s}], {c}')
    stamp(11)
    for r in range(4): e(f'v_mov_b32_dpp v{24+r}, v{28+r} quad_perm:[0,1,2,3] row_mask:0xf bank_mask:0xa')
    if opts.get('dwst'):
        e('s_mov_b32 vcc_lo, 0xaaaaaaaa'); e('s_mov_b32 vcc_hi, 0xaaaaaaaa')
        e('v_cndmask_b32 v24, v24, v25, vcc'); e('v_cndmask_b32 v26, v26, v27, vcc')
        e('s_mov_b32 vcc_lo, 0xcccccccc'); e('s_mov_b32 vcc_hi, 0xcccccccc')
        e('v_cndmask_b32 v24, v24, v26, vcc')
        tag(24, 1, 19)
        e('buffer_store_dword v24, v11, s[36:39], s59 offen sc1')
    else:
        tag(24, 4, 19)
        e('s_mov_b32 exec_lo, 0x11111111'); e('s_mov_b32 exec_hi, 0x11111111')
        e('buffer_store_dwordx4 v[24:27], v11, s[36:39], s59 offen sc1')
    endwave()
    lab('L_A_fin')
    srd(40, 8, 9, None, 2304)
    e('v_and_b32 v5, 1, v0'); e('v_and_b32 v4, 1, v3'); e('v_lshlrev_b32 v4, 2, v4'); e('v_lshl_add_u32 v4, v5, 5, v4')
    e('s_and_b32 s44, s53, 1'); e('s_mul_i32 s44, s44, 1152'); e('s_lshr_b32 s47, s53, 3'); e('s_lshl_b32 s47, s47, 6'); e('s_add_u32 s44, s44, s47')
    e('s_and_b32 s47, s53, 6'); e('s_lshl_b32 s47, s47, 2'); e('s_add_u32 s44, s44, s47')
    e('v_add_u32 v4, s44, v4'); e('v_lshrrev_b32 v7, 5, v0'); e('v_lshl_add_u32 v4, v7, 1, v4')
    e('buffer_load_ushort v10, v4, s[40:43], 0 offen')
    srd(40, 26, 27, None, 2304)
    e('v_lshrrev_b32 v6, 1, v0'); e(f'v_mul_u32_u24 v6, {FS}, v6'); e('v_lshl_add_u32 v6, v5, 4, v6')
    e('s_lshl_b32 s57, s53, 5'); e(f's_add_u32 s57, s57, {FB}'); e(f's_add_u32 s58, s57, {32*FS}'); e(f's_add_u32 s59, s57, {64*FS}')
    for k in range(4): e(f'v_mov_b32 v{68+k}, s7')
    e('s_mov_b32 s54, 0'); e('s_mov_b32 s55, 0')
    if BAR: e('s_barrier'); e('s_barrier')
    elif opts.get('fco'): spin('L_s_start', O_CO, 9, sleep=opts['fco'])
    elif opts.get('fcw'): spin('L_s_start', O_CW, opts['fcw'], sleep=1)
    else: spin('L_s_start', O_CYS, opts.get('fstart', 6), sleep=2)
    e('s_waitcnt vmcnt(0)')
    e('v_lshlrev_b32 v10, 16, v10')
    stamp(11)
    lab('L_fpoll')
    e('s_cmp_lg_u32 s54, 0'); e('s_cbranch_scc1 L_f1')
    e('buffer_load_dwordx4 v[64:67], v6, s[36:39], s57 offen sc1')
    e('s_mov_b32 exec_hi, 0')
    e('buffer_load_dwordx4 v[68:71], v6, s[36:39], s58 offen sc1')
    e('s_mov_b32 exec_hi, -1')
    lab('L_f1')
    e('s_cmp_lg_u32 s55, 0'); e('s_cbranch_scc1 L_f2')
    e('buffer_load_dwordx4 v[72:75], v6, s[36:39], s59 offen sc1')
    e('s_waitcnt vmcnt(0)')
    untag([72, 73, 74, 75], 88, dst=[84, 85, 86, 87])
    e('v_and_b32 v88, s45, v88'); e('v_cmp_ne_u32 vcc, 0, v88'); e('s_cbranch_vccnz L_f2')
    stamp(9)
    red32(84)
    rnd(84)
    e('s_mov_b32 s55, 1')
    e('s_cmp_lg_u32 s54, 0'); e('s_cbranch_scc1 L_fok')
    lab('L_f2')
    e('s_cmp_lg_u32 s54, 0'); e('s_cbranch_scc1 L_f3')
    e('s_waitcnt vmcnt(0)')
    untag(list(range(64, 72)), 104, dst=list(range(96, 104)))
    e('v_and_b32 v104, s45, v104'); e('v_cmp_ne_u32 vcc, 0, v104'); e('s_cbranch_vccnz L_f3')
    stamp(12)
    for k in (0, 2): e(f'v_pk_add_f32 v[{96+k}:{97+k}], v[{96+k}:{97+k}], v[{100+k}:{101+k}]')
    red32(96)
    rnd(96)
    e('v_mul_f32 v97, s49, v96'); e('v_exp_f32 v97, -v97'); e('v_add_f32 v97, 1.0, v97'); e('v_rcp_f32 v97, v97')
    e('v_mul_f32 v96, v96, v97')
    rnd(96)
    e('s_mov_b32 s54, 1')
    e('s_cmp_lg_u32 s55, 0'); e('s_cbranch_scc1 L_fok')
    lab('L_f3')
    if opts.get('ssleep'): e(f's_sleep {opts["ssleep"]}')
    e('s_add_u32 s46, s46, 1'); e('s_and_b32 s44, s46, 0xff'); e('s_cbranch_scc1 L_fpoll')
    e('buffer_wbl2 sc1'); e('buffer_inv sc1'); e('s_waitcnt vmcnt(0)')
    e(f's_cmp_le_u32 s46, {SPIN_MAX}'); e('s_cbranch_scc1 L_fpoll')
    lab('L_fok')
    e('v_mul_f32 v84, v84, v96')
    rnd(84)
    e('v_add_f32 v84, v84, v10'); e('v_cvt_pk_bf16_f32 v96, v84, v84')
    if opts.get('hold'):
        if opts.get('holdmul'):
            e('s_memrealtime s[94:95]'); e('s_waitcnt lgkmcnt(0)'); e('s_sub_u32 s93, s94, s62'); e(f's_mul_i32 s93, s93, {opts["holdmul"]}')
        else:
            e(f's_mov_b32 s93, {opts["hold"]}')
        lab('L_hold')
        e('s_memrealtime s[94:95]'); e('s_waitcnt lgkmcnt(0)'); e('s_sub_u32 s94, s94, s62'); e('s_cmp_lt_u32 s94, s93'); e('s_cbranch_scc1 L_hold')
    e('s_mov_b32 exec_lo, 0x00030003'); e('s_mov_b32 exec_hi, 0x00030003')
    e(f'buffer_store_short v96, v4, s[40:43], 0 offen{opts.get("outfl", "")}')
    e('s_cmp_lg_u32 s53, 0'); e('s_cbranch_scc1 L_exit')
    e('s_mov_b64 exec, 1')
    e('v_mov_b32 v4, 0'); e('v_mov_b32 v5, s60')
    e(f'buffer_store_dword v5, v4, s[36:39], 0 offen{opts.get("epfl", "")}')
    endwave()

    lab('L_exit')
    if diag:
        lab('L_fin')
        e('s_mov_b64 exec, -1')
        stamp(14)
        e('s_waitcnt vmcnt(0)')
        stamp(15)
        e('s_waitcnt lgkmcnt(0)')
        e('s_lshl_b32 s44, s2, 4'); e('s_add_u32 s44, s44, s61'); e('s_lshl_b32 s44, s44, 6'); e(f's_add_u32 s44, s44, {STAMP_OFF}')
        srd(40, 30, 31, 's44', 64)
        for i in range(16): e(f'v_mov_b32 v{64+i}, s{64+2*i}')
        e('v_mov_b32 v4, 0'); e('s_mov_b64 exec, 1')
        for i in range(4): e(f'buffer_store_dwordx4 v[{64+4*i}:{67+4*i}], v4, s[40:43], 0 offen offset:{16*i}')
    lab('L_end')
    e('s_endpgm')
    lab('L_codeend')
    L.append(f'.fill (12288-(L_codeend-{KNAME}))/4, 4, 0xbf810000')
    L.append('.section .rodata,"a"'); L.append('.p2align 6'); L.append(f'.amdhsa_kernel {KNAME}')
    L.append('  .amdhsa_next_free_vgpr 128'); L.append('  .amdhsa_next_free_sgpr 96'); L.append('  .amdhsa_accum_offset 128')
    L.append('  .amdhsa_group_segment_fixed_size 0'); L.append('  .amdhsa_kernarg_size 96'); L.append('  .amdhsa_user_sgpr_count 2')
    L.append('  .amdhsa_user_sgpr_kernarg_segment_ptr 1'); L.append('  .amdhsa_system_sgpr_workgroup_id_x 1')
    L.append('  .amdhsa_float_denorm_mode_32 3')
    L.append('.end_amdhsa_kernel')
    return '\n'.join(hazard_pass(L)) + '\n'

if __name__ == '__main__':
    import json
    open('k_diag.s', 'w').write(gen(diag=True))
    open('k_prod.s', 'w').write(gen(diag=False))
    for a in sys.argv[1:]:
        name, o = a.split('=', 1)
        open(f'exp/{name}.s', 'w').write(gen(diag=('diag' in name), opts=json.loads(o)))
```

```python
import sys, struct
from asmlib import hazard_pass

KNAME = "recurrent_scan__sliding_block_cached__glu_gated_reglu__decode_kernel"
def f2u(x): return struct.unpack('<I', struct.pack('<f', x))[0]

BASE = 131072
O_CP, O_CO, O_CK, O_CG, O_CQ, O_CH, O_CY, O_CX = 0, 4, 8, 12, 16, 20, 24, 28
O_FAR, O_CGF, O_CV, O_CYS, O_CW = 32, 36, 40, 44, 48
STG = 49152
O_NZ = 1024
O_KD, O_VD, O_PD = 64, 96, 128
O_ZERO = 256
O_QT = 512
O_XB = 1024
O_ML = 3328
O_HS = 3456
O_PT = 3840
O_GP = 7936
O_OP = 20480
LDS_TOTAL = BASE + 28672
OB = 0x1000; MLB = 0x41000; FB = 0x51000; HB = 0xD0000; RS = 3200; EPB = 0x198000; WS_SPAN = 0x200000
STAMP_OFF = 512 << 20
TAGM = 0x3ff
LOG2E = f2u(1.4426950408889634)
SCALE = f2u(128 ** -0.5)
SPIN_MAX = 200000

HEADER = """; Kernarg layout for this problem (96 bytes, ptrs only, base s[0:1]):
; Hand-offs between workgroups go through d_ws as 16-byte granules whose dwords carry a per-launch tag.
"""

def gen(diag=False, opts=None):
    opts = dict(dict(p3all=8, lanes=4, dk=5, dv=6, dvt=16, hov=4, ksig=4, ckn=5, ho=1, wdpre=6, do=4, pto=0, codepf=0, fcw=1, dwst=1, po=1, py=1, ps=1, osleep=1, ssleep=1, slate=1), **(opts or {}))
    NTK = ' nt' if opts.get('ntk', True) else ''
    NTV = ' nt' if opts.get('ntv', True) else ''
    NT = ' nt' if opts.get('ntw', True) else ''
    P1 = ' sc1' if opts.get('p1sc1') else ''
    FS = opts.get('fs', 4736)
    BAR = opts.get('bar', 1)
    PAT = opts.get('pat', 'r'); KVN = 131072 if PAT == 'i' else 0x100000
    LN = opts.get('lanes', 8); LB = {8: 3, 4: 2, 2: 1, 1: 0}[LN]
    SM = opts.get('smooth', 0)
    ONE = opts.get('onebar', 0)
    L = []
    def e(s): L.append('    ' + s)
    def lab(s): L.append(s + ':')
    stamp_idx = {}
    def stamp(i):
        if diag: e(f's_memrealtime s[{64+2*i}:{65+2*i}]')
    def srd(d, lo, hi, off, nrec):
        if off is None:
            e(f's_mov_b32 s{d}, s{lo}'); e(f's_mov_b32 s{d+1}, s{hi}')
        else:
            e(f's_add_u32 s{d}, s{lo}, {off}'); e(f's_addc_u32 s{d+1}, s{hi}, 0')
        e(f's_mov_b32 s{d+2}, {nrec}'); e(f's_mov_b32 s{d+3}, 0x20000')
    DPP = lambda m: f'{m} row_mask:0xf bank_mask:0xf'
    X1 = DPP('quad_perm:[1,0,3,2]'); X2 = DPP('quad_perm:[2,3,0,1]'); HM = DPP('row_half_mirror'); RM = DPP('row_mirror')
    def masks(d):
        t, h = d + 4, d + 5
        e(f'v_and_b32 v{t}, 1, v2'); e(f'v_lshlrev_b32 v{t}, 4, v{t}')
        e(f'v_mov_b32 v{h}, 0xffff'); e(f'v_lshlrev_b32 v{h}, v{t}, v{h}')
        e(f'v_bfe_u32 v{t}, v2, 1, 2')
        for j in range(4):
            e(f'v_cmp_eq_u32 vcc, {j}, v{t}')
            e(f'v_cndmask_b32 v{d+j}, 0, v{h}, vcc')
    def tag(d, n=4, tv=None):
        for k in range(n): e(f'v_bfi_b32 v{d+k}, s45, v{tv}, v{d+k}')
    def finish_tag_setup(tv):
        e(f's_movk_i32 s45, {TAGM}')
        e('s_add_u32 s60, s7, 1'); e('s_xor_b32 s58, s58, s60'); e('s_and_b32 s58, s58, s45'); e('s_cselect_b32 s58, 0, 1'); e('s_add_u32 s60, s60, s58')
        e('s_and_b32 s7, s60, s45')
        e(f'v_mov_b32 v{tv}, s7')
    def epoch_load():
        e('s_load_dword s7, s[30:31], 0'); e(f's_mov_b32 s44, {EPB}'); e('s_load_dword s58, s[30:31], s44')
    def untag(regs, acc, dst=None):
        dst = dst or regs
        for r, d in zip(regs, dst): e(f'v_xor_b32 v{d}, s7, v{r}')
        e(f'v_or3_b32 v{acc}, v{dst[0]}, v{dst[1]}, v{dst[2]}')
        rest = dst[3:]
        while rest:
            if len(rest) >= 2:
                e(f'v_or3_b32 v{acc}, v{acc}, v{rest[0]}, v{rest[1]}'); rest = rest[2:]
            else:
                e(f'v_or_b32 v{acc}, v{acc}, v{rest[0]}'); rest = rest[1:]
    def poll_tail(acc, lpoll, lok, sleep=2):
        e(f'v_and_b32 v{acc}, s45, v{acc}')
        e(f'v_cmp_ne_u32 vcc, 0, v{acc}')
        e(f's_cbranch_vccz {lok}')
        if sleep: e(f's_sleep {sleep}')
        e('s_add_u32 s46, s46, 1'); e(f's_and_b32 s44, s46, {opts.get("flushmask", 0xff)}'); e(f's_cbranch_scc1 {lpoll}')
        e('buffer_wbl2 sc1'); e('buffer_inv sc1'); e('s_waitcnt vmcnt(0)')
        e(f's_cmp_le_u32 s46, {SPIN_MAX}'); e(f's_cbranch_scc1 {lpoll}')
    DK = opts.get('dk', 3); DV = opts.get('dv', 3); DG = opts.get('dg', 0); DW = opts.get('dw', 0); DO = opts.get('do', 3)
    def thr(i, d):
        if isinstance(d, list): d = d[i % len(d)]
        if d and i >= d: e(f's_waitcnt vmcnt({d-1})')
    def spin(name, off, target, areg=15, treg=16, sleep=1):
        lab(name)
        e(f'ds_read_b32 v{treg}, v{areg} offset:{off}')
        e('s_waitcnt lgkmcnt(0)')
        e(f'v_readfirstlane_b32 s44, v{treg}')
        e(f's_cmp_ge_u32 s44, {target}'); e(f's_cbranch_scc1 {name}_ok')
        e(f's_sleep {sleep}'); e(f's_branch {name}')
        lab(name + '_ok')
    def signal(off, areg=15, one=18, rtn=None):
        e('s_mov_b64 exec, 1')
        if rtn is None: e(f'ds_add_u32 v{areg}, v{one} offset:{off}')
        else: e(f'ds_add_rtn_u32 v{rtn}, v{areg}, v{one} offset:{off}')
        e('s_mov_b64 exec, -1')
    def ppoll(name, D, base, dst, addr, soff, pre=None, post=None, sleep=0):
        def ld(k):
            if pre: e(pre)
            e(f'buffer_load_dwordx4 v[{base+4*k}:{base+4*k+3}], v{addr}, s[36:39], {soff} offen sc1')
            if post: e(post)
        acc = dst + 4
        lab(name)
        for k in range(D - 1): ld(k)
        lab(name + '_l')
        for k in range(D):
            ld((k + D - 1) % D)
            e(f's_waitcnt vmcnt({D-1})')
            untag([base + 4 * k + i for i in range(4)], acc, dst=[dst + i for i in range(4)])
            e(f'v_and_b32 v{acc}, s45, v{acc}')
            e(f'v_cmp_ne_u32 vcc, 0, v{acc}')
            e(f's_cbranch_vccz {name}_ok')
            if sleep: e(f's_sleep {sleep}')
        e('s_add_u32 s46, s46, 1'); e(f's_and_b32 s44, s46, {max(1, 256 // D) * 2 - 1 if False else 63}'); e(f's_cbranch_scc1 {name}_l')
        e('s_waitcnt vmcnt(0)')
        e('buffer_wbl2 sc1'); e('buffer_inv sc1'); e('s_waitcnt vmcnt(0)')
        e(f's_cmp_le_u32 s46, {SPIN_MAX}'); e(f's_cbranch_scc1 {name}')
        lab(name + '_ok')
    def tile_addr(rows=None):
        for m in range(3):
            e(f'v_add_u32 v8, {64*m}, v0'); e('v_mul_u32_u24 v9, 2731, v8'); e('v_lshrrev_b32 v9, 16, v9')
            if rows is not None: e(f'v_lshl_add_u32 v{rows+m}, v9, 2, v{rows+3}')
            e('v_and_b32 v10, 2, v9'); e('v_lshlrev_b32 v10, 4, v10')
            e(f'v_mul_u32_u24 v9, {1152-384}, v9'); e(f'v_lshl_add_u32 v{4+m}, v8, 4, v9')
            e(f'v_xor_b32 v{4+m}, v{4+m}, v10'); e(f'v_xor_b32 v{49+m}, 64, v{4+m}')
        e('v_bfe_u32 v10, v0, 2, 2'); e('v_lshl_add_u32 v10, v3, 3, v10'); e('v_mul_u32_u24 v10, 384, v10'); e('v_and_b32 v11, 3, v0'); e('v_lshl_add_u32 v10, v11, 3, v10')
        e('s_lshl_b32 s44, s3, 6'); e('v_add_u32 v10, s44, v10')
        e('v_and_b32 v11, 24, v0'); e('v_lshlrev_b32 v11, 2, v11'); e('v_xor_b32 v10, v10, v11'); e('v_xor_b32 v52, 32, v10')
        e('v_lshlrev_b32 v11, 2, v0')
    def drain(d, off, areg):
        e('s_mov_b64 exec, 1')
        for k in range(d - 1, -1, -1):
            e(f's_waitcnt vmcnt({k})'); e(f'ds_add_u32 v{areg}, v18 offset:{off}')
        e('s_mov_b64 exec, -1')
    def credit(name, need, areg):
        e(f's_cmp_ge_u32 s62, {need}'); e(f's_cbranch_scc1 {name}_ok')
        lab(name)
        e(f'ds_read_b32 v16, v{areg}')
        e('s_waitcnt lgkmcnt(0)')
        e('v_readfirstlane_b32 s62, v16')
        e(f's_cmp_lt_u32 s62, {need}'); e(f's_cbranch_scc1 {name}')
        lab(name + '_ok')
    def red32(r):
        e(f'v_permlane16_swap_b32 v{r}, v{r+2}'); e(f'v_permlane16_swap_b32 v{r+1}, v{r+3}')
        e(f'v_add_f32 v{r}, v{r}, v{r+2}'); e(f'v_add_f32 v{r+1}, v{r+1}, v{r+3}')
        e(f'v_permlane32_swap_b32 v{r}, v{r+1}')
        e(f'v_add_f32 v{r}, v{r}, v{r+1}')
        for m in ('row_ror:8', 'row_ror:4', 'row_ror:2'):
            e(f'v_add_f32_dpp v{r}, v{r}, v{r} {DPP(m)}')
    def rnd(r):
        e(f'v_cvt_pk_bf16_f32 v{r}, v{r}, v{r}'); e(f'v_and_b32 v{r}, s50, v{r}')
    def endwave():
        e('s_branch L_fin' if diag else 's_endpgm')


    L.append(HEADER.rstrip())
    L.append(f"; @launch grid=(256,1,1) block=(1024,1,1) lds={LDS_TOTAL}")
    L.append('.amdgcn_target "amdgcn-amd-amdhsa--gfx950"')
    L.append('.text'); L.append(f'.globl {KNAME}'); L.append('.p2align 8'); L.append(f'.type {KNAME},@function'); lab(KNAME)
    if opts.get('hold') and opts.get('holdpos') == 0: e('s_memrealtime s[62:63]'); e('s_waitcnt lgkmcnt(0)')
    KA = opts.get('ka', 0)
    if KA: e('s_load_dwordx16 s[8:23], s[0:1], 0')
    e('s_cmp_ge_u32 s2, 256'); e('s_cbranch_scc1 L_end')
    if not KA:
        e('s_load_dwordx16 s[8:23], s[0:1], 0')
        e('s_load_dwordx8 s[24:31], s[0:1], 64')
    if diag:
        for i in range(64, 96): e(f's_mov_b32 s{i}, 0')
    stamp(0)
    if opts.get('hold') and opts.get('holdpos') == 2: e('s_waitcnt lgkmcnt(0)'); e('s_memrealtime s[62:63]')
    e('v_lshrrev_b32 v1, 6, v0'); e('v_and_b32 v0, 63, v0')
    e('s_and_b32 s4, s2, 7'); e('v_readfirstlane_b32 s3, v1')
    if opts.get('xx'): e(f's_xor_b32 s4, s4, {opts["xx"]}')
    e('s_lshl_b32 s4, s4, 1'); e('s_lshr_b32 s5, s2, 7'); e('s_add_u32 s4, s4, s5')
    e('s_bfe_u32 s5, s2, 0x40003')
    e('v_and_b32 v2, 15, v0'); e('v_lshrrev_b32 v3, 4, v0')
    e('s_mul_i32 s53, s4, 9'); e('s_add_u32 s53, s53, s5')
    e('s_mul_i32 s51, s53, 171'); e('s_lshr_b32 s51, s51, 10')
    e('s_mul_i32 s52, s51, 6'); e('s_sub_u32 s52, s53, s52')
    if diag: e('s_mov_b32 s61, s3')
    for i in range(opts.get('padn', 0)): e('s_mov_b32 s46, 0x12345678')
    for i in range(opts.get('jumps', 0)):
        e(f's_branch L_j{i}'); L.append('.fill 255, 4, 0xbf810000'); lab(f'L_j{i}')
    e('s_cmp_ge_u32 s3, 8'); e('s_cbranch_scc1 L_A')
    def layernorm():
        e(f'v_add_u32 v113, {BASE+O_XB}, v113')
        e('s_mov_b32 s50, 0xffff0000'); e(f's_mov_b32 s48, {f2u(1.0/576)}'); e(f's_mov_b32 s49, {f2u(1e-5)}')
        e('s_waitcnt vmcnt(5)')
        X = list(range(22, 40))
        for k in range(9):
            e(f'v_lshlrev_b32 v{X[2*k]}, 16, v{104+k}'); e(f'v_and_b32 v{X[2*k+1]}, s50, v{104+k}')
        def half_allreduce(a, t):
            for m in (X1, X2, HM, RM): e(f'v_add_f32_dpp v{a}, v{a}, v{a} {m}')
            e(f'v_mov_b32 v{t}, v{a}'); e(f'v_permlane16_swap_b32 v{a}, v{t}'); e(f'v_add_f32 v{a}, v{a}, v{t}')
        e(f'v_pk_add_f32 v[40:41], v[22:23], v[24:25]')
        for k in range(4, 18, 2): e(f'v_pk_add_f32 v[40:41], v[40:41], v[{X[k]}:{X[k+1]}]')
        e('v_add_f32 v40, v40, v41')
        half_allreduce(40, 41)
        e('v_mul_f32 v40, s48, v40')
        e('v_mov_b32 v42, 0'); e('v_mov_b32 v43, 0')
        for k in range(0, 18, 2):
            e(f'v_sub_f32 v44, v{X[k]}, v40'); e(f'v_sub_f32 v45, v{X[k+1]}, v40')
            e('v_fmac_f32 v42, v44, v44'); e('v_fmac_f32 v43, v45, v45')
        e('v_add_f32 v42, v42, v43')
        half_allreduce(42, 43)
        e('v_mul_f32 v42, s48, v42')
        e('v_cvt_pk_bf16_f32 v40, v40, v42')
        e('v_and_b32 v42, s50, v40'); e('v_lshlrev_b32 v40, 16, v40')
        e('v_add_f32 v42, s49, v42'); e('v_cvt_pk_bf16_f32 v42, v42, v42'); e('v_and_b32 v42, s50, v42')
        e('v_sqrt_f32 v42, v42'); e('v_cvt_pk_bf16_f32 v42, v42, v42'); e('v_and_b32 v42, s50, v42')
        e('v_rcp_f32 v42, v42')
        for k in range(9):
            a, b = X[2*k], X[2*k+1]
            e(f'v_sub_f32 v{a}, v{a}, v40'); e(f'v_sub_f32 v{b}, v{b}, v40')
            e(f'v_cvt_pk_bf16_f32 v{104+k}, v{a}, v{b}')
            e(f'v_lshlrev_b32 v{a}, 16, v{104+k}'); e(f'v_and_b32 v{b}, s50, v{104+k}')
            e(f'v_mul_f32 v{a}, v{a}, v42'); e(f'v_mul_f32 v{b}, v{b}, v42')
            e(f'v_cvt_pk_bf16_f32 v{104+k}, v{a}, v{b}')
        for k in range(0, 8, 2): e(f'ds_write2_b32 v113, v{104+k}, v{105+k} offset0:{k} offset1:{k+1}')
        e('ds_write_b32 v113, v112 offset:32')
        signal(O_CX)
        stamp(11)
    if opts.get('bprio'): e(f's_setprio {opts["bprio"]}')
    e('s_sub_u32 s44, s5, 9'); e('s_mul_i32 s47, s51, 384'); e('s_lshl_b32 s48, s4, 9'); e('s_lshr_b32 s49, s3, 2'); e('s_lshl_b32 s49, s49, 8'); e('s_add_u32 s48, s48, s49')
    e('s_mul_i32 s59, s4, 7'); e('s_add_u32 s59, s59, s44'); e('s_add_u32 s59, s59, 144')
    e('s_movk_i32 s49, 0x2000')
    e('s_cmp_lt_u32 s5, 9')
    e('s_cselect_b32 s44, s52, s44')
    e('s_cselect_b32 s47, s47, s48')
    e('s_cselect_b32 s55, 9216, s49')
    e('s_cselect_b32 s59, s53, s59')
    e('s_and_b32 s54, s3, 3'); e('s_mul_i32 s58, s54, 144'); e('s_add_u32 s58, s58, 5')
    e('s_lshl_b32 s44, s44, 2'); e('s_add_u32 s54, s54, s44'); e('s_mul_i32 s54, s54, 24')
    e('s_cmp_eq_u32 s5, 15'); e('s_cselect_b32 s54, s58, s54')
    e('s_mul_i32 s44, s54, s55'); e('s_cselect_b32 s55, 0xc000, s55'); e('s_add_u32 s44, s44, s47')
    e('s_mul_i32 s47, s55, 6'); e('v_mul_u32_u24 v10, s47, v3'); e('v_lshl_add_u32 v10, v2, 4, v10')
    e('v_lshrrev_b32 v11, 3, v2'); e(f'v_mul_u32_u24 v11, {9216-128}, v11'); e('v_add_u32 v11, v10, v11')
    e('s_mul_i32 s34, s55, 23'); e('s_add_u32 s34, s34, 256'); e('s_mov_b32 s35, 0x20000')
    e('s_waitcnt lgkmcnt(0)')
    e('s_cmp_lt_u32 s3, 4'); e('s_cselect_b32 s56, s20, s22'); e('s_cselect_b32 s57, s21, s23')
    e('s_cmp_lt_u32 s5, 9'); e('s_cselect_b32 s56, s56, s14'); e('s_cselect_b32 s57, s57, s15')
    e('s_add_u32 s32, s56, s44'); e('s_addc_u32 s33, s57, 0')
    e('s_cmp_lg_u32 s3, 0'); e('s_cbranch_scc1 L_B_nx')
    srd(40, 8, 9, None, 2304)
    e('v_lshrrev_b32 v22, 5, v0'); e('v_and_b32 v23, 31, v0')
    e('v_mul_u32_u24 v113, 1152, v22'); e('v_mad_u32_u24 v113, v23, 36, v113')
    e('buffer_load_dwordx4 v[104:107], v113, s[40:43], 0 offen')
    e('buffer_load_dwordx4 v[108:111], v113, s[40:43], 0 offen offset:16')
    e('buffer_load_dword v112, v113, s[40:43], 0 offen offset:32')
    lab('L_B_nx')
    D1 = opts.get('d1', 3)
    def d0load(t, so): e(f'buffer_load_dwordx4 v[{64+4*t}:{67+4*t}], v10, s[32:35], {so} offen{NT}')
    def d1load(p, so): e(f'buffer_load_dwordx4 v[{88+4*p}:{91+4*p}], v11, s[32:35], {so} offen offset:256{NT}')
    d0load(0, '0'); d0load(1, 's55')
    if KA: e('s_load_dwordx8 s[24:31], s[0:1], 64')
    e('s_lshl_b32 s44, s55, 1')
    e('s_cmp_ge_u32 s5, 9'); e('s_cbranch_scc1 L_B_dq')
    e('s_add_u32 s34, s34, 128')
    seq = [('1', 0, 0), ('0', 2, 2), ('0', 3, 3), ('1', 1, 2), ('0', 4, 4), ('0', 5, 5), ('1', 2, 4)]
    for n, (kind, idx, row) in enumerate(seq):
        i = n + 2
        if i == D1: e('s_barrier')
        thr(i, D1)
        if row: e(f's_mov_b32 s44, {row*9216}')
        so = 's44' if row else '0'
        (d0load if kind == '0' else d1load)(idx, so)
    e('s_branch L_B_isd')
    lab('L_B_dq')
    for t in range(2, 5):
        if t == D1: e('s_barrier')
        thr(t, D1)
        d0load(t, 's44')
        e('s_add_u32 s44, s44, s55')
    if D1 >= 5: e('s_barrier')
    e('s_cmp_lg_u32 s5, 15'); e('s_cbranch_scc1 L_B_isd')
    thr(5, D1)
    d0load(5, 's44')
    lab('L_B_isd')
    if opts.get('bprio') and opts.get('bprio0', 1): e('s_setprio 0')
    e(f'v_mov_b32 v15, {BASE}'); e('v_mov_b32 v18, 1')
    e(f's_and_b32 s44, s3, {LN-1}'); e('s_lshl_b32 s44, s44, 2'); e('v_add_u32 v9, s44, v15')
    if SM: drain(D1, O_PD, 9)
    else:
        if 'ho' in opts: e(f's_waitcnt vmcnt({opts["ho"]})')
        signal(O_PD, areg=9)
    e('s_cmp_lg_u32 s3, 0'); e('s_cbranch_scc1 L_B_noln')
    layernorm()
    lab('L_B_noln')
    if KA: e('s_waitcnt lgkmcnt(0)')
    stamp(1)
    epoch_load()
    masks(4)
    e('s_cmp_eq_u32 s5, 15'); e('s_cselect_b32 s44, 72, 12')
    e('v_lshrrev_b32 v9, 3, v2'); e('v_mul_u32_u24 v9, 1152, v9'); e('v_mad_u32_u24 v9, v3, s44, v9')
    e('s_lshl_b32 s44, s54, 1'); e('s_and_b32 s44, s44, -4'); e(f's_add_u32 s44, s44, {BASE+O_XB}'); e('v_add_u32 v9, s44, v9')
    e('s_mov_b32 s48, 0x01000100'); e('s_mov_b32 s49, 0x03020302')
    e('v_lshlrev_b32 v8, 4, v0')
    e('v_lshlrev_b32 v12, 4, v2'); e('v_lshl_add_u32 v12, v3, 7, v12')
    e('s_mul_i32 s44, s3, 1536'); e(f's_add_u32 s44, s44, {BASE+O_GP}'); e('v_add_u32 v13, s44, v8'); e('v_add_u32 v14, s44, v12')
    for k in range(4): e(f'v_mov_b32 v{56+k}, 0')
    spin('L_x_wait', O_CX, 1, sleep=2)
    e('s_cmp_eq_u32 s5, 15'); e('s_cbranch_scc1 L_B_xs')
    for p in range(3): e(f'ds_read2_b32 v[{24+2*p}:{25+2*p}], v9 offset0:{p} offset1:{p}')
    e('s_branch L_B_xd')
    lab('L_B_xs')
    for p in range(3): e(f'ds_read2_b32 v[{24+2*p}:{25+2*p}], v9 offset0:{6*p} offset1:{6*p+3}')
    e('s_mov_b32 s48, s49')
    lab('L_B_xd')
    e('s_waitcnt lgkmcnt(0)')
    stamp(2)
    for t in range(6):
        e(f'v_perm_b32 v31, v{24+t}, v{24+t}, s{48+(t&1)}')
        for j in range(4): e(f'v_and_b32 v{32+4*t+j}, v31, v{4+j}')
    e('s_waitcnt vmcnt(0)')
    e('s_cmp_eq_u32 s5, 15'); e('s_cbranch_scc1 L_B_m5')
    e('s_cmp_ge_u32 s5, 9'); e('s_cbranch_scc1 L_B_m0')
    for t in range(6):
        d = 60 if t % 2 == 0 else 100
        c = '0' if t < 2 else f'v[{d}:{d+3}]'
        e(f'v_mfma_f32_16x16x32_bf16 v[{d}:{d+3}], v[{32+4*t}:{35+4*t}], v[{88+4*(t>>1)}:{91+4*(t>>1)}], {c}')
    for k in range(4): e(f'v_add_f32_dpp v{60+k}, v{100+k}, v{60+k} {DPP("row_ror:8")}')
    lab('L_B_m5')
    e('v_mfma_f32_16x16x32_bf16 v[56:59], v[52:55], v[84:87], v[56:59]')
    lab('L_B_m0')
    for t in range(5):
        e(f'v_mfma_f32_16x16x32_bf16 v[56:59], v[{32+4*t}:{35+4*t}], v[{64+4*t}:{67+4*t}], v[56:59]')
    e('ds_write_b128 v13, v[56:59]')
    e('s_mov_b32 exec_lo, 0x00ff00ff'); e('s_mov_b32 exec_hi, 0x00ff00ff')
    e('ds_write_b128 v14, v[60:63] offset:1024')
    signal(O_CG)
    stamp(3)
    srd(36, 30, 31, None, WS_SPAN)
    finish_tag_setup(21)
    e('s_mov_b32 s46, 0')
    if opts.get('nopub1'): e('s_branch L_B_q')
    e('s_cmp_lg_u32 s3, 7'); e('s_cbranch_scc1 L_B_q')
    e(f'v_add_u32 v13, {BASE+O_GP}, v8'); e(f'v_add_u32 v14, {BASE+O_GP}, v12')
    e(f's_mul_i32 s56, s59, {RS}'); e(f's_add_u32 s56, s56, {HB}')
    spin('L_gu_wait', O_CG, 8)
    for m in range(2):
        for qd in range(4):
            r = 64 + 32 * m + 8 * qd
            e(f'ds_read_b128 v[{r}:{r+3}], v13 offset:{(4*m+qd)*1536}')
            e(f'ds_read_b128 v[{r+4}:{r+7}], v14 offset:{(4*m+qd)*1536+1024}')
        e('s_waitcnt lgkmcnt(0)')
        r0 = 64 + 32 * m
        for qd in range(1, 4):
            for k in range(0, 8, 2): e(f'v_pk_add_f32 v[{r0+k}:{r0+k+1}], v[{r0+k}:{r0+k+1}], v[{r0+8*qd+k}:{r0+8*qd+k+1}]')
        for k in range(8): e(f'v_add_u32 v{r0+k}, 0x200, v{r0+k}')
        tag(r0, 8, 21)
    e('s_cmp_lg_u32 s5, 15'); e('s_cbranch_scc1 L_B_pl')
    for m in range(2): e(f'buffer_store_dwordx4 v[{64+32*m}:{67+32*m}], v8, s[36:39], s56 offen offset:{1536*m} sc1')
    e('s_branch L_B_x1')
    lab('L_B_pl')
    for m in range(2): e(f'buffer_store_dwordx4 v[{64+32*m}:{67+32*m}], v8, s[36:39], s56 offen offset:{1536*m}{P1}')
    e('s_cmp_ge_u32 s5, 9'); e('s_cbranch_scc1 L_B_xcc')
    e('s_mov_b32 exec_lo, 0x00ff00ff'); e('s_mov_b32 exec_hi, 0x00ff00ff')
    for m in range(2):
        e(f'buffer_store_dwordx4 v[{68+32*m}:{71+32*m}], v12, s[36:39], s56 offen offset:{1536*m+1024}{P1}')
    lab('L_B_xcc')
    e('s_getreg_b32 s44, hwreg(HW_REG_XCC_ID, 0, 4)'); e('s_lshl_b32 s44, s44, 16'); e('s_or_b32 s44, s44, s7')
    e('s_mov_b64 exec, 0xff')
    for k in range(4): e(f'v_mov_b32 v{72+k}, s44')
    e(f'buffer_store_dwordx4 v[72:75], v8, s[36:39], s56 offen offset:3072{P1}')
    e('s_mov_b64 exec, -1')
    e('s_branch L_B_x1')
    lab('L_B_q')
    e('s_cmp_lg_u32 s3, 0'); e('s_cbranch_scc1 L_B_x1')
    e('v_lshrrev_b32 v10, 5, v0'); e('v_and_b32 v11, 31, v0'); e('v_mul_u32_u24 v9, 1536, v10'); e('v_lshl_add_u32 v9, v11, 4, v9')
    e(f's_mul_i32 s54, s4, {7*RS}'); e('s_lshr_b32 s47, s5, 3'); e('s_lshl_b32 s47, s47, 9'); e('s_add_u32 s54, s54, s47'); e(f's_add_u32 s54, s54, {HB+144*RS}')
    e(f's_add_u32 s55, s54, {2*RS}'); e(f's_add_u32 s56, s54, {4*RS}'); e(f's_add_u32 s57, s54, {6*RS}'); e('s_sub_u32 s58, s54, s47')
    e('v_min_u32 v12, 5, v0'); e(f'v_mul_u32_u24 v12, {RS}, v12')
    spin('L_k_wait', O_CK, opts.get('ckn', 1), sleep=4)
    stamp(9)
    if opts.get('nopoll1'): e('s_branch L_qok')
    lab('L_qpoll')
    for p in range(7):
        e(f'buffer_load_dwordx4 v[{24+4*p}:{27+4*p}], v9, s[36:39], s{54+p//2} offen offset:{(p&1)*RS} sc1')
    e('buffer_load_dwordx4 v[52:55], v12, s[36:39], s58 offen offset:3072 sc1')
    e('s_waitcnt vmcnt(0)')
    untag(list(range(24, 56)), 22)
    poll_tail(22, 'L_qpoll', 'L_qok', sleep=8)
    lab('L_qok')
    for p in range(1, 7):
        for k in (0, 2): e(f'v_pk_add_f32 v[{24+k}:{25+k}], v[{24+k}:{25+k}], v[{24+4*p+k}:{25+4*p+k}]')
    e('v_cvt_pk_bf16_f32 v24, v24, v25'); e('v_cvt_pk_bf16_f32 v25, v26, v27')
    e('v_lshlrev_b32 v9, 8, v10'); e('v_lshl_add_u32 v9, v2, 4, v9'); e('v_and_b32 v10, 1, v3'); e('v_lshl_add_u32 v9, v10, 3, v9'); e(f'v_add_u32 v9, {BASE}, v9')
    e(f'ds_write_b64 v9, v[24:25] offset:{O_QT}')
    e('s_getreg_b32 s44, hwreg(HW_REG_XCC_ID, 0, 4)'); e('s_lshl_b32 s44, s44, 16')
    e('v_cmp_ne_u32 vcc, s44, v52')
    e('s_branch L_near' if opts.get('nopoll1') else 's_cbranch_vccz L_near')
    signal(O_FAR)
    lab('L_near')
    signal(O_CQ)
    lab('L_B_x1')
    def kvoff():
        e('s_lshr_b32 s6, s5, 3'); e('s_lshl_b32 s6, s6, 4'); e('s_add_u32 s6, s6, s4'); e('s_lshl_b32 s6, s6, 23')
        if PAT == 'i': e('s_and_b32 s44, s5, 7'); e('s_lshl_b32 s44, s44, 17'); e('s_add_u32 s6, s6, s44')
        e('s_add_u32 s6, s6, 0x700000')
    kvoff()
    srd(32, 12, 13, 's6', KVN)
    def kvstart(d):
        if LN < 8:
            e(f's_and_b32 s{d}, s5, 7'); e(f's_lshl_b32 s{d}, s{d}, 15')
            e(f's_lshr_b32 s44, s3, {LB}'); e(f's_lshl_b32 s44, s44, {4+LB}'); e('s_lshr_b32 s44, s44, 5'); e('s_lshl_b32 s44, s44, 18'); e(f's_add_u32 s{d}, s{d}, s44')
            e(f's_lshr_b32 s44, s3, {LB}'); e(f's_lshl_b32 s44, s44, {4+LB}'); e('s_add_u32 s49, s5, s4'); e('s_lshl_b32 s49, s49, 3'); e('s_add_u32 s44, s44, s49')
            e(f's_and_b32 s49, s3, {LN-1}'); e('s_add_u32 s44, s44, s49'); e('s_and_b32 s44, s44, 31'); e('s_lshl_b32 s44, s44, 10'); e(f's_add_u32 s{d}, s{d}, s44')
            return
        if PAT == 'i': e(f's_lshl_b32 s{d}, s5, 13')
        elif PAT == 'm': e(f's_and_b32 s{d}, s5, 7'); e(f's_lshl_b32 s{d}, s{d}, 13')
        elif PAT == 'j': e(f's_and_b32 s{d}, s5, 7'); e(f's_lshl_b32 s{d}, s{d}, 15')
        elif PAT == 'r':
            e(f's_and_b32 s{d}, s5, 7'); e(f's_lshl_b32 s{d}, s{d}, 15'); e('s_add_u32 s44, s5, s4'); e('s_and_b32 s44, s44, 3'); e('s_lshl_b32 s44, s44, 13'); e(f's_add_u32 s{d}, s{d}, s44')
        elif PAT == 'r2':
            e(f's_and_b32 s{d}, s5, 7'); e(f's_lshl_b32 s{d}, s{d}, 15'); e('s_lshr_b32 s44, s5, 2'); e('s_and_b32 s44, s44, 2'); e('s_add_u32 s44, s44, s4'); e('s_and_b32 s44, s44, 3'); e('s_lshl_b32 s44, s44, 13'); e(f's_add_u32 s{d}, s{d}, s44')
        elif PAT in ('h', 'h2', 'h3'):
            e(f's_and_b32 s{d}, s5, 7'); e(f's_lshl_b32 s{d}, s{d}, 12')
            if PAT == 'h2': e('s_and_b32 s44, s4, 3'); e('s_lshl_b32 s44, s44, 10'); e(f's_add_u32 s{d}, s{d}, s44')
            if PAT == 'h3': e('s_add_u32 s44, s4, s3'); e('s_and_b32 s44, s44, 3'); e('s_lshl_b32 s44, s44, 10'); e(f's_add_u32 s{d}, s{d}, s44')
            e('s_lshl_b32 s44, s3, 15'); e(f's_add_u32 s{d}, s{d}, s44')
            return
        elif PAT == 'p':
            e(f's_and_b32 s{d}, s5, 7'); e(f's_lshl_b32 s{d}, s{d}, 13'); e('s_lshr_b32 s44, s3, 1'); e('s_lshl_b32 s44, s44, 16'); e(f's_add_u32 s{d}, s{d}, s44')
            e('s_and_b32 s44, s3, 1'); e('s_lshl_b32 s44, s44, 10'); e(f's_add_u32 s{d}, s{d}, s44')
            return
        e('s_lshl_b32 s44, s3, 10'); e(f's_add_u32 s{d}, s{d}, s44')
    def kvnext(d, n):
        if LN < 8:
            e(f's_add_u32 s44, s{d}, {LN*1024}'); e('s_and_b32 s44, s44, 0x7c00'); e(f's_andn2_b32 s{d}, s{d}, 0x7c00'); e(f's_or_b32 s{d}, s{d}, s44')
            if ((n + 1) * LN) % 32 == 0: e(f's_add_u32 s{d}, s{d}, 0x40000')
        elif PAT == 'i':
            e(f's_add_u32 s{d}, s{d}, 0x2000'); e(f's_and_b32 s{d}, s{d}, 0x1ffff')
        elif PAT == 'm':
            e(f's_add_u32 s{d}, s{d}, 0x2000'); e(f's_and_b32 s{d}, s{d}, 0xffff'); e(f's_or_b32 s{d}, s{d}, {(n+1)*65536}')
        elif PAT == 'j':
            e(f's_add_u32 s{d}, s{d}, {0x2000 if n % 4 < 3 else 0x40000 - 0x6000}')
        elif PAT in ('h', 'h2', 'h3'):
            e(f's_add_u32 s44, s{d}, 0x400'); e('s_and_b32 s44, s44, 0xc00'); e(f's_andn2_b32 s{d}, s{d}, 0xc00'); e(f's_or_b32 s{d}, s{d}, s44')
            if n % 4 == 3:
                e(f's_add_u32 s44, s{d}, 0x1000'); e('s_and_b32 s44, s44, 0x7000'); e(f's_andn2_b32 s{d}, s{d}, 0x7000'); e(f's_or_b32 s{d}, s{d}, s44'); e(f's_add_u32 s{d}, s{d}, 0x40000')
        elif PAT == 'p':
            e(f's_add_u32 s{d}, s{d}, {0x800 if n % 4 < 3 else 0x40000 - 0x1800}')
        elif PAT in ('r', 'r2'):
            e(f's_add_u32 s44, s{d}, 0x2000'); e('s_and_b32 s44, s44, 0x6000'); e(f's_andn2_b32 s{d}, s{d}, 0x6000'); e(f's_or_b32 s{d}, s{d}, s44')
            if n % 4 == 3: e(f's_add_u32 s{d}, s{d}, 0x40000')
    kvstart(47)
    e('s_lshl_b32 s44, s3, 2'); e('v_add_u32 v9, s44, v15')
    stamp(5)
    spin('L_kd_wait', O_VD - 4 * LN, 1, areg=9, sleep=opts.get('pdsleep', 1))
    if SM: e('s_mov_b32 s62, s44'); e(f'v_add_u32 v17, {O_VD - 4 * LN}, v9')
    stamp(4)
    def vloop(dv, dvt):
        for n in range(16):
            if SM and 0 < n < dv: credit(f'L_vc{n}', min(n + 1 - opts.get('sml', 0), DK), 17)
            if n < dvt: thr(n, dv)
            else: thr(n, opts.get('dv2', 0))
            e(f'buffer_load_dwordx4 v[{64+4*n}:{67+4*n}], v8, s[32:35], s47 offen{NTV}')
            if n < 15: kvnext(47, n)
            if n == 15:
                signal(O_CV)
                if SM:
                    e(f's_cmp_ge_u32 s3, {8-LN}'); e('s_cbranch_scc1 L_v_done')
                    drain(dv, O_VD, 9)
                elif LN < 8:
                    e(f's_cmp_ge_u32 s3, {8-LN}'); e('s_cbranch_scc1 L_v_done')
                    e(f's_waitcnt vmcnt({opts.get("hov", opts["ho"])})')
                    signal(O_VD, areg=9)
    if opts.get('dvwo'):
        e('s_sub_u32 s44, s5, 9'); e('s_cmp_ge_u32 s44, 6'); e('s_cbranch_scc1 L_v_mlp')
        vloop(opts['dvwo'], opts.get('dvtwo', 16))
        e('s_branch L_v_done')
        lab('L_v_mlp')
    vloop(DV, opts.get('dvt', 16))
    lab('L_v_done')
    stamp(6)
    e('v_lshrrev_b32 v10, 3, v2'); e('v_lshlrev_b32 v10, 11, v10'); e('v_lshl_add_u32 v10, v3, 6, v10')
    e('s_lshl_b32 s44, s3, 8'); e(f's_add_u32 s44, s44, {BASE+O_PT}'); e('v_add_u32 v10, s44, v10')
    e('v_lshrrev_b32 v12, 5, v0'); e('v_lshlrev_b32 v12, 3, v12'); e(f'v_add_u32 v12, {BASE+O_ML}, v12')
    e('v_and_b32 v11, 7, v0'); e('v_lshl_add_u32 v11, v11, 4, v12')
    e('s_lshl_b32 s44, s3, 4'); e('v_add_u32 v12, s44, v12')
    e(f's_mov_b32 s49, {LOG2E}')
    e(f'v_add_u32 v13, {BASE+O_OP}, v8'); e('s_lshl_b32 s44, s3, 10'); e('v_add_u32 v14, s44, v13')
    e('s_lshl_b32 s56, s4, 4'); e('s_add_u32 s56, s56, s5'); e('s_lshl_b32 s56, s56, 10'); e(f's_add_u32 s56, s56, {OB}')
    spin('L_p_wait', O_CP, 8)
    stamp(7)
    for k in range(4): e(f'ds_read_b128 v[{40+4*k}:{43+4*k}], v10 offset:{16*k}')
    e('ds_read_b32 v16, v11'); e('ds_read_b32 v17, v12'); e(f'ds_read_b32 v19, v15 offset:{O_FAR}')
    e('s_waitcnt lgkmcnt(6)')
    def pv_and(n):
        a = 24 + 4 * (n & 1)
        for j in range(4): e(f'v_and_b32 v{a+j}, v{40+n}, v{4+j}')
    pv_and(0)
    for n in range(16):
        if n == 3:
            e('s_waitcnt lgkmcnt(0)')
            e(f'v_max_f32_dpp v16, v16, v16 {X1}')
        if n == 4: e(f'v_max_f32_dpp v16, v16, v16 {X2}')
        if n == 5: e(f'v_max_f32_dpp v16, v16, v16 {HM}')
        if n == 6: e('v_sub_f32 v17, v17, v16'); e('v_mul_f32 v17, s49, v17')
        if n == 7: e('v_exp_f32 v17, v17')
        if n == 8: e('v_readfirstlane_b32 s57, v19')
        if n < 15: pv_and(n + 1)
        a = 24 + 4 * (n & 1)
        e(f's_waitcnt vmcnt({15-n})')
        c = '0' if n == 0 else 'v[32:35]'
        e(f'v_mfma_f32_16x16x32_bf16 v[32:35], v[{a}:{a+3}], v[{64+4*n}:{67+4*n}], {c}')
    stamp(8)
    e('v_pk_mul_f32 v[32:33], v[32:33], v[16:17] op_sel:[0,1]'); e('v_pk_mul_f32 v[34:35], v[34:35], v[16:17] op_sel:[0,1]')
    e('ds_write_b128 v14, v[32:35]')
    signal(O_CO, rtn=20)
    for w in range(8): e(f'ds_read_b128 v[{64+4*w}:{67+4*w}], v13 offset:{w*1024}')
    e('s_waitcnt lgkmcnt(8)')
    e('v_readfirstlane_b32 s44, v20')
    e('s_cmp_lg_u32 s44, 7'); e('s_cbranch_scc1 L_exit')
    def padd(a, b):
        for k in (0, 2): e(f'v_pk_add_f32 v[{a+k}:{a+k+1}], v[{a+k}:{a+k+1}], v[{b+k}:{b+k+1}]')
    e('s_waitcnt lgkmcnt(6)'); padd(64, 68)
    e('s_waitcnt lgkmcnt(4)'); padd(72, 76); padd(64, 72)
    e('s_waitcnt lgkmcnt(2)'); padd(80, 84); padd(64, 80)
    e('s_waitcnt lgkmcnt(0)'); padd(88, 92); padd(64, 88)
    tag(64, 4, 21)
    if opts.get('omlp'): e('s_cmp_lt_u32 s5, 9'); e('s_cbranch_scc1 L_ofar')
    e('s_cmp_lg_u32 s57, 0'); e('s_cbranch_scc1 L_ofar')
    e(f'buffer_store_dwordx4 v[64:67], v8, s[36:39], s56 offen{opts.get("ofl", "")}')
    lab('L_odone')
    if opts.get('wb') == 1:
        e('s_cmp_lg_u32 s5, 15'); e('s_cbranch_scc1 L_nowb'); e('s_bitcmp1_b32 s4, 0'); e('s_cbranch_scc1 L_nowb')
        e('buffer_wbl2 sc1')
        lab('L_nowb')
    stamp(10)
    if BAR and ONE == 1: pass
    elif BAR:
        e('s_cmp_ge_u32 s5, 9'); e('s_cbranch_scc1 L_exit')
        e('s_barrier')
    else:
        signal(O_CO)
    endwave()
    lab('L_ofar')
    e('buffer_store_dwordx4 v[64:67], v8, s[36:39], s56 offen sc1')
    e('s_branch L_odone')

    lab('L_A')
    if KA: e('s_load_dwordx8 s[24:31], s[0:1], 64')
    e('s_sub_u32 s3, s3, 8')
    e(f'v_mov_b32 v15, {BASE}'); e('v_mov_b32 v18, 1')
    e('s_cmp_lg_u32 s3, 0'); e('s_cbranch_scc1 L_A_n0')
    e('v_lshl_add_u32 v9, v0, 3, v15'); e('v_mov_b32 v10, 0'); e('v_mov_b32 v11, 0')
    e('ds_write_b64 v9, v[10:11]')
    lab('L_A_n0')
    if opts.get('codepf', True):
        e('s_cmp_lg_u32 s3, 1'); e('s_cbranch_scc1 L_A_n1')
        e('s_getpc_b64 s[40:41]')
        lab('L_pc')
        e(f's_sub_u32 s40, s40, L_pc-{KNAME}'); e('s_subb_u32 s41, s41, 0')
        e('s_bfe_u32 s44, s2, 0x20003'); e('s_mul_i32 s44, s44, 3072')
        e('v_lshlrev_b32 v9, 4, v0'); e('v_add_u32 v9, s44, v9')
        e('global_load_dwordx4 v[20:23], v9, s[40:41]'); e('global_load_dwordx4 v[24:27], v9, s[40:41] offset:1024')
        e('global_load_dwordx4 v[28:31], v9, s[40:41] offset:2048')
        lab('L_A_n1')
    kvoff()
    e('v_xor_b32 v4, v2, v3'); e('v_lshlrev_b32 v4, 4, v4'); e('v_lshl_add_u32 v4, v3, 8, v4')
    e('v_xor_b32 v5, 64, v4'); e('v_xor_b32 v6, 0x80, v4'); e('v_xor_b32 v7, 0xc0, v4')
    e('s_lshl_b32 s47, s3, 14'); e('s_mov_b32 m0, s47')
    kvstart(48)
    e('s_lshl_b32 s44, s3, 2'); e('v_add_u32 v53, s44, v15')
    e('s_mov_b32 s46, 0')
    e('s_waitcnt lgkmcnt(0)')
    srd(32, 10, 11, 's6', KVN)
    epoch_load()
    e('s_barrier')
    if LN < 8:
        e(f's_cmp_lt_u32 s3, {LN}'); e('s_cbranch_scc1 L_pd_wait')
        spin('L_kc_wait', O_KD - 4 * LN, 1, areg=53, sleep=opts.get('pdsleep', 1))
        e('s_branch L_pd_wait_ok')
    spin('L_pd_wait', O_PD, 1 if SM else 8 // LN, areg=53, sleep=opts.get('pdsleep', 1))
    if SM:
        e('s_mov_b32 s62, s44')
        e(f's_cmp_lt_u32 s3, {LN}'); e(f's_cselect_b32 s44, {O_PD}, {O_KD - 4 * LN}'); e('v_add_u32 v17, s44, v53')
    def kloop(dk):
        for n in range(16):
            if SM and 0 < n < dk: credit(f'L_kc{n}', n + 1 - opts.get('sml', 0), 17)
            thr(n, dk)
            e(f'buffer_load_dwordx4 v{4+(n&3)}, s[32:35], s48 offen{NTK} lds')
            if n < 15: e('s_add_u32 m0, m0, 0x400'); kvnext(48, n)
            if n == opts.get('ksig', 10): signal(O_CK)
            if n == opts.get('kdsig', 15):
                if SM: drain(dk, O_KD, 53)
                else:
                    if 'ho' in opts: e(f's_waitcnt vmcnt({opts.get("hok", opts.get("hov", opts["ho"]))})')
                    signal(O_KD, areg=53)
    if opts.get('dkwo'):
        e('s_sub_u32 s44, s5, 9'); e('s_cmp_ge_u32 s44, 6'); e('s_cbranch_scc1 L_k_mlp')
        kloop(opts['dkwo'])
        e('s_branch L_k_done')
        lab('L_k_mlp')
    kloop(DK)
    lab('L_k_done')
    if opts.get('hold') and opts.get('holdpos') == 3: e('s_memrealtime s[62:63]')
    stamp(1)
    srd(36, 30, 31, None, WS_SPAN)
    for s in range(4):
        e(f'v_or_b32 v{4+s}, {4*s}, v3'); e(f'v_xor_b32 v{4+s}, v{4+s}, v2'); e(f'v_lshlrev_b32 v{4+s}, 4, v{4+s}')
        e(f'v_lshl_add_u32 v{4+s}, v2, 8, v{4+s}'); e(f'v_add_u32 v{4+s}, s47, v{4+s}')
    e('v_and_b32 v12, 1, v2'); e('v_lshlrev_b32 v12, 8, v12'); e('v_lshl_add_u32 v12, v3, 4, v12')
    e(f'v_add_u32 v12, {BASE+O_QT}, v12')
    e(f'v_mov_b32 v13, {BASE+O_ZERO}')
    e('v_lshrrev_b32 v14, 2, v2')
    for T in range(4):
        e(f'v_cmp_eq_u32 vcc, {T}, v14'); e(f'v_cndmask_b32 v{8+T}, v13, v12, vcc')
    spin('L_q_wait', O_CQ, 1)
    stamp(2)
    for T in range(4):
        for s in range(4):
            r = 64 + 16 * T + 4 * s
            e(f'ds_read_b128 v[{r}:{r+3}], v{8+T} offset:{64*s}')
        if T in (1, 2): e('s_waitcnt lgkmcnt(4)')
    def kread(T):
        e(f's_waitcnt vmcnt({12-4*T})')
        for s in range(4):
            r = 32 + 16 * (T & 1) + 4 * s
            e(f'ds_read_b128 v[{r}:{r+3}], v{4+s} offset:{4096*T}')
    e('s_waitcnt lgkmcnt(0)')
    kread(0)
    for T in range(4):
        if T < 3: kread(T + 1)
        e(f's_waitcnt lgkmcnt({4 if T < 3 else 0})')
        for s in range(4):
            r = 32 + 16 * (T & 1) + 4 * s; q = 64 + 16 * T + 4 * s
            c = '0' if (T == 0 and s == 0) else 'v[20:23]'
            e(f'v_mfma_f32_16x16x32_bf16 v[20:23], v[{q}:{q+3}], v[{r}:{r+3}], {c}')
        if T < 2: e('s_nop 7')
    finish_tag_setup(19)
    e(f's_mov_b32 s48, {SCALE}'); e(f's_mov_b32 s49, {LOG2E}'); e('s_mov_b32 s50, 0xffff0000')
    e('v_cvt_pk_bf16_f32 v24, v20, v21')
    e('v_lshlrev_b32 v20, 16, v24'); e('v_and_b32 v21, s50, v24')
    e('v_mul_f32 v20, s48, v20'); e('v_mul_f32 v21, s48, v21')
    e('v_cvt_pk_bf16_f32 v24, v20, v21')
    e('v_lshlrev_b32 v20, 16, v24'); e('v_and_b32 v21, s50, v24')
    def wave_reduce2(op, a, b, sa, sb):
        e(f'{op}_dpp v{a}, v{sa}, v{sa} {X1}'); e(f'{op}_dpp v{b}, v{sb}, v{sb} {X1}')
        for m in (X2, HM, RM, 'row_bcast:15 row_mask:0xa bank_mask:0xf', 'row_bcast:31 row_mask:0xc bank_mask:0xf'):
            e(f'{op}_dpp v{a}, v{a}, v{a} {m}'); e(f'{op}_dpp v{b}, v{b}, v{b} {m}')
    wave_reduce2('v_max_f32', 24, 26, 20, 21)
    e('v_readlane_b32 s54, v24, 63'); e('v_readlane_b32 s55, v26, 63')
    e('v_subrev_f32 v20, s54, v20'); e('v_subrev_f32 v21, s55, v21')
    e('v_mul_f32 v20, s49, v20'); e('v_mul_f32 v21, s49, v21')
    e('v_exp_f32 v20, v20'); e('v_exp_f32 v21, v21')
    e('v_and_b32 v28, 3, v0'); e('v_lshlrev_b32 v28, 6, v28'); e('v_and_b32 v29, 0x3c, v0'); e('v_add_u32 v28, v28, v29')
    e('s_lshl_b32 s44, s3, 8'); e(f's_add_u32 s44, s44, {BASE}'); e('v_add_u32 v28, s44, v28')
    e('v_cvt_pk_bf16_f32 v22, v20, v20'); e('v_cvt_pk_bf16_f32 v23, v21, v21')
    e(f'ds_write_b32 v28, v22 offset:{O_PT}'); e(f'ds_write_b32 v28, v23 offset:{O_PT+2048}')
    wave_reduce2('v_add_f32', 25, 27, 20, 21)
    e('s_lshl_b32 s44, s3, 4'); e(f's_add_u32 s44, s44, {BASE}'); e('v_mov_b32 v28, s44')
    e('s_mov_b32 exec_lo, 0'); e('s_mov_b32 exec_hi, 0x80000000')
    e(f'ds_write_b128 v28, v[24:27] offset:{O_ML}')
    signal(O_CP, rtn=17)
    e('s_waitcnt lgkmcnt(0)')
    stamp(4)
    e('v_readfirstlane_b32 s44, v17')
    if opts.get('nopub1'): e('s_branch L_A_role')
    e('s_cmp_lg_u32 s44, 7'); e('s_cbranch_scc1 L_A_role')
    e('v_and_b32 v20, 7, v0'); e('v_lshlrev_b32 v20, 4, v20'); e('v_and_b32 v21, 8, v0'); e('v_add_u32 v20, v21, v20')
    e(f'v_add_u32 v20, {BASE}, v20')
    e(f'ds_read_b64 v[22:23], v20 offset:{O_ML}'); e(f'ds_read_b32 v28, v15 offset:{O_FAR}')
    e('s_lshl_b32 s44, s4, 12'); e('s_lshl_b32 s47, s5, 8'); e('s_add_u32 s44, s44, s47'); e(f's_add_u32 s44, s44, {MLB}')
    e('v_lshlrev_b32 v21, 4, v0')
    e('s_waitcnt lgkmcnt(0)')
    e(f'v_max_f32_dpp v24, v22, v22 {X1}'); e(f'v_max_f32_dpp v24, v24, v24 {X2}'); e(f'v_max_f32_dpp v24, v24, v24 {HM}')
    e('v_sub_f32 v22, v22, v24'); e('v_mul_f32 v22, s49, v22'); e('v_exp_f32 v22, v22')
    e('v_mul_f32 v25, v22, v23')
    e(f'v_add_f32_dpp v25, v25, v25 {X1}'); e(f'v_add_f32_dpp v25, v25, v25 {X2}'); e(f'v_add_f32_dpp v25, v25, v25 {HM}')
    tag(24, 2, 19)
    e('v_mov_b32 v26, v24'); e('v_mov_b32 v27, v25')
    e('v_readfirstlane_b32 s47, v28')
    e('s_mov_b64 exec, 0xffff')
    e('s_cmp_lg_u32 s47, 0'); e('s_cbranch_scc1 L_mlfar')
    e(f'buffer_store_dwordx4 v[24:27], v21, s[36:39], s44 offen{P1}')
    e('s_branch L_mldone')
    lab('L_mlfar')
    e('buffer_store_dwordx4 v[24:27], v21, s[36:39], s44 offen sc1')
    lab('L_mldone')
    e('s_mov_b64 exec, -1')
    lab('L_A_role')
    if opts.get('ptp'):
        e('s_cmp_lg_u32 s3, 6'); e('s_cbranch_scc1 L_A_role2')
        e('s_lshl_b32 s44, s4, 4'); e('s_add_u32 s44, s44, s5'); e('s_lshl_b32 s44, s44, 10'); e(f's_add_u32 s44, s44, {OB}')
        e('v_lshlrev_b32 v20, 4, v0')
        e('buffer_load_dwordx4 v[60:63], v20, s[36:39], s44 offen sc1')
        lab('L_A_role2')
    e('s_cmp_lt_u32 s5, 9'); e('s_cbranch_scc1 L_A_mlp')
    e('s_cmp_eq_u32 s5, 15'); e('s_cbranch_scc1 L_exit')
    e('s_cmp_ge_u32 s5, 12'); e('s_cselect_b32 s53, 1, 0')
    e('s_mul_i32 s44, s53, 3'); e('s_sub_u32 s54, s5, 9'); e('s_sub_u32 s54, s54, s44')
    e('s_lshl_b32 s55, s4, 1'); e('s_add_u32 s55, s55, s53')
    e('s_lshl_b32 s44, s55, 3'); e('s_add_u32 s44, s44, s3'); e(f's_mul_i32 s44, s44, {16*1152}')
    e('s_mul_i32 s47, s54, 384'); e('s_add_u32 s44, s44, s47')
    srd(32, 16, 17, 's44', 15 * 1152 + 384)
    tile_addr()
    e('s_lshl_b32 s57, s4, 12'); e('s_lshl_b32 s47, s53, 7'); e('s_add_u32 s57, s57, s47'); e(f's_add_u32 s57, s57, {MLB}')
    e('v_lshlrev_b32 v8, 8, v2')
    e('s_lshl_b32 s58, s4, 4'); e('s_add_u32 s58, s58, s3'); e('s_lshl_b32 s58, s58, 10'); e('s_lshl_b32 s47, s53, 9'); e('s_add_u32 s58, s58, s47'); e(f's_add_u32 s58, s58, {OB}')
    e('v_lshrrev_b32 v12, 5, v0'); e('v_and_b32 v13, 31, v0'); e('v_lshlrev_b32 v7, 13, v12'); e('v_lshl_add_u32 v7, v13, 4, v7')
    e(f'v_mul_u32_u24 v12, {8*272}, v12'); e('v_lshl_add_u32 v12, v2, 4, v12'); e('v_and_b32 v13, 1, v3'); e('v_lshl_add_u32 v12, v13, 3, v12')
    e('s_mul_i32 s44, s3, 272'); e(f's_add_u32 s44, s44, {STG}'); e('v_add_u32 v12, s44, v12')
    e('v_mul_u32_u24 v9, 272, v2'); e('v_lshl_add_u32 v9, v3, 4, v9'); e(f'v_add_u32 v9, {STG}, v9')
    e('s_add_u32 s59, s55, 64'); e(f's_mul_i32 s59, s59, {FS}'); e('s_mul_i32 s47, s54, 1536'); e('s_add_u32 s59, s59, s47')
    e('s_lshl_b32 s44, s3, 8'); e('s_add_u32 s59, s59, s44'); e(f's_add_u32 s59, s59, {FB}')
    e('s_mul_i32 s44, s3, 6144'); e('s_mov_b32 m0, s44'); e('s_movk_i32 s47, 9216'); e('s_add_u32 s52, s3, 8')
    spin('L_wo_pwait', O_CP, 8, sleep=2)
    e('s_lshl_b32 s44, s3, 2'); e('v_add_u32 v53, s44, v15')
    spin('L_wo_vwait', O_CV, opts.get('cvwo', 8))
    stamp(5)
    if opts.get('pto', 1): e('buffer_load_dwordx4 v[28:31], v7, s[36:39], s58 offen sc1')
    e('buffer_load_dwordx4 v[20:23], v8, s[36:39], s57 offen sc1')
    for n in range(6):
        thr(n, DO)
        e(f"buffer_load_dwordx4 v{4+n if n < 3 else 46+n}, s[32:35], {'0' if n < 3 else 's47'} offen{NT} lds")
        if n < 5: e('s_add_u32 m0, m0, 0x400')
    stamp(6)
    e('s_waitcnt vmcnt(6)')
    e('s_branch L_mlok' if opts.get('nopoll1') else 's_branch L_mlchk')
    lab('L_mlpoll')
    e('buffer_load_dwordx4 v[20:23], v8, s[36:39], s57 offen sc1')
    e('s_waitcnt vmcnt(0)')
    lab('L_mlchk')
    untag([20, 21, 22, 23], 24)
    poll_tail(24, 'L_mlpoll', 'L_mlok', sleep=4)
    lab('L_mlok')
    e(f'v_max_f32_dpp v24, v20, v20 {X1}'); e(f'v_max_f32_dpp v24, v24, v24 {X2}'); e(f'v_max_f32_dpp v24, v24, v24 {HM}')
    e('v_sub_f32 v20, v20, v24'); e('v_mul_f32 v20, s49, v20'); e('v_exp_f32 v20, v20')
    e('v_mul_f32 v25, v20, v21')
    e(f'v_add_f32_dpp v25, v25, v25 {X1}'); e(f'v_add_f32_dpp v25, v25, v25 {X2}'); e(f'v_add_f32_dpp v25, v25, v25 {HM}')
    e('v_rcp_f32 v25, v25'); e('v_mul_f32 v14, v20, v25')
    e('v_readlane_b32 s54, v14, s3'); e('v_readlane_b32 s55, v14, s52')
    e('v_mov_b32 v14, s55'); e('s_mov_b32 exec_hi, 0'); e('v_mov_b32 v14, s54'); e('s_mov_b32 exec_hi, -1')
    e('s_waitcnt vmcnt(0)')
    e('buffer_load_dwordx4 v[20:23], v7, s[36:39], s58 offen sc1')
    stamp(7)
    if BAR:
        e('s_barrier')
        e('s_cmp_ge_u32 s3, 6'); e('s_cbranch_scc1 L_ochk')
    else:
        signal(O_CW)
        e('s_cmp_ge_u32 s3, 6'); e('s_cbranch_scc1 L_ochk')
        spin('L_w_wait', O_CW, 8, sleep=0)
    for tl in range(2):
        for s in range(4):
            for hf in range(2):
                r = 64 + 16 * tl + 4 * s + 2 * hf
                e(f'ds_read_b64_tr_b16 v[{r}:{r+1}], v{52 if tl else 10} offset:{12288*s + 1536*hf}')
        if tl == 0: e('s_waitcnt lgkmcnt(4)')
    e('s_branch L_ochk')
    lab('L_opoll')
    e('buffer_load_dwordx4 v[20:23], v7, s[36:39], s58 offen sc1')
    lab('L_ochk')
    e('s_waitcnt vmcnt(0)')
    untag([20, 21, 22, 23], 24)
    poll_tail(24, 'L_opoll', 'L_ook', sleep=opts.get('osleep', 1))
    lab('L_ook')
    stamp(8)
    e('v_pk_mul_f32 v[20:21], v[20:21], v[14:15] op_sel_hi:[1,0]'); e('v_pk_mul_f32 v[22:23], v[22:23], v[14:15] op_sel_hi:[1,0]')
    e('v_cvt_pk_bf16_f32 v20, v20, v21'); e('v_cvt_pk_bf16_f32 v21, v22, v23')
    e('ds_write_b64 v12, v[20:21]')
    e('s_waitcnt lgkmcnt(0)')
    e('s_barrier')
    stamp(11)
    if opts.get('wb') == 2:
        e('s_cmp_lg_u32 s3, 7'); e('s_cbranch_scc1 L_nowb'); e('s_cmp_lg_u32 s5, 9'); e('s_cbranch_scc1 L_nowb'); e('s_bitcmp1_b32 s4, 0'); e('s_cbranch_scc1 L_nowb')
        e('buffer_wbl2 sc1')
        lab('L_nowb')
    e('s_cmp_ge_u32 s3, 6'); e('s_cbranch_scc1 L_exit')
    for s in range(4): e(f'ds_read_b128 v[{32+4*s}:{35+4*s}], v9 offset:{64*s}')
    for s in range(4):
        e(f's_waitcnt lgkmcnt({3-s})')
        for tl in range(2):
            d = 24 + 4 * tl
            c = '0' if s == 0 else f'v[{d}:{d+3}]'
            e(f'v_mfma_f32_16x16x32_bf16 v[{d}:{d+3}], v[{64+16*tl+4*s}:{67+16*tl+4*s}], v[{32+4*s}:{35+4*s}], {c}')
    for r in range(4): e(f'v_add_f32_dpp v{24+r}, v{24+r}, v{24+r} row_half_mirror row_mask:0xf bank_mask:0x5')
    for r in range(4): e(f'v_add_f32_dpp v{24+r}, v{28+r}, v{28+r} row_half_mirror row_mask:0xf bank_mask:0xa')
    for m in (X1, X2):
        for r in range(4): e(f'v_add_f32_dpp v{24+r}, v{24+r}, v{24+r} {m}')
    if opts.get('dwst'):
        e('s_mov_b32 vcc_lo, 0xaaaaaaaa'); e('s_mov_b32 vcc_hi, 0xaaaaaaaa')
        e('v_cndmask_b32 v24, v24, v25, vcc'); e('v_cndmask_b32 v26, v26, v27, vcc')
        e('s_mov_b32 vcc_lo, 0xcccccccc'); e('s_mov_b32 vcc_hi, 0xcccccccc')
        e('v_cndmask_b32 v24, v24, v26, vcc')
        tag(24, 1, 19)
        e('buffer_store_dword v24, v11, s[36:39], s59 offen sc1')
    else:
        tag(24, 4, 19)
        e('s_mov_b32 exec_lo, 0x11111111'); e('s_mov_b32 exec_hi, 0x11111111')
        e('buffer_store_dwordx4 v[24:27], v11, s[36:39], s59 offen sc1')
    stamp(9)
    endwave()
    lab('L_A_mlp')
    e('s_cmp_eq_u32 s3, 7'); e('s_cbranch_scc1 L_A_fin')
    e('s_cmp_eq_u32 s3, 6'); e('s_cbranch_scc1 L_exit')
    e('s_cmp_ge_u32 s52, 3'); e('s_cselect_b32 s54, 1, 0')
    e('s_mul_i32 s55, s54, 3'); e('s_add_u32 s56, s55, s3'); e('s_sub_u32 s55, s52, s55')
    e('s_cmp_ge_u32 s3, 3'); e('s_cbranch_scc1 L_A_wd')
    e('s_cmp_ge_u32 s56, 4'); e('s_cselect_b32 s44, 7, 8'); e('s_cselect_b32 s47, 1024, 0')
    e('v_bfe_u32 v13, v0, 2, 2'); e('v_lshlrev_b32 v13, s44, v13'); e('v_mul_u32_u24 v9, 1536, v3'); e('v_add_u32 v13, v13, v9')
    e('v_lshrrev_b32 v9, 5, v0'); e('v_lshl_add_u32 v13, v9, 7, v13')
    e('v_and_b32 v9, 3, v0'); e('v_lshl_add_u32 v13, v9, 4, v13')
    e('v_min_u32 v12, 5, v0'); e(f'v_mul_u32_u24 v12, {RS}, v12')
    e(f's_mul_i32 s57, s51, {6*RS}'); e(f's_add_u32 s48, s57, {HB}'); e('s_add_u32 s57, s57, s47'); e('s_and_b32 s44, s56, 3'); e('s_lshl_b32 s44, s44, 6'); e('s_add_u32 s57, s57, s44')
    e(f's_add_u32 s57, s57, {HB}'); e(f's_add_u32 s58, s57, {2*RS}'); e(f's_add_u32 s59, s57, {4*RS}')
    e('v_bfe_u32 v10, v0, 2, 1'); e('v_lshl_add_u32 v10, v10, 2, v3'); e('v_lshl_add_u32 v10, v9, 3, v10'); e('s_lshl_b32 s44, s3, 5'); e('v_add_u32 v10, s44, v10')
    e('v_bfe_u32 v11, v0, 3, 1'); e('v_mul_u32_u24 v11, 192, v11'); e('v_lshl_add_u32 v11, v10, 1, v11'); e('v_add_u32 v11, v15, v11')
    e('v_lshl_add_u32 v10, v10, 2, v15')
    if opts.get('nopoll1'):
        for k in range(12): e(f'v_mov_b32 v{32+k}, 1.0')
        e('s_branch L_hnear')
    lab('L_hpoll')
    for l in range(3): e(f'buffer_load_dwordx4 v[{32+4*l}:{35+4*l}], v13, s[36:39], s{57+l} offen sc1')
    e('buffer_load_dwordx4 v[44:47], v12, s[36:39], s48 offen offset:3072 sc1')
    e('s_waitcnt vmcnt(0)')
    untag(list(range(32, 48)), 48)
    poll_tail(48, 'L_hpoll', 'L_hok', sleep=8)
    lab('L_hok')
    e('s_getreg_b32 s44, hwreg(HW_REG_XCC_ID, 0, 4)'); e('s_lshl_b32 s44, s44, 16')
    e('v_cmp_ne_u32 vcc, s44, v44')
    e('s_cbranch_vccz L_hnear')
    e('buffer_wbl2 sc1'); e('s_waitcnt vmcnt(0)')
    lab('L_hnear')
    for l in (1, 2):
        for k in (0, 2): e(f'v_pk_add_f32 v[{32+k}:{33+k}], v[{32+k}:{33+k}], v[{32+4*l+k}:{33+4*l+k}]')
    e('v_permlane32_swap_b32 v32, v34'); e('v_permlane32_swap_b32 v33, v35')
    e('v_add_f32 v32, v32, v34'); e('v_add_f32 v33, v33, v35')
    e('v_permlane16_swap_b32 v32, v33')
    e('v_cvt_pk_bf16_f32 v24, v32, v33')
    e('v_and_b32 v25, s50, v24'); e('v_lshlrev_b32 v24, 16, v24')
    e('v_cmp_lt_f32 vcc, 0, v24'); e('v_cndmask_b32 v26, 0, 1.0, vcc')
    e('v_mul_f32 v24, v24, v26'); e('v_mul_f32 v24, v24, v25')
    e('v_cvt_pk_bf16_f32 v24, v24, v24')
    e(f'ds_write_b16 v11, v24 offset:{O_HS}')
    e(f'v_or_b32_dpp v25, v24, v24 {DPP("row_ror:8")}'); e('v_lshlrev_b32 v25, 17, v25')
    e(f'ds_write_b32 v10, v25 offset:{O_NZ}')
    signal(O_CH)
    stamp(5)
    lab('L_A_wd')
    e('s_lshl_b32 s56, s51, 1'); e('s_add_u32 s56, s56, s54')
    e('s_mul_i32 s44, s56, 6'); e('s_add_u32 s44, s44, s3'); e(f's_mul_i32 s44, s44, {16*1152}')
    e('s_mul_i32 s47, s55, 384'); e('s_add_u32 s44, s44, s47')
    srd(32, 24, 25, 's44', 15 * 1152 + 384)
    e('s_lshl_b32 s44, s3, 6'); e('v_add_u32 v57, s44, v15')
    tile_addr(rows=54)
    e(f's_mul_i32 s59, s56, {FS}'); e('s_mul_i32 s47, s55, 1536'); e('s_add_u32 s59, s59, s47')
    e('s_lshl_b32 s44, s3, 8'); e('s_add_u32 s59, s59, s44'); e(f's_add_u32 s59, s59, {FB}')
    e('v_lshrrev_b32 v9, 3, v2'); e('v_mul_u32_u24 v9, 192, v9'); e('v_lshl_add_u32 v9, v3, 4, v9'); e('v_add_u32 v9, v15, v9')
    e('s_mul_i32 s44, s3, 6144'); e('s_mov_b32 m0, s44'); e('s_movk_i32 s47, 9216')
    spin('L_h_wait', O_CH, 3, sleep=4)
    for s in range(3): e(f'ds_read_b128 v[{32+4*s}:{35+4*s}], v9 offset:{O_HS+64*s}')
    if opts.get('skip', 1):
        for m in range(3):
            e(f'ds_read_b32 v{58+m}, v{54+m} offset:{O_NZ}'); e(f'ds_read_b32 v{61+m}, v{54+m} offset:{O_NZ+32}')
        e('v_bfrev_b32 v8, 1')
        e('s_waitcnt lgkmcnt(0)')
        for n in range(6):
            r = 4 + n if n < 3 else 46 + n
            e(f'v_cmp_ne_u32 vcc, 0, v{58+n}'); e(f'v_cndmask_b32 v{r}, v8, v{r}, vcc')
    spin('L_wd_pwait', O_CP, 8, sleep=2)
    WPRE = opts.get('wdpre', 2)
    def wdload(n):
        e(f"buffer_load_dwordx4 v{4+n if n < 3 else 46+n}, s[32:35], {'0' if n < 3 else 's47'} offen{NT} lds")
        if n < 5: e('s_add_u32 m0, m0, 0x400')
    if WPRE:
        spin('L_v_wait', O_CV, opts.get('cvwd', 8))
        for n in range(WPRE): wdload(n)
    stamp(8)
    if BAR and not ONE: e('s_barrier')
    if WPRE < 6:
        if not BAR: spin('L_o_wait', O_CO, opts.get('wdco', 9), sleep=0)
        for n in range(WPRE, 6): wdload(n)
    stamp(10)
    e('s_waitcnt vmcnt(0)')
    stamp(7)
    if BAR: e('s_barrier')
    else:
        signal(O_CW)
        spin('L_wd_wait', O_CW, 6, sleep=0)
    for s in range(3):
        for tl in range(2):
            for hf in range(2):
                r = 64 + 16 * tl + 4 * s + 2 * hf
                e(f'ds_read_b64_tr_b16 v[{r}:{r+1}], v{52 if tl else 10} offset:{12288*s + 1536*hf}')
    for s in range(3):
        for tl in range(2):
            e(f's_waitcnt lgkmcnt({10-4*s-2*tl})')
            d = 24 + 4 * tl
            c = '0' if s == 0 else f'v[{d}:{d+3}]'
            e(f'v_mfma_f32_16x16x32_bf16 v[{d}:{d+3}], v[{64+16*tl+4*s}:{67+16*tl+4*s}], v[{32+4*s}:{35+4*s}], {c}')
    stamp(11)
    for r in range(4): e(f'v_mov_b32_dpp v{24+r}, v{28+r} quad_perm:[0,1,2,3] row_mask:0xf bank_mask:0xa')
    if opts.get('dwst'):
        e('s_mov_b32 vcc_lo, 0xaaaaaaaa'); e('s_mov_b32 vcc_hi, 0xaaaaaaaa')
        e('v_cndmask_b32 v24, v24, v25, vcc'); e('v_cndmask_b32 v26, v26, v27, vcc')
        e('s_mov_b32 vcc_lo, 0xcccccccc'); e('s_mov_b32 vcc_hi, 0xcccccccc')
        e('v_cndmask_b32 v24, v24, v26, vcc')
        tag(24, 1, 19)
        e('buffer_store_dword v24, v11, s[36:39], s59 offen sc1')
    else:
        tag(24, 4, 19)
        e('s_mov_b32 exec_lo, 0x11111111'); e('s_mov_b32 exec_hi, 0x11111111')
        e('buffer_store_dwordx4 v[24:27], v11, s[36:39], s59 offen sc1')
    endwave()
    lab('L_A_fin')
    srd(40, 8, 9, None, 2304)
    e('v_and_b32 v5, 1, v0'); e('v_and_b32 v4, 1, v3'); e('v_lshlrev_b32 v4, 2, v4'); e('v_lshl_add_u32 v4, v5, 5, v4')
    e('s_and_b32 s44, s53, 1'); e('s_mul_i32 s44, s44, 1152'); e('s_lshr_b32 s47, s53, 3'); e('s_lshl_b32 s47, s47, 6'); e('s_add_u32 s44, s44, s47')
    e('s_and_b32 s47, s53, 6'); e('s_lshl_b32 s47, s47, 2'); e('s_add_u32 s44, s44, s47')
    e('v_add_u32 v4, s44, v4'); e('v_lshrrev_b32 v7, 5, v0'); e('v_lshl_add_u32 v4, v7, 1, v4')
    e('buffer_load_ushort v10, v4, s[40:43], 0 offen')
    srd(40, 26, 27, None, 2304)
    e('v_lshrrev_b32 v6, 1, v0'); e(f'v_mul_u32_u24 v6, {FS}, v6'); e('v_lshl_add_u32 v6, v5, 4, v6')
    e('s_lshl_b32 s57, s53, 5'); e(f's_add_u32 s57, s57, {FB}'); e(f's_add_u32 s58, s57, {32*FS}'); e(f's_add_u32 s59, s57, {64*FS}')
    for k in range(4): e(f'v_mov_b32 v{68+k}, s7')
    e('s_mov_b32 s54, 0'); e('s_mov_b32 s55, 0')
    if opts.get('ptf'):
        if opts['ptf'] & 1: e('buffer_load_dwordx4 v[72:75], v6, s[36:39], s59 offen sc1')
        if opts['ptf'] & 2:
            e('buffer_load_dwordx4 v[64:67], v6, s[36:39], s57 offen sc1')
            e('s_mov_b32 exec_hi, 0'); e('buffer_load_dwordx4 v[68:71], v6, s[36:39], s58 offen sc1'); e('s_mov_b32 exec_hi, -1')
    if BAR:
        if not ONE: e('s_barrier')
        if opts.get('warm'):
            e(f's_sleep {opts["warm"]}')
            e('buffer_load_dwordx4 v[72:75], v6, s[36:39], s59 offen sc1')
            e('buffer_load_dwordx4 v[64:67], v6, s[36:39], s57 offen sc1')
            e('s_mov_b32 exec_hi, 0'); e('buffer_load_dwordx4 v[68:71], v6, s[36:39], s58 offen sc1'); e('s_mov_b32 exec_hi, -1')
        e('s_barrier')
        if opts.get('fdelay'): e(f's_sleep {opts["fdelay"]}')
    elif opts.get('fco'): spin('L_s_start', O_CO, 9, sleep=opts['fco'])
    elif opts.get('fcw'): spin('L_s_start', O_CW, opts['fcw'], sleep=1)
    else: spin('L_s_start', O_CYS, opts.get('fstart', 6), sleep=2)
    e('s_waitcnt vmcnt(0)')
    e('v_lshlrev_b32 v10, 16, v10')
    stamp(11)
    lab('L_fpoll')
    e('s_cmp_lg_u32 s54, 0'); e('s_cbranch_scc1 L_f1')
    e('buffer_load_dwordx4 v[64:67], v6, s[36:39], s57 offen sc1')
    e('s_mov_b32 exec_hi, 0')
    e('buffer_load_dwordx4 v[68:71], v6, s[36:39], s58 offen sc1')
    e('s_mov_b32 exec_hi, -1')
    lab('L_f1')
    e('s_cmp_lg_u32 s55, 0'); e('s_cbranch_scc1 L_f2')
    e('buffer_load_dwordx4 v[72:75], v6, s[36:39], s59 offen sc1')
    e('s_waitcnt vmcnt(0)')
    untag([72, 73, 74, 75], 88, dst=[84, 85, 86, 87])
    e('v_and_b32 v88, s45, v88'); e('v_cmp_ne_u32 vcc, 0, v88'); e('s_cbranch_vccnz L_f2')
    stamp(9)
    red32(84)
    rnd(84)
    e('s_mov_b32 s55, 1')
    e('s_cmp_lg_u32 s54, 0'); e('s_cbranch_scc1 L_fok')
    lab('L_f2')
    e('s_cmp_lg_u32 s54, 0'); e('s_cbranch_scc1 L_f3')
    e('s_waitcnt vmcnt(0)')
    untag(list(range(64, 72)), 104, dst=list(range(96, 104)))
    e('v_and_b32 v104, s45, v104'); e('v_cmp_ne_u32 vcc, 0, v104'); e('s_cbranch_vccnz L_f3')
    stamp(12)
    for k in (0, 2): e(f'v_pk_add_f32 v[{96+k}:{97+k}], v[{96+k}:{97+k}], v[{100+k}:{101+k}]')
    red32(96)
    rnd(96)
    e('v_mul_f32 v97, s49, v96'); e('v_exp_f32 v97, -v97'); e('v_add_f32 v97, 1.0, v97'); e('v_rcp_f32 v97, v97')
    e('v_mul_f32 v96, v96, v97')
    rnd(96)
    e('s_mov_b32 s54, 1')
    e('s_cmp_lg_u32 s55, 0'); e('s_cbranch_scc1 L_fok')
    lab('L_f3')
    if opts.get('ssleep'): e(f's_sleep {opts["ssleep"]}')
    e('s_add_u32 s46, s46, 1'); e('s_and_b32 s44, s46, 0xff'); e('s_cbranch_scc1 L_fpoll')
    e('buffer_wbl2 sc1'); e('buffer_inv sc1'); e('s_waitcnt vmcnt(0)')
    e(f's_cmp_le_u32 s46, {SPIN_MAX}'); e('s_cbranch_scc1 L_fpoll')
    lab('L_fok')
    e('v_mul_f32 v84, v84, v96')
    rnd(84)
    e('v_add_f32 v84, v84, v10')
    if opts.get('perturb'):
        e('s_cmp_lg_u32 s53, 0'); e('s_cbranch_scc1 L_nopert'); e('s_mov_b64 exec, 1'); e(f'v_add_f32 v84, {hex(f2u(opts["perturb"]))}, v84'); e('s_mov_b64 exec, -1')
        lab('L_nopert')
    e('v_cvt_pk_bf16_f32 v96, v84, v84')
    if opts.get('hold'):
        if opts.get('holdmul'):
            e('s_memrealtime s[94:95]'); e('s_waitcnt lgkmcnt(0)'); e('s_sub_u32 s93, s94, s62'); e(f's_mul_i32 s93, s93, {opts["holdmul"]}')
        else:
            e(f's_mov_b32 s93, {opts["hold"]}')
        lab('L_hold')
        e('s_memrealtime s[94:95]'); e('s_waitcnt lgkmcnt(0)'); e('s_sub_u32 s94, s94, s62'); e('s_cmp_lt_u32 s94, s93'); e('s_cbranch_scc1 L_hold')
    e('s_mov_b32 exec_lo, 0x00030003'); e('s_mov_b32 exec_hi, 0x00030003')
    e(f'buffer_store_short v96, v4, s[40:43], 0 offen{opts.get("outfl", "")}')
    e('s_cmp_lg_u32 s53, 0'); e('s_cbranch_scc1 L_exit')
    e('s_mov_b64 exec, 3')
    e(f'v_mul_u32_u24 v4, {EPB}, v0'); e('v_mov_b32 v5, s60')
    e(f'buffer_store_dword v5, v4, s[36:39], 0 offen{opts.get("epfl", "")}')
    endwave()

    lab('L_exit')
    if diag:
        lab('L_fin')
        e('s_mov_b64 exec, -1')
        stamp(14)
        e('s_waitcnt vmcnt(0)')
        stamp(15)
        e('s_waitcnt lgkmcnt(0)')
        e('s_lshl_b32 s44, s2, 4'); e('s_add_u32 s44, s44, s61'); e('s_lshl_b32 s44, s44, 6'); e(f's_add_u32 s44, s44, {STAMP_OFF}')
        srd(40, 30, 31, 's44', 64)
        for i in range(16): e(f'v_mov_b32 v{64+i}, s{64+2*i}')
        e('v_mov_b32 v4, 0'); e('s_mov_b64 exec, 1')
        for i in range(4): e(f'buffer_store_dwordx4 v[{64+4*i}:{67+4*i}], v4, s[40:43], 0 offen offset:{16*i}')
    lab('L_end')
    e('s_endpgm')
    if opts.get('codepf'):
        lab('L_codeend')
        L.append(f'.fill (12288-(L_codeend-{KNAME}))/4, 4, 0xbf810000')
    L.append('.section .rodata,"a"'); L.append('.p2align 6'); L.append(f'.amdhsa_kernel {KNAME}')
    L.append('  .amdhsa_next_free_vgpr 128'); L.append('  .amdhsa_next_free_sgpr 96'); L.append('  .amdhsa_accum_offset 128')
    L.append('  .amdhsa_group_segment_fixed_size 0'); L.append('  .amdhsa_kernarg_size 96'); L.append('  .amdhsa_user_sgpr_count 2')
    L.append('  .amdhsa_user_sgpr_kernarg_segment_ptr 1'); L.append('  .amdhsa_system_sgpr_workgroup_id_x 1')
    L.append('  .amdhsa_float_denorm_mode_32 3')
    L.append('.end_amdhsa_kernel')
    return '\n'.join(hazard_pass(L)) + '\n'

if __name__ == '__main__':
    import json
    open('k_diag.s', 'w').write(gen(diag=True))
    open('k_prod.s', 'w').write(gen(diag=False))
    for a in sys.argv[1:]:
        name, o = a.split('=', 1)
        open(f'exp/{name}.s', 'w').write(gen(diag=('diag' in name), opts=json.loads(o)))
```

```python
import sys, struct
from asmlib import hazard_pass

KNAME = "recurrent_scan__sliding_block_cached__glu_gated_reglu__decode_kernel"
def f2u(x): return struct.unpack('<I', struct.pack('<f', x))[0]

BASE = 131072
O_CP, O_CO, O_CK, O_CG, O_CQ, O_CH, O_CY, O_CX = 0, 4, 8, 12, 16, 20, 24, 28
O_FAR, O_CGF, O_CV, O_CYS, O_CW = 32, 36, 40, 44, 48
STG = 49152
O_NZ = 1024
O_KD, O_VD, O_PD = 64, 96, 128
O_ZERO = 256
O_QT = 512
O_XB = 1024
O_ML = 3328
O_HS = 3456
O_PT = 3840
O_GP = 7936
O_OP = 20480
LDS_TOTAL = BASE + 28672
OB = 0x1000; MLB = 0x41000; FB = 0x51000; HB = 0xD0000; RS = 1664; EPB = 0x140000; WS_SPAN = 0x200000
STAMP_OFF = 512 << 20
TAGM = 0x3ff
LOG2E = f2u(1.4426950408889634)
SCALE = f2u(128 ** -0.5)
SPIN_MAX = 200000

HEADER = """; Kernarg layout for this problem (96 bytes, ptrs only, base s[0:1]):
; Hand-offs between workgroups go through d_ws as 16-byte granules whose dwords carry a per-launch tag.
"""

def gen(diag=False, opts=None):
    opts = dict(dict(p3all=8, lanes=4, dk=5, dv=6, dvt=16, hov=4, ksig=8, ckn=5, ho=1, wdpre=6, do=4, pto=0, codepf=0, fcw=1, dwst=1, po=1, py=1, ps=1, osleep=1, ssleep=1, slate=1), **(opts or {}))
    NTK = ' nt' if opts.get('ntk', True) else ''
    NTV = ' nt' if opts.get('ntv', True) else ''
    NT = ' nt' if opts.get('ntw', True) else ''
    P1 = ' sc1' if opts.get('p1sc1') else ''
    FS = opts.get('fs', 4736)
    BAR = opts.get('bar', 1)
    PAT = opts.get('pat', 'r'); KVN = 131072 if PAT == 'i' else 0x100000
    LN = opts.get('lanes', 8); LB = {8: 3, 4: 2, 2: 1, 1: 0}[LN]
    SM = opts.get('smooth', 0)
    ONE = opts.get('onebar', 0)
    L = []
    def e(s): L.append('    ' + s)
    def lab(s): L.append(s + ':')
    stamp_idx = {}
    def stamp(i):
        if diag: e(f's_memrealtime s[{64+2*i}:{65+2*i}]')
    def srd(d, lo, hi, off, nrec):
        if off is None:
            e(f's_mov_b32 s{d}, s{lo}'); e(f's_mov_b32 s{d+1}, s{hi}')
        else:
            e(f's_add_u32 s{d}, s{lo}, {off}'); e(f's_addc_u32 s{d+1}, s{hi}, 0')
        e(f's_mov_b32 s{d+2}, {nrec}'); e(f's_mov_b32 s{d+3}, 0x20000')
    DPP = lambda m: f'{m} row_mask:0xf bank_mask:0xf'
    X1 = DPP('quad_perm:[1,0,3,2]'); X2 = DPP('quad_perm:[2,3,0,1]'); HM = DPP('row_half_mirror'); RM = DPP('row_mirror')
    def masks(d):
        t, h = d + 4, d + 5
        e(f'v_and_b32 v{t}, 1, v2'); e(f'v_lshlrev_b32 v{t}, 4, v{t}')
        e(f'v_mov_b32 v{h}, 0xffff'); e(f'v_lshlrev_b32 v{h}, v{t}, v{h}')
        e(f'v_bfe_u32 v{t}, v2, 1, 2')
        for j in range(4):
            e(f'v_cmp_eq_u32 vcc, {j}, v{t}')
            e(f'v_cndmask_b32 v{d+j}, 0, v{h}, vcc')
    def tag(d, n=4, tv=None):
        for k in range(n): e(f'v_bfi_b32 v{d+k}, s45, v{tv}, v{d+k}')
    def finish_tag_setup(tv):
        e(f's_movk_i32 s45, {TAGM}')
        e('s_add_u32 s60, s7, 1'); e('s_xor_b32 s58, s58, s60'); e('s_and_b32 s58, s58, s45'); e('s_cselect_b32 s58, 0, 1'); e('s_add_u32 s60, s60, s58')
        e('s_and_b32 s7, s60, s45')
        e(f'v_mov_b32 v{tv}, s7')
    def epoch_load():
        e('s_load_dword s7, s[30:31], 0'); e(f's_mov_b32 s44, {EPB}'); e('s_load_dword s58, s[30:31], s44')
    def untag(regs, acc, dst=None):
        dst = dst or regs
        for r, d in zip(regs, dst): e(f'v_xor_b32 v{d}, s7, v{r}')
        e(f'v_or3_b32 v{acc}, v{dst[0]}, v{dst[1]}, v{dst[2]}')
        rest = dst[3:]
        while rest:
            if len(rest) >= 2:
                e(f'v_or3_b32 v{acc}, v{acc}, v{rest[0]}, v{rest[1]}'); rest = rest[2:]
            else:
                e(f'v_or_b32 v{acc}, v{acc}, v{rest[0]}'); rest = rest[1:]
    def poll_tail(acc, lpoll, lok, sleep=2):
        e(f'v_and_b32 v{acc}, s45, v{acc}')
        e(f'v_cmp_ne_u32 vcc, 0, v{acc}')
        e(f's_cbranch_vccz {lok}')
        if sleep: e(f's_sleep {sleep}')
        e('s_add_u32 s46, s46, 1'); e(f's_and_b32 s44, s46, {opts.get("flushmask", 0xff)}'); e(f's_cbranch_scc1 {lpoll}')
        e('buffer_wbl2 sc1'); e('buffer_inv sc1'); e('s_waitcnt vmcnt(0)')
        e(f's_cmp_le_u32 s46, {SPIN_MAX}'); e(f's_cbranch_scc1 {lpoll}')
    DK = opts.get('dk', 3); DV = opts.get('dv', 3); DG = opts.get('dg', 0); DW = opts.get('dw', 0); DO = opts.get('do', 3)
    def thr(i, d):
        if isinstance(d, list): d = d[i % len(d)]
        if d and i >= d: e(f's_waitcnt vmcnt({d-1})')
    def spin(name, off, target, areg=15, treg=16, sleep=1):
        lab(name)
        e(f'ds_read_b32 v{treg}, v{areg} offset:{off}')
        e('s_waitcnt lgkmcnt(0)')
        e(f'v_readfirstlane_b32 s44, v{treg}')
        e(f's_cmp_ge_u32 s44, {target}'); e(f's_cbranch_scc1 {name}_ok')
        e(f's_sleep {sleep}'); e(f's_branch {name}')
        lab(name + '_ok')
    def signal(off, areg=15, one=18, rtn=None):
        e('s_mov_b64 exec, 1')
        if rtn is None: e(f'ds_add_u32 v{areg}, v{one} offset:{off}')
        else: e(f'ds_add_rtn_u32 v{rtn}, v{areg}, v{one} offset:{off}')
        e('s_mov_b64 exec, -1')
    def ppoll(name, D, base, dst, addr, soff, pre=None, post=None, sleep=0):
        def ld(k):
            if pre: e(pre)
            e(f'buffer_load_dwordx4 v[{base+4*k}:{base+4*k+3}], v{addr}, s[36:39], {soff} offen sc1')
            if post: e(post)
        acc = dst + 4
        lab(name)
        for k in range(D - 1): ld(k)
        lab(name + '_l')
        for k in range(D):
            ld((k + D - 1) % D)
            e(f's_waitcnt vmcnt({D-1})')
            untag([base + 4 * k + i for i in range(4)], acc, dst=[dst + i for i in range(4)])
            e(f'v_and_b32 v{acc}, s45, v{acc}')
            e(f'v_cmp_ne_u32 vcc, 0, v{acc}')
            e(f's_cbranch_vccz {name}_ok')
            if sleep: e(f's_sleep {sleep}')
        e('s_add_u32 s46, s46, 1'); e(f's_and_b32 s44, s46, {max(1, 256 // D) * 2 - 1 if False else 63}'); e(f's_cbranch_scc1 {name}_l')
        e('s_waitcnt vmcnt(0)')
        e('buffer_wbl2 sc1'); e('buffer_inv sc1'); e('s_waitcnt vmcnt(0)')
        e(f's_cmp_le_u32 s46, {SPIN_MAX}'); e(f's_cbranch_scc1 {name}')
        lab(name + '_ok')
    def tile_addr(rows=None):
        for m in range(3):
            e(f'v_add_u32 v8, {64*m}, v0'); e('v_mul_u32_u24 v9, 2731, v8'); e('v_lshrrev_b32 v9, 16, v9')
            if rows is not None: e(f'v_lshl_add_u32 v{rows+m}, v9, 2, v{rows+3}')
            e('v_and_b32 v10, 2, v9'); e('v_lshlrev_b32 v10, 4, v10')
            e(f'v_mul_u32_u24 v9, {1152-384}, v9'); e(f'v_lshl_add_u32 v{4+m}, v8, 4, v9')
            e(f'v_xor_b32 v{4+m}, v{4+m}, v10'); e(f'v_xor_b32 v{49+m}, 64, v{4+m}')
        e('v_bfe_u32 v10, v0, 2, 2'); e('v_lshl_add_u32 v10, v3, 3, v10'); e('v_mul_u32_u24 v10, 384, v10'); e('v_and_b32 v11, 3, v0'); e('v_lshl_add_u32 v10, v11, 3, v10')
        e('s_lshl_b32 s44, s3, 6'); e('v_add_u32 v10, s44, v10')
        e('v_and_b32 v11, 24, v0'); e('v_lshlrev_b32 v11, 2, v11'); e('v_xor_b32 v10, v10, v11'); e('v_xor_b32 v52, 32, v10')
        e('v_lshlrev_b32 v11, 2, v0')
    def drain(d, off, areg):
        e('s_mov_b64 exec, 1')
        for k in range(d - 1, -1, -1):
            e(f's_waitcnt vmcnt({k})'); e(f'ds_add_u32 v{areg}, v18 offset:{off}')
        e('s_mov_b64 exec, -1')
    def credit(name, need, areg):
        e(f's_cmp_ge_u32 s62, {need}'); e(f's_cbranch_scc1 {name}_ok')
        lab(name)
        e(f'ds_read_b32 v16, v{areg}')
        e('s_waitcnt lgkmcnt(0)')
        e('v_readfirstlane_b32 s62, v16')
        e(f's_cmp_lt_u32 s62, {need}'); e(f's_cbranch_scc1 {name}')
        lab(name + '_ok')
    def red32(r):
        e(f'v_permlane16_swap_b32 v{r}, v{r+2}'); e(f'v_permlane16_swap_b32 v{r+1}, v{r+3}')
        e(f'v_add_f32 v{r}, v{r}, v{r+2}'); e(f'v_add_f32 v{r+1}, v{r+1}, v{r+3}')
        e(f'v_permlane32_swap_b32 v{r}, v{r+1}')
        e(f'v_add_f32 v{r}, v{r}, v{r+1}')
        for m in ('row_ror:8', 'row_ror:4', 'row_ror:2'):
            e(f'v_add_f32_dpp v{r}, v{r}, v{r} {DPP(m)}')
    def rnd(r):
        e(f'v_cvt_pk_bf16_f32 v{r}, v{r}, v{r}'); e(f'v_and_b32 v{r}, s50, v{r}')
    def endwave():
        e('s_branch L_fin' if diag else 's_endpgm')


    L.append(HEADER.rstrip())
    L.append(f"; @launch grid=(256,1,1) block=(1024,1,1) lds={LDS_TOTAL}")
    L.append('.amdgcn_target "amdgcn-amd-amdhsa--gfx950"')
    L.append('.text'); L.append(f'.globl {KNAME}'); L.append('.p2align 8'); L.append(f'.type {KNAME},@function'); lab(KNAME)
    if opts.get('hold') and opts.get('holdpos') == 0: e('s_memrealtime s[62:63]'); e('s_waitcnt lgkmcnt(0)')
    KA = opts.get('ka', 0)
    if KA: e('s_load_dwordx16 s[8:23], s[0:1], 0')
    e('s_cmp_ge_u32 s2, 256'); e('s_cbranch_scc1 L_end')
    if not KA:
        e('s_load_dwordx16 s[8:23], s[0:1], 0')
        e('s_load_dwordx8 s[24:31], s[0:1], 64')
    if diag:
        for i in range(64, 96): e(f's_mov_b32 s{i}, 0')
    stamp(0)
    if opts.get('hold') and opts.get('holdpos') == 2: e('s_waitcnt lgkmcnt(0)'); e('s_memrealtime s[62:63]')
    e('v_lshrrev_b32 v1, 6, v0'); e('v_and_b32 v0, 63, v0')
    e('s_and_b32 s4, s2, 7'); e('v_readfirstlane_b32 s3, v1')
    if opts.get('xx'): e(f's_xor_b32 s4, s4, {opts["xx"]}')
    e('s_lshl_b32 s4, s4, 1'); e('s_lshr_b32 s5, s2, 7'); e('s_add_u32 s4, s4, s5')
    e('s_bfe_u32 s5, s2, 0x40003')
    e('v_and_b32 v2, 15, v0'); e('v_lshrrev_b32 v3, 4, v0')
    e('s_mul_i32 s53, s4, 9'); e('s_add_u32 s53, s53, s5')
    e('s_mul_i32 s51, s53, 171'); e('s_lshr_b32 s51, s51, 10')
    e('s_mul_i32 s52, s51, 6'); e('s_sub_u32 s52, s53, s52')
    if diag: e('s_mov_b32 s61, s3')
    for i in range(opts.get('padn', 0)): e('s_mov_b32 s46, 0x12345678')
    for i in range(opts.get('jumps', 0)):
        e(f's_branch L_j{i}'); L.append('.fill 255, 4, 0xbf810000'); lab(f'L_j{i}')
    e('s_cmp_ge_u32 s3, 8'); e('s_cbranch_scc1 L_A')
    def layernorm():
        e(f'v_add_u32 v113, {BASE+O_XB}, v113')
        e('s_mov_b32 s50, 0xffff0000'); e(f's_mov_b32 s48, {f2u(1.0/576)}'); e(f's_mov_b32 s49, {f2u(1e-5)}')
        e('s_waitcnt vmcnt(5)')
        X = list(range(22, 40))
        for k in range(9):
            e(f'v_lshlrev_b32 v{X[2*k]}, 16, v{104+k}'); e(f'v_and_b32 v{X[2*k+1]}, s50, v{104+k}')
        def half_allreduce(a, t):
            for m in (X1, X2, HM, RM): e(f'v_add_f32_dpp v{a}, v{a}, v{a} {m}')
            e(f'v_mov_b32 v{t}, v{a}'); e(f'v_permlane16_swap_b32 v{a}, v{t}'); e(f'v_add_f32 v{a}, v{a}, v{t}')
        e(f'v_pk_add_f32 v[40:41], v[22:23], v[24:25]')
        for k in range(4, 18, 2): e(f'v_pk_add_f32 v[40:41], v[40:41], v[{X[k]}:{X[k+1]}]')
        e('v_add_f32 v40, v40, v41')
        half_allreduce(40, 41)
        e('v_mul_f32 v40, s48, v40')
        e('v_mov_b32 v42, 0'); e('v_mov_b32 v43, 0')
        for k in range(0, 18, 2):
            e(f'v_sub_f32 v44, v{X[k]}, v40'); e(f'v_sub_f32 v45, v{X[k+1]}, v40')
            e('v_fmac_f32 v42, v44, v44'); e('v_fmac_f32 v43, v45, v45')
        e('v_add_f32 v42, v42, v43')
        half_allreduce(42, 43)
        e('v_mul_f32 v42, s48, v42')
        e('v_cvt_pk_bf16_f32 v40, v40, v42')
        e('v_and_b32 v42, s50, v40'); e('v_lshlrev_b32 v40, 16, v40')
        e('v_add_f32 v42, s49, v42'); e('v_cvt_pk_bf16_f32 v42, v42, v42'); e('v_and_b32 v42, s50, v42')
        e('v_sqrt_f32 v42, v42'); e('v_cvt_pk_bf16_f32 v42, v42, v42'); e('v_and_b32 v42, s50, v42')
        e('v_rcp_f32 v42, v42')
        for k in range(9):
            a, b = X[2*k], X[2*k+1]
            e(f'v_sub_f32 v{a}, v{a}, v40'); e(f'v_sub_f32 v{b}, v{b}, v40')
            e(f'v_cvt_pk_bf16_f32 v{104+k}, v{a}, v{b}')
            e(f'v_lshlrev_b32 v{a}, 16, v{104+k}'); e(f'v_and_b32 v{b}, s50, v{104+k}')
            e(f'v_mul_f32 v{a}, v{a}, v42'); e(f'v_mul_f32 v{b}, v{b}, v42')
            e(f'v_cvt_pk_bf16_f32 v{104+k}, v{a}, v{b}')
        for k in range(0, 8, 2): e(f'ds_write2_b32 v113, v{104+k}, v{105+k} offset0:{k} offset1:{k+1}')
        e('ds_write_b32 v113, v112 offset:32')
        signal(O_CX)
        stamp(11)
    if opts.get('bprio'): e(f's_setprio {opts["bprio"]}')
    e('s_sub_u32 s44, s5, 9'); e('s_lshl_b32 s59, s4, 3'); e('s_add_u32 s59, s59, s44'); e('s_add_u32 s59, s59, 144')
    e('s_movk_i32 s49, 0x2000')
    e('s_cmp_lt_u32 s5, 9')
    e('s_cselect_b32 s44, s52, s44')
    e('s_cselect_b32 s55, 9216, s49')
    e('s_cselect_b32 s59, s53, s59')
    e('s_cmp_ge_u32 s44, 3'); e('s_cselect_b32 s62, 1, 0')
    e('s_mul_i32 s47, s62, 3'); e('s_sub_u32 s44, s44, s47')
    e('s_lshr_b32 s49, s3, 2'); e('s_cmp_eq_u32 s5, 15'); e('s_cselect_b32 s49, s49, s62')
    e('s_lshl_b32 s49, s49, 8'); e('s_lshl_b32 s48, s4, 9'); e('s_add_u32 s48, s48, s49'); e('s_mul_i32 s47, s51, 384')
    e('s_cmp_lt_u32 s5, 9'); e('s_cselect_b32 s47, s47, s48')
    e('s_and_b32 s58, s3, 3'); e('s_mul_i32 s58, s58, 144'); e('s_add_u32 s58, s58, 5')
    e('s_lshl_b32 s44, s44, 3'); e('s_add_u32 s54, s3, s44'); e('s_mul_i32 s54, s54, 24')
    e('s_cmp_eq_u32 s5, 15'); e('s_cselect_b32 s54, s58, s54')
    e('s_mul_i32 s44, s54, s55'); e('s_cselect_b32 s55, 0xc000, s55'); e('s_add_u32 s44, s44, s47')
    e('s_mul_i32 s47, s55, 6'); e('v_mul_u32_u24 v10, s47, v3'); e('v_lshl_add_u32 v10, v2, 4, v10')
    e('v_lshrrev_b32 v11, 3, v2'); e(f'v_mul_u32_u24 v11, {9216-128}, v11'); e('v_add_u32 v11, v10, v11')
    e('s_mul_i32 s34, s55, 23'); e('s_add_u32 s34, s34, 256'); e('s_mov_b32 s35, 0x20000')
    e('s_waitcnt lgkmcnt(0)')
    e('s_cmp_eq_u32 s62, 0'); e('s_cselect_b32 s56, s20, s22'); e('s_cselect_b32 s57, s21, s23')
    e('s_cmp_lt_u32 s5, 9'); e('s_cselect_b32 s56, s56, s14'); e('s_cselect_b32 s57, s57, s15')
    e('s_add_u32 s32, s56, s44'); e('s_addc_u32 s33, s57, 0')
    e('s_cmp_lg_u32 s3, 0'); e('s_cbranch_scc1 L_B_nx')
    srd(40, 8, 9, None, 2304)
    e('v_lshrrev_b32 v22, 5, v0'); e('v_and_b32 v23, 31, v0')
    e('v_mul_u32_u24 v113, 1152, v22'); e('v_mad_u32_u24 v113, v23, 36, v113')
    e('buffer_load_dwordx4 v[104:107], v113, s[40:43], 0 offen')
    e('buffer_load_dwordx4 v[108:111], v113, s[40:43], 0 offen offset:16')
    e('buffer_load_dword v112, v113, s[40:43], 0 offen offset:32')
    lab('L_B_nx')
    D1 = opts.get('d1', 3)
    def d0load(t, so): e(f'buffer_load_dwordx4 v[{64+4*t}:{67+4*t}], v10, s[32:35], {so} offen{NT}')
    def d1load(p, so): e(f'buffer_load_dwordx4 v[{88+4*p}:{91+4*p}], v11, s[32:35], {so} offen offset:256{NT}')
    d0load(0, '0'); d0load(1, 's55')
    if KA: e('s_load_dwordx8 s[24:31], s[0:1], 64')
    e('s_lshl_b32 s44, s55, 1')
    e('s_cmp_ge_u32 s5, 9'); e('s_cbranch_scc1 L_B_dq')
    e('s_add_u32 s34, s34, 128')
    seq = [('1', 0, 0), ('0', 2, 2), ('0', 3, 3), ('1', 1, 2), ('0', 4, 4), ('0', 5, 5), ('1', 2, 4)]
    for n, (kind, idx, row) in enumerate(seq):
        i = n + 2
        if i == D1: e('s_barrier')
        thr(i, D1)
        if row: e(f's_mov_b32 s44, {row*9216}')
        so = 's44' if row else '0'
        (d0load if kind == '0' else d1load)(idx, so)
    e('s_branch L_B_isd')
    lab('L_B_dq')
    for t in range(2, 5):
        if t == D1: e('s_barrier')
        thr(t, D1)
        d0load(t, 's44')
        e('s_add_u32 s44, s44, s55')
    if D1 >= 5: e('s_barrier')
    e('s_cmp_lg_u32 s5, 15'); e('s_cbranch_scc1 L_B_isd')
    thr(5, D1)
    d0load(5, 's44')
    lab('L_B_isd')
    if opts.get('bprio') and opts.get('bprio0', 1): e('s_setprio 0')
    e(f'v_mov_b32 v15, {BASE}'); e('v_mov_b32 v18, 1')
    e(f's_and_b32 s44, s3, {LN-1}'); e('s_lshl_b32 s44, s44, 2'); e('v_add_u32 v9, s44, v15')
    if SM: drain(D1, O_PD, 9)
    else:
        if 'ho' in opts: e(f's_waitcnt vmcnt({opts["ho"]})')
        signal(O_PD, areg=9)
    e('s_cmp_lg_u32 s3, 0'); e('s_cbranch_scc1 L_B_noln')
    layernorm()
    lab('L_B_noln')
    if KA: e('s_waitcnt lgkmcnt(0)')
    stamp(1)
    epoch_load()
    masks(4)
    e('s_cmp_eq_u32 s5, 15'); e('s_cselect_b32 s44, 72, 12')
    e('v_lshrrev_b32 v9, 3, v2'); e('v_mul_u32_u24 v9, 1152, v9'); e('v_mad_u32_u24 v9, v3, s44, v9')
    e('s_lshl_b32 s44, s54, 1'); e('s_and_b32 s44, s44, -4'); e(f's_add_u32 s44, s44, {BASE+O_XB}'); e('v_add_u32 v9, s44, v9')
    e('s_mov_b32 s48, 0x01000100'); e('s_mov_b32 s49, 0x03020302')
    e('v_lshlrev_b32 v8, 4, v0')
    e('v_lshlrev_b32 v12, 4, v2'); e('v_lshl_add_u32 v12, v3, 7, v12')
    e('s_mul_i32 s44, s3, 1536'); e(f's_add_u32 s44, s44, {BASE+O_GP}'); e('v_add_u32 v13, s44, v8'); e('v_add_u32 v14, s44, v12')
    for k in range(4): e(f'v_mov_b32 v{56+k}, 0')
    spin('L_x_wait', O_CX, 1, sleep=2)
    e('s_cmp_eq_u32 s5, 15'); e('s_cbranch_scc1 L_B_xs')
    for p in range(3): e(f'ds_read2_b32 v[{24+2*p}:{25+2*p}], v9 offset0:{p} offset1:{p}')
    e('s_branch L_B_xd')
    lab('L_B_xs')
    for p in range(3): e(f'ds_read2_b32 v[{24+2*p}:{25+2*p}], v9 offset0:{6*p} offset1:{6*p+3}')
    e('s_mov_b32 s48, s49')
    lab('L_B_xd')
    e('s_waitcnt lgkmcnt(0)')
    stamp(2)
    for t in range(6):
        e(f'v_perm_b32 v31, v{24+t}, v{24+t}, s{48+(t&1)}')
        for j in range(4): e(f'v_and_b32 v{32+4*t+j}, v31, v{4+j}')
    e('s_waitcnt vmcnt(0)')
    e('s_cmp_eq_u32 s5, 15'); e('s_cbranch_scc1 L_B_m5')
    e('s_cmp_ge_u32 s5, 9'); e('s_cbranch_scc1 L_B_m0')
    for t in range(6):
        d = 60 if t % 2 == 0 else 100
        c = '0' if t < 2 else f'v[{d}:{d+3}]'
        e(f'v_mfma_f32_16x16x32_bf16 v[{d}:{d+3}], v[{32+4*t}:{35+4*t}], v[{88+4*(t>>1)}:{91+4*(t>>1)}], {c}')
    for k in range(4): e(f'v_add_f32_dpp v{60+k}, v{100+k}, v{60+k} {DPP("row_ror:8")}')
    lab('L_B_m5')
    e('v_mfma_f32_16x16x32_bf16 v[56:59], v[52:55], v[84:87], v[56:59]')
    lab('L_B_m0')
    for t in range(5):
        e(f'v_mfma_f32_16x16x32_bf16 v[56:59], v[{32+4*t}:{35+4*t}], v[{64+4*t}:{67+4*t}], v[56:59]')
    e('ds_write_b128 v13, v[56:59]')
    e('s_mov_b32 exec_lo, 0x00ff00ff'); e('s_mov_b32 exec_hi, 0x00ff00ff')
    e('ds_write_b128 v14, v[60:63] offset:1024')
    signal(O_CG)
    stamp(3)
    srd(36, 30, 31, None, WS_SPAN)
    finish_tag_setup(21)
    e('s_mov_b32 s46, 0')
    if opts.get('nopub1'): e('s_branch L_B_q')
    e('s_cmp_lg_u32 s3, 7'); e('s_cbranch_scc1 L_B_q')
    e(f'v_add_u32 v13, {BASE+O_GP}, v8'); e(f'v_add_u32 v14, {BASE+O_GP}, v12')
    e(f's_mul_i32 s56, s59, {RS}'); e(f's_add_u32 s56, s56, {HB}')
    spin('L_gu_wait', O_CG, 8)
    for m in range(2):
        for qd in range(4):
            r = 64 + 32 * m + 8 * qd
            e(f'ds_read_b128 v[{r}:{r+3}], v13 offset:{(4*m+qd)*1536}')
            e(f'ds_read_b128 v[{r+4}:{r+7}], v14 offset:{(4*m+qd)*1536+1024}')
        e('s_waitcnt lgkmcnt(0)')
        r0 = 64 + 32 * m
        for qd in range(1, 4):
            for k in range(0, 8, 2): e(f'v_pk_add_f32 v[{r0+k}:{r0+k+1}], v[{r0+k}:{r0+k+1}], v[{r0+8*qd+k}:{r0+8*qd+k+1}]')
    def rtag(r0, n):
        for k in range(n): e(f'v_add_u32 v{r0+k}, 0x200, v{r0+k}')
        tag(r0, n, 21)
    e('s_cmp_lg_u32 s5, 15'); e('s_cbranch_scc1 L_B_pl')
    for m in range(2):
        rtag(64 + 32 * m, 4)
        e(f'buffer_store_dwordx4 v[{64+32*m}:{67+32*m}], v8, s[36:39], s56 offen offset:{RS*m} sc1')
    e('s_branch L_B_x1')
    lab('L_B_pl')
    for k in range(0, 8, 2): e(f'v_pk_add_f32 v[{64+k}:{65+k}], v[{64+k}:{65+k}], v[{96+k}:{97+k}]')
    rtag(64, 8)
    e(f'buffer_store_dwordx4 v[64:67], v8, s[36:39], s56 offen{P1}')
    e('s_cmp_ge_u32 s5, 9'); e('s_cbranch_scc1 L_B_xcc')
    e('s_mov_b32 exec_lo, 0x00ff00ff'); e('s_mov_b32 exec_hi, 0x00ff00ff')
    e(f'buffer_store_dwordx4 v[68:71], v12, s[36:39], s56 offen offset:1024{P1}')
    lab('L_B_xcc')
    e('s_getreg_b32 s44, hwreg(HW_REG_XCC_ID, 0, 4)'); e('s_lshl_b32 s44, s44, 16'); e('s_or_b32 s44, s44, s7')
    e('s_mov_b64 exec, 0xff')
    for k in range(4): e(f'v_mov_b32 v{72+k}, s44')
    e(f'buffer_store_dwordx4 v[72:75], v8, s[36:39], s56 offen offset:1536{P1}')
    e('s_mov_b64 exec, -1')
    e('s_branch L_B_x1')
    lab('L_B_q')
    e('s_cmp_lg_u32 s3, 0'); e('s_cbranch_scc1 L_B_x1')
    e('v_lshrrev_b32 v10, 5, v0'); e('v_and_b32 v11, 31, v0'); e(f'v_mul_u32_u24 v9, {3*RS}, v10'); e('v_lshl_add_u32 v9, v11, 4, v9')
    e(f'v_mul_u32_u24 v13, {RS}, v10'); e('v_lshl_add_u32 v13, v11, 4, v13')
    e(f's_mul_i32 s58, s4, {8*RS}'); e(f's_add_u32 s58, s58, {HB+144*RS}'); e('s_lshr_b32 s47, s5, 3'); e('s_lshl_b32 s47, s47, 9'); e('s_add_u32 s54, s58, s47')
    e(f's_add_u32 s55, s54, {6*RS}')
    e('v_min_u32 v12, 5, v0'); e(f'v_mul_u32_u24 v12, {RS}, v12')
    spin('L_k_wait', O_CK, opts.get('ckn', 1), sleep=4)
    stamp(9)
    if opts.get('nopoll1'): e('s_branch L_qok')
    lab('L_qpoll')
    for p in range(3):
        e(f'buffer_load_dwordx4 v[{24+4*p}:{27+4*p}], v9, s[36:39], s54 offen offset:{p*RS} sc1')
    e('buffer_load_dwordx4 v[36:39], v13, s[36:39], s55 offen sc1')
    e('buffer_load_dwordx4 v[40:43], v12, s[36:39], s58 offen offset:1536 sc1')
    e('s_waitcnt vmcnt(0)')
    untag(list(range(24, 44)), 22)
    poll_tail(22, 'L_qpoll', 'L_qok', sleep=8)
    lab('L_qok')
    for p in range(1, 4):
        for k in (0, 2): e(f'v_pk_add_f32 v[{24+k}:{25+k}], v[{24+k}:{25+k}], v[{24+4*p+k}:{25+4*p+k}]')
    e('v_cvt_pk_bf16_f32 v24, v24, v25'); e('v_cvt_pk_bf16_f32 v25, v26, v27')
    e('v_lshlrev_b32 v9, 8, v10'); e('v_lshl_add_u32 v9, v2, 4, v9'); e('v_and_b32 v10, 1, v3'); e('v_lshl_add_u32 v9, v10, 3, v9'); e(f'v_add_u32 v9, {BASE}, v9')
    e(f'ds_write_b64 v9, v[24:25] offset:{O_QT}')
    e('s_getreg_b32 s44, hwreg(HW_REG_XCC_ID, 0, 4)'); e('s_lshl_b32 s44, s44, 16')
    e('v_cmp_ne_u32 vcc, s44, v40')
    e('s_branch L_near' if opts.get('nopoll1') else 's_cbranch_vccz L_near')
    signal(O_FAR)
    lab('L_near')
    signal(O_CQ)
    lab('L_B_x1')
    def kvoff():
        e('s_lshr_b32 s6, s5, 3'); e('s_lshl_b32 s6, s6, 4'); e('s_add_u32 s6, s6, s4'); e('s_lshl_b32 s6, s6, 23')
        if PAT == 'i': e('s_and_b32 s44, s5, 7'); e('s_lshl_b32 s44, s44, 17'); e('s_add_u32 s6, s6, s44')
        e('s_add_u32 s6, s6, 0x700000')
    kvoff()
    srd(32, 12, 13, 's6', KVN)
    def kvstart(d):
        if LN < 8:
            e(f's_and_b32 s{d}, s5, 7'); e(f's_lshl_b32 s{d}, s{d}, 15')
            e(f's_lshr_b32 s44, s3, {LB}'); e(f's_lshl_b32 s44, s44, {4+LB}'); e('s_lshr_b32 s44, s44, 5'); e('s_lshl_b32 s44, s44, 18'); e(f's_add_u32 s{d}, s{d}, s44')
            e(f's_lshr_b32 s44, s3, {LB}'); e(f's_lshl_b32 s44, s44, {4+LB}'); e('s_add_u32 s49, s5, s4'); e('s_lshl_b32 s49, s49, 3'); e('s_add_u32 s44, s44, s49')
            e(f's_and_b32 s49, s3, {LN-1}'); e('s_add_u32 s44, s44, s49'); e('s_and_b32 s44, s44, 31'); e('s_lshl_b32 s44, s44, 10'); e(f's_add_u32 s{d}, s{d}, s44')
            return
        if PAT == 'i': e(f's_lshl_b32 s{d}, s5, 13')
        elif PAT == 'm': e(f's_and_b32 s{d}, s5, 7'); e(f's_lshl_b32 s{d}, s{d}, 13')
        elif PAT == 'j': e(f's_and_b32 s{d}, s5, 7'); e(f's_lshl_b32 s{d}, s{d}, 15')
        elif PAT == 'r':
            e(f's_and_b32 s{d}, s5, 7'); e(f's_lshl_b32 s{d}, s{d}, 15'); e('s_add_u32 s44, s5, s4'); e('s_and_b32 s44, s44, 3'); e('s_lshl_b32 s44, s44, 13'); e(f's_add_u32 s{d}, s{d}, s44')
        elif PAT == 'r2':
            e(f's_and_b32 s{d}, s5, 7'); e(f's_lshl_b32 s{d}, s{d}, 15'); e('s_lshr_b32 s44, s5, 2'); e('s_and_b32 s44, s44, 2'); e('s_add_u32 s44, s44, s4'); e('s_and_b32 s44, s44, 3'); e('s_lshl_b32 s44, s44, 13'); e(f's_add_u32 s{d}, s{d}, s44')
        elif PAT in ('h', 'h2', 'h3'):
            e(f's_and_b32 s{d}, s5, 7'); e(f's_lshl_b32 s{d}, s{d}, 12')
            if PAT == 'h2': e('s_and_b32 s44, s4, 3'); e('s_lshl_b32 s44, s44, 10'); e(f's_add_u32 s{d}, s{d}, s44')
            if PAT == 'h3': e('s_add_u32 s44, s4, s3'); e('s_and_b32 s44, s44, 3'); e('s_lshl_b32 s44, s44, 10'); e(f's_add_u32 s{d}, s{d}, s44')
            e('s_lshl_b32 s44, s3, 15'); e(f's_add_u32 s{d}, s{d}, s44')
            return
        elif PAT == 'p':
            e(f's_and_b32 s{d}, s5, 7'); e(f's_lshl_b32 s{d}, s{d}, 13'); e('s_lshr_b32 s44, s3, 1'); e('s_lshl_b32 s44, s44, 16'); e(f's_add_u32 s{d}, s{d}, s44')
            e('s_and_b32 s44, s3, 1'); e('s_lshl_b32 s44, s44, 10'); e(f's_add_u32 s{d}, s{d}, s44')
            return
        e('s_lshl_b32 s44, s3, 10'); e(f's_add_u32 s{d}, s{d}, s44')
    def kvnext(d, n):
        if LN < 8:
            e(f's_add_u32 s44, s{d}, {LN*1024}'); e('s_and_b32 s44, s44, 0x7c00'); e(f's_andn2_b32 s{d}, s{d}, 0x7c00'); e(f's_or_b32 s{d}, s{d}, s44')
            if ((n + 1) * LN) % 32 == 0: e(f's_add_u32 s{d}, s{d}, 0x40000')
        elif PAT == 'i':
            e(f's_add_u32 s{d}, s{d}, 0x2000'); e(f's_and_b32 s{d}, s{d}, 0x1ffff')
        elif PAT == 'm':
            e(f's_add_u32 s{d}, s{d}, 0x2000'); e(f's_and_b32 s{d}, s{d}, 0xffff'); e(f's_or_b32 s{d}, s{d}, {(n+1)*65536}')
        elif PAT == 'j':
            e(f's_add_u32 s{d}, s{d}, {0x2000 if n % 4 < 3 else 0x40000 - 0x6000}')
        elif PAT in ('h', 'h2', 'h3'):
            e(f's_add_u32 s44, s{d}, 0x400'); e('s_and_b32 s44, s44, 0xc00'); e(f's_andn2_b32 s{d}, s{d}, 0xc00'); e(f's_or_b32 s{d}, s{d}, s44')
            if n % 4 == 3:
                e(f's_add_u32 s44, s{d}, 0x1000'); e('s_and_b32 s44, s44, 0x7000'); e(f's_andn2_b32 s{d}, s{d}, 0x7000'); e(f's_or_b32 s{d}, s{d}, s44'); e(f's_add_u32 s{d}, s{d}, 0x40000')
        elif PAT == 'p':
            e(f's_add_u32 s{d}, s{d}, {0x800 if n % 4 < 3 else 0x40000 - 0x1800}')
        elif PAT in ('r', 'r2'):
            e(f's_add_u32 s44, s{d}, 0x2000'); e('s_and_b32 s44, s44, 0x6000'); e(f's_andn2_b32 s{d}, s{d}, 0x6000'); e(f's_or_b32 s{d}, s{d}, s44')
            if n % 4 == 3: e(f's_add_u32 s{d}, s{d}, 0x40000')
    kvstart(47)
    e('s_lshl_b32 s44, s3, 2'); e('v_add_u32 v9, s44, v15')
    stamp(5)
    spin('L_kd_wait', O_VD - 4 * LN, 1, areg=9, sleep=opts.get('pdsleep', 1))
    if SM: e('s_mov_b32 s62, s44'); e(f'v_add_u32 v17, {O_VD - 4 * LN}, v9')
    stamp(4)
    def vloop(dv, dvt):
        for n in range(16):
            if SM and 0 < n < dv: credit(f'L_vc{n}', min(n + 1 - opts.get('sml', 0), DK), 17)
            if n < dvt: thr(n, dv)
            else: thr(n, opts.get('dv2', 0))
            e(f'buffer_load_dwordx4 v[{64+4*n}:{67+4*n}], v8, s[32:35], s47 offen{NTV}')
            if n < 15: kvnext(47, n)
            if n == 15:
                signal(O_CV)
                if SM:
                    e(f's_cmp_ge_u32 s3, {8-LN}'); e('s_cbranch_scc1 L_v_done')
                    drain(dv, O_VD, 9)
                elif LN < 8:
                    e(f's_cmp_ge_u32 s3, {8-LN}'); e('s_cbranch_scc1 L_v_done')
                    e(f's_waitcnt vmcnt({opts.get("hov", opts["ho"])})')
                    signal(O_VD, areg=9)
    if opts.get('dvwo'):
        e('s_sub_u32 s44, s5, 9'); e('s_cmp_ge_u32 s44, 6'); e('s_cbranch_scc1 L_v_mlp')
        vloop(opts['dvwo'], opts.get('dvtwo', 16))
        e('s_branch L_v_done')
        lab('L_v_mlp')
    vloop(DV, opts.get('dvt', 16))
    lab('L_v_done')
    stamp(6)
    e('v_lshrrev_b32 v10, 3, v2'); e('v_lshlrev_b32 v10, 11, v10'); e('v_lshl_add_u32 v10, v3, 6, v10')
    e('s_lshl_b32 s44, s3, 8'); e(f's_add_u32 s44, s44, {BASE+O_PT}'); e('v_add_u32 v10, s44, v10')
    e('v_lshrrev_b32 v12, 5, v0'); e('v_lshlrev_b32 v12, 3, v12'); e(f'v_add_u32 v12, {BASE+O_ML}, v12')
    e('v_and_b32 v11, 7, v0'); e('v_lshl_add_u32 v11, v11, 4, v12')
    e('s_lshl_b32 s44, s3, 4'); e('v_add_u32 v12, s44, v12')
    e(f's_mov_b32 s49, {LOG2E}')
    e(f'v_add_u32 v13, {BASE+O_OP}, v8'); e('s_lshl_b32 s44, s3, 10'); e('v_add_u32 v14, s44, v13')
    e('s_lshl_b32 s56, s4, 4'); e('s_add_u32 s56, s56, s5'); e('s_lshl_b32 s56, s56, 10'); e(f's_add_u32 s56, s56, {OB}')
    spin('L_p_wait', O_CP, 8)
    stamp(7)
    for k in range(4): e(f'ds_read_b128 v[{40+4*k}:{43+4*k}], v10 offset:{16*k}')
    e('ds_read_b32 v16, v11'); e('ds_read_b32 v17, v12'); e(f'ds_read_b32 v19, v15 offset:{O_FAR}')
    e('s_waitcnt lgkmcnt(6)')
    def pv_and(n):
        a = 24 + 4 * (n & 1)
        for j in range(4): e(f'v_and_b32 v{a+j}, v{40+n}, v{4+j}')
    pv_and(0)
    for n in range(16):
        if n == 3:
            e('s_waitcnt lgkmcnt(0)')
            e(f'v_max_f32_dpp v16, v16, v16 {X1}')
        if n == 4: e(f'v_max_f32_dpp v16, v16, v16 {X2}')
        if n == 5: e(f'v_max_f32_dpp v16, v16, v16 {HM}')
        if n == 6: e('v_sub_f32 v17, v17, v16'); e('v_mul_f32 v17, s49, v17')
        if n == 7: e('v_exp_f32 v17, v17')
        if n == 8: e('v_readfirstlane_b32 s57, v19')
        if n < 15: pv_and(n + 1)
        a = 24 + 4 * (n & 1)
        e(f's_waitcnt vmcnt({15-n})')
        c = '0' if n == 0 else 'v[32:35]'
        e(f'v_mfma_f32_16x16x32_bf16 v[32:35], v[{a}:{a+3}], v[{64+4*n}:{67+4*n}], {c}')
    stamp(8)
    e('v_pk_mul_f32 v[32:33], v[32:33], v[16:17] op_sel:[0,1]'); e('v_pk_mul_f32 v[34:35], v[34:35], v[16:17] op_sel:[0,1]')
    e('ds_write_b128 v14, v[32:35]')
    signal(O_CO, rtn=20)
    for w in range(8): e(f'ds_read_b128 v[{64+4*w}:{67+4*w}], v13 offset:{w*1024}')
    e('s_waitcnt lgkmcnt(8)')
    e('v_readfirstlane_b32 s44, v20')
    e('s_cmp_lg_u32 s44, 7'); e('s_cbranch_scc1 L_exit')
    def padd(a, b):
        for k in (0, 2): e(f'v_pk_add_f32 v[{a+k}:{a+k+1}], v[{a+k}:{a+k+1}], v[{b+k}:{b+k+1}]')
    e('s_waitcnt lgkmcnt(6)'); padd(64, 68)
    e('s_waitcnt lgkmcnt(4)'); padd(72, 76); padd(64, 72)
    e('s_waitcnt lgkmcnt(2)'); padd(80, 84); padd(64, 80)
    e('s_waitcnt lgkmcnt(0)'); padd(88, 92); padd(64, 88)
    tag(64, 4, 21)
    if opts.get('omlp'): e('s_cmp_lt_u32 s5, 9'); e('s_cbranch_scc1 L_ofar')
    e('s_cmp_lg_u32 s57, 0'); e('s_cbranch_scc1 L_ofar')
    e(f'buffer_store_dwordx4 v[64:67], v8, s[36:39], s56 offen{opts.get("ofl", "")}')
    lab('L_odone')
    if opts.get('wb') == 1:
        e('s_cmp_lg_u32 s5, 15'); e('s_cbranch_scc1 L_nowb'); e('s_bitcmp1_b32 s4, 0'); e('s_cbranch_scc1 L_nowb')
        e('buffer_wbl2 sc1')
        lab('L_nowb')
    stamp(10)
    if BAR and ONE == 1: pass
    elif BAR:
        e('s_cmp_ge_u32 s5, 9'); e('s_cbranch_scc1 L_exit')
        e('s_barrier')
    else:
        signal(O_CO)
    endwave()
    lab('L_ofar')
    e('buffer_store_dwordx4 v[64:67], v8, s[36:39], s56 offen sc1')
    e('s_branch L_odone')

    lab('L_A')
    if KA: e('s_load_dwordx8 s[24:31], s[0:1], 64')
    e('s_sub_u32 s3, s3, 8')
    e(f'v_mov_b32 v15, {BASE}'); e('v_mov_b32 v18, 1')
    e('s_cmp_lg_u32 s3, 0'); e('s_cbranch_scc1 L_A_n0')
    e('v_lshl_add_u32 v9, v0, 3, v15'); e('v_mov_b32 v10, 0'); e('v_mov_b32 v11, 0')
    e('ds_write_b64 v9, v[10:11]')
    lab('L_A_n0')
    if opts.get('codepf', True):
        e('s_cmp_lg_u32 s3, 1'); e('s_cbranch_scc1 L_A_n1')
        e('s_getpc_b64 s[40:41]')
        lab('L_pc')
        e(f's_sub_u32 s40, s40, L_pc-{KNAME}'); e('s_subb_u32 s41, s41, 0')
        e('s_bfe_u32 s44, s2, 0x20003'); e('s_mul_i32 s44, s44, 3072')
        e('v_lshlrev_b32 v9, 4, v0'); e('v_add_u32 v9, s44, v9')
        e('global_load_dwordx4 v[20:23], v9, s[40:41]'); e('global_load_dwordx4 v[24:27], v9, s[40:41] offset:1024')
        e('global_load_dwordx4 v[28:31], v9, s[40:41] offset:2048')
        lab('L_A_n1')
    kvoff()
    e('v_xor_b32 v4, v2, v3'); e('v_lshlrev_b32 v4, 4, v4'); e('v_lshl_add_u32 v4, v3, 8, v4')
    e('v_xor_b32 v5, 64, v4'); e('v_xor_b32 v6, 0x80, v4'); e('v_xor_b32 v7, 0xc0, v4')
    e('s_lshl_b32 s47, s3, 14'); e('s_mov_b32 m0, s47')
    kvstart(48)
    e('s_lshl_b32 s44, s3, 2'); e('v_add_u32 v53, s44, v15')
    e('s_mov_b32 s46, 0')
    e('s_waitcnt lgkmcnt(0)')
    srd(32, 10, 11, 's6', KVN)
    epoch_load()
    e('s_barrier')
    if LN < 8:
        e(f's_cmp_lt_u32 s3, {LN}'); e('s_cbranch_scc1 L_pd_wait')
        spin('L_kc_wait', O_KD - 4 * LN, 1, areg=53, sleep=opts.get('pdsleep', 1))
        e('s_branch L_pd_wait_ok')
    spin('L_pd_wait', O_PD, 1 if SM else 8 // LN, areg=53, sleep=opts.get('pdsleep', 1))
    if SM:
        e('s_mov_b32 s62, s44')
        e(f's_cmp_lt_u32 s3, {LN}'); e(f's_cselect_b32 s44, {O_PD}, {O_KD - 4 * LN}'); e('v_add_u32 v17, s44, v53')
    def kloop(dk):
        for n in range(16):
            if SM and 0 < n < dk: credit(f'L_kc{n}', n + 1 - opts.get('sml', 0), 17)
            thr(n, dk)
            e(f'buffer_load_dwordx4 v{4+(n&3)}, s[32:35], s48 offen{NTK} lds')
            if n < 15: e('s_add_u32 m0, m0, 0x400'); kvnext(48, n)
            if n == opts.get('ksig', 10): signal(O_CK)
            if n == opts.get('kdsig', 15):
                if SM: drain(dk, O_KD, 53)
                else:
                    if 'ho' in opts: e(f's_waitcnt vmcnt({opts.get("hok", opts.get("hov", opts["ho"]))})')
                    signal(O_KD, areg=53)
    if opts.get('dkwo'):
        e('s_sub_u32 s44, s5, 9'); e('s_cmp_ge_u32 s44, 6'); e('s_cbranch_scc1 L_k_mlp')
        kloop(opts['dkwo'])
        e('s_branch L_k_done')
        lab('L_k_mlp')
    kloop(DK)
    lab('L_k_done')
    if opts.get('hold') and opts.get('holdpos') == 3: e('s_memrealtime s[62:63]')
    stamp(1)
    srd(36, 30, 31, None, WS_SPAN)
    for s in range(4):
        e(f'v_or_b32 v{4+s}, {4*s}, v3'); e(f'v_xor_b32 v{4+s}, v{4+s}, v2'); e(f'v_lshlrev_b32 v{4+s}, 4, v{4+s}')
        e(f'v_lshl_add_u32 v{4+s}, v2, 8, v{4+s}'); e(f'v_add_u32 v{4+s}, s47, v{4+s}')
    e('v_and_b32 v12, 1, v2'); e('v_lshlrev_b32 v12, 8, v12'); e('v_lshl_add_u32 v12, v3, 4, v12')
    e(f'v_add_u32 v12, {BASE+O_QT}, v12')
    e(f'v_mov_b32 v13, {BASE+O_ZERO}')
    e('v_lshrrev_b32 v14, 2, v2')
    for T in range(4):
        e(f'v_cmp_eq_u32 vcc, {T}, v14'); e(f'v_cndmask_b32 v{8+T}, v13, v12, vcc')
    spin('L_q_wait', O_CQ, 1)
    stamp(2)
    for T in range(4):
        for s in range(4):
            r = 64 + 16 * T + 4 * s
            e(f'ds_read_b128 v[{r}:{r+3}], v{8+T} offset:{64*s}')
        if T in (1, 2): e('s_waitcnt lgkmcnt(4)')
    def kread(T):
        e(f's_waitcnt vmcnt({12-4*T})')
        for s in range(4):
            r = 32 + 16 * (T & 1) + 4 * s
            e(f'ds_read_b128 v[{r}:{r+3}], v{4+s} offset:{4096*T}')
    e('s_waitcnt lgkmcnt(0)')
    kread(0)
    for T in range(4):
        if T < 3: kread(T + 1)
        e(f's_waitcnt lgkmcnt({4 if T < 3 else 0})')
        for s in range(4):
            r = 32 + 16 * (T & 1) + 4 * s; q = 64 + 16 * T + 4 * s
            c = '0' if (T == 0 and s == 0) else 'v[20:23]'
            e(f'v_mfma_f32_16x16x32_bf16 v[20:23], v[{q}:{q+3}], v[{r}:{r+3}], {c}')
        if T < 2: e('s_nop 7')
    finish_tag_setup(19)
    e(f's_mov_b32 s48, {SCALE}'); e(f's_mov_b32 s49, {LOG2E}'); e('s_mov_b32 s50, 0xffff0000')
    e('v_cvt_pk_bf16_f32 v24, v20, v21')
    e('v_lshlrev_b32 v20, 16, v24'); e('v_and_b32 v21, s50, v24')
    e('v_mul_f32 v20, s48, v20'); e('v_mul_f32 v21, s48, v21')
    e('v_cvt_pk_bf16_f32 v24, v20, v21')
    e('v_lshlrev_b32 v20, 16, v24'); e('v_and_b32 v21, s50, v24')
    def wave_reduce2(op, a, b, sa, sb):
        e(f'{op}_dpp v{a}, v{sa}, v{sa} {X1}'); e(f'{op}_dpp v{b}, v{sb}, v{sb} {X1}')
        for m in (X2, HM, RM, 'row_bcast:15 row_mask:0xa bank_mask:0xf', 'row_bcast:31 row_mask:0xc bank_mask:0xf'):
            e(f'{op}_dpp v{a}, v{a}, v{a} {m}'); e(f'{op}_dpp v{b}, v{b}, v{b} {m}')
    wave_reduce2('v_max_f32', 24, 26, 20, 21)
    e('v_readlane_b32 s54, v24, 63'); e('v_readlane_b32 s55, v26, 63')
    e('v_subrev_f32 v20, s54, v20'); e('v_subrev_f32 v21, s55, v21')
    e('v_mul_f32 v20, s49, v20'); e('v_mul_f32 v21, s49, v21')
    e('v_exp_f32 v20, v20'); e('v_exp_f32 v21, v21')
    e('v_and_b32 v28, 3, v0'); e('v_lshlrev_b32 v28, 6, v28'); e('v_and_b32 v29, 0x3c, v0'); e('v_add_u32 v28, v28, v29')
    e('s_lshl_b32 s44, s3, 8'); e(f's_add_u32 s44, s44, {BASE}'); e('v_add_u32 v28, s44, v28')
    e('v_cvt_pk_bf16_f32 v22, v20, v20'); e('v_cvt_pk_bf16_f32 v23, v21, v21')
    e(f'ds_write_b32 v28, v22 offset:{O_PT}'); e(f'ds_write_b32 v28, v23 offset:{O_PT+2048}')
    wave_reduce2('v_add_f32', 25, 27, 20, 21)
    e('s_lshl_b32 s44, s3, 4'); e(f's_add_u32 s44, s44, {BASE}'); e('v_mov_b32 v28, s44')
    e('s_mov_b32 exec_lo, 0'); e('s_mov_b32 exec_hi, 0x80000000')
    e(f'ds_write_b128 v28, v[24:27] offset:{O_ML}')
    signal(O_CP, rtn=17)
    e('s_waitcnt lgkmcnt(0)')
    stamp(4)
    e('v_readfirstlane_b32 s44, v17')
    if opts.get('nopub1'): e('s_branch L_A_role')
    e('s_cmp_lg_u32 s44, 7'); e('s_cbranch_scc1 L_A_role')
    e('v_and_b32 v20, 7, v0'); e('v_lshlrev_b32 v20, 4, v20'); e('v_and_b32 v21, 8, v0'); e('v_add_u32 v20, v21, v20')
    e(f'v_add_u32 v20, {BASE}, v20')
    e(f'ds_read_b64 v[22:23], v20 offset:{O_ML}'); e(f'ds_read_b32 v28, v15 offset:{O_FAR}')
    e('s_lshl_b32 s44, s4, 12'); e('s_lshl_b32 s47, s5, 8'); e('s_add_u32 s44, s44, s47'); e(f's_add_u32 s44, s44, {MLB}')
    e('v_lshlrev_b32 v21, 4, v0')
    e('s_waitcnt lgkmcnt(0)')
    e(f'v_max_f32_dpp v24, v22, v22 {X1}'); e(f'v_max_f32_dpp v24, v24, v24 {X2}'); e(f'v_max_f32_dpp v24, v24, v24 {HM}')
    e('v_sub_f32 v22, v22, v24'); e('v_mul_f32 v22, s49, v22'); e('v_exp_f32 v22, v22')
    e('v_mul_f32 v25, v22, v23')
    e(f'v_add_f32_dpp v25, v25, v25 {X1}'); e(f'v_add_f32_dpp v25, v25, v25 {X2}'); e(f'v_add_f32_dpp v25, v25, v25 {HM}')
    tag(24, 2, 19)
    e('v_mov_b32 v26, v24'); e('v_mov_b32 v27, v25')
    e('v_readfirstlane_b32 s47, v28')
    e('s_mov_b64 exec, 0xffff')
    e('s_cmp_lg_u32 s47, 0'); e('s_cbranch_scc1 L_mlfar')
    e(f'buffer_store_dwordx4 v[24:27], v21, s[36:39], s44 offen{P1}')
    e('s_branch L_mldone')
    lab('L_mlfar')
    e('buffer_store_dwordx4 v[24:27], v21, s[36:39], s44 offen sc1')
    lab('L_mldone')
    e('s_mov_b64 exec, -1')
    lab('L_A_role')
    if opts.get('ptp'):
        e('s_cmp_lg_u32 s3, 6'); e('s_cbranch_scc1 L_A_role2')
        e('s_lshl_b32 s44, s4, 4'); e('s_add_u32 s44, s44, s5'); e('s_lshl_b32 s44, s44, 10'); e(f's_add_u32 s44, s44, {OB}')
        e('v_lshlrev_b32 v20, 4, v0')
        e('buffer_load_dwordx4 v[60:63], v20, s[36:39], s44 offen sc1')
        lab('L_A_role2')
    e('s_cmp_lt_u32 s5, 9'); e('s_cbranch_scc1 L_A_mlp')
    e('s_cmp_eq_u32 s5, 15'); e('s_cbranch_scc1 L_exit')
    e('s_cmp_ge_u32 s5, 12'); e('s_cselect_b32 s53, 1, 0')
    e('s_mul_i32 s44, s53, 3'); e('s_sub_u32 s54, s5, 9'); e('s_sub_u32 s54, s54, s44')
    e('s_lshl_b32 s55, s4, 1'); e('s_add_u32 s55, s55, s53')
    e('s_lshl_b32 s44, s55, 3'); e('s_add_u32 s44, s44, s3'); e(f's_mul_i32 s44, s44, {16*1152}')
    e('s_mul_i32 s47, s54, 384'); e('s_add_u32 s44, s44, s47')
    srd(32, 16, 17, 's44', 15 * 1152 + 384)
    tile_addr()
    e('s_lshl_b32 s57, s4, 12'); e('s_lshl_b32 s47, s53, 7'); e('s_add_u32 s57, s57, s47'); e(f's_add_u32 s57, s57, {MLB}')
    e('v_lshlrev_b32 v8, 8, v2')
    e('s_lshl_b32 s58, s4, 4'); e('s_add_u32 s58, s58, s3'); e('s_lshl_b32 s58, s58, 10'); e('s_lshl_b32 s47, s53, 9'); e('s_add_u32 s58, s58, s47'); e(f's_add_u32 s58, s58, {OB}')
    e('v_lshrrev_b32 v12, 5, v0'); e('v_and_b32 v13, 31, v0'); e('v_lshlrev_b32 v7, 13, v12'); e('v_lshl_add_u32 v7, v13, 4, v7')
    e(f'v_mul_u32_u24 v12, {8*272}, v12'); e('v_lshl_add_u32 v12, v2, 4, v12'); e('v_and_b32 v13, 1, v3'); e('v_lshl_add_u32 v12, v13, 3, v12')
    e('s_mul_i32 s44, s3, 272'); e(f's_add_u32 s44, s44, {STG}'); e('v_add_u32 v12, s44, v12')
    e('v_mul_u32_u24 v9, 272, v2'); e('v_lshl_add_u32 v9, v3, 4, v9'); e(f'v_add_u32 v9, {STG}, v9')
    e('s_add_u32 s59, s55, 64'); e(f's_mul_i32 s59, s59, {FS}'); e('s_mul_i32 s47, s54, 1536'); e('s_add_u32 s59, s59, s47')
    e('s_lshl_b32 s44, s3, 8'); e('s_add_u32 s59, s59, s44'); e(f's_add_u32 s59, s59, {FB}')
    e('s_mul_i32 s44, s3, 6144'); e('s_mov_b32 m0, s44'); e('s_movk_i32 s47, 9216'); e('s_add_u32 s52, s3, 8')
    spin('L_wo_pwait', O_CP, 8, sleep=2)
    e('s_lshl_b32 s44, s3, 2'); e('v_add_u32 v53, s44, v15')
    spin('L_wo_vwait', O_CV, opts.get('cvwo', 8))
    stamp(5)
    if opts.get('pto', 1): e('buffer_load_dwordx4 v[28:31], v7, s[36:39], s58 offen sc1')
    e('buffer_load_dwordx4 v[20:23], v8, s[36:39], s57 offen sc1')
    for n in range(6):
        thr(n, DO)
        e(f"buffer_load_dwordx4 v{4+n if n < 3 else 46+n}, s[32:35], {'0' if n < 3 else 's47'} offen{NT} lds")
        if n < 5: e('s_add_u32 m0, m0, 0x400')
    stamp(6)
    e('s_waitcnt vmcnt(6)')
    e('s_branch L_mlok' if opts.get('nopoll1') else 's_branch L_mlchk')
    lab('L_mlpoll')
    e('buffer_load_dwordx4 v[20:23], v8, s[36:39], s57 offen sc1')
    e('s_waitcnt vmcnt(0)')
    lab('L_mlchk')
    untag([20, 21, 22, 23], 24)
    poll_tail(24, 'L_mlpoll', 'L_mlok', sleep=4)
    lab('L_mlok')
    e(f'v_max_f32_dpp v24, v20, v20 {X1}'); e(f'v_max_f32_dpp v24, v24, v24 {X2}'); e(f'v_max_f32_dpp v24, v24, v24 {HM}')
    e('v_sub_f32 v20, v20, v24'); e('v_mul_f32 v20, s49, v20'); e('v_exp_f32 v20, v20')
    e('v_mul_f32 v25, v20, v21')
    e(f'v_add_f32_dpp v25, v25, v25 {X1}'); e(f'v_add_f32_dpp v25, v25, v25 {X2}'); e(f'v_add_f32_dpp v25, v25, v25 {HM}')
    e('v_rcp_f32 v25, v25'); e('v_mul_f32 v14, v20, v25')
    e('v_readlane_b32 s54, v14, s3'); e('v_readlane_b32 s55, v14, s52')
    e('v_mov_b32 v14, s55'); e('s_mov_b32 exec_hi, 0'); e('v_mov_b32 v14, s54'); e('s_mov_b32 exec_hi, -1')
    e('s_waitcnt vmcnt(0)')
    e('buffer_load_dwordx4 v[20:23], v7, s[36:39], s58 offen sc1')
    stamp(7)
    if BAR:
        e('s_barrier')
        e('s_cmp_ge_u32 s3, 6'); e('s_cbranch_scc1 L_ochk')
    else:
        signal(O_CW)
        e('s_cmp_ge_u32 s3, 6'); e('s_cbranch_scc1 L_ochk')
        spin('L_w_wait', O_CW, 8, sleep=0)
    for tl in range(2):
        for s in range(4):
            for hf in range(2):
                r = 64 + 16 * tl + 4 * s + 2 * hf
                e(f'ds_read_b64_tr_b16 v[{r}:{r+1}], v{52 if tl else 10} offset:{12288*s + 1536*hf}')
        if tl == 0: e('s_waitcnt lgkmcnt(4)')
    e('s_branch L_ochk')
    lab('L_opoll')
    e('buffer_load_dwordx4 v[20:23], v7, s[36:39], s58 offen sc1')
    lab('L_ochk')
    e('s_waitcnt vmcnt(0)')
    untag([20, 21, 22, 23], 24)
    poll_tail(24, 'L_opoll', 'L_ook', sleep=opts.get('osleep', 1))
    lab('L_ook')
    stamp(8)
    e('v_pk_mul_f32 v[20:21], v[20:21], v[14:15] op_sel_hi:[1,0]'); e('v_pk_mul_f32 v[22:23], v[22:23], v[14:15] op_sel_hi:[1,0]')
    e('v_cvt_pk_bf16_f32 v20, v20, v21'); e('v_cvt_pk_bf16_f32 v21, v22, v23')
    e('ds_write_b64 v12, v[20:21]')
    e('s_waitcnt lgkmcnt(0)')
    e('s_barrier')
    stamp(11)
    if opts.get('wb') == 2:
        e('s_cmp_lg_u32 s3, 7'); e('s_cbranch_scc1 L_nowb'); e('s_cmp_lg_u32 s5, 9'); e('s_cbranch_scc1 L_nowb'); e('s_bitcmp1_b32 s4, 0'); e('s_cbranch_scc1 L_nowb')
        e('buffer_wbl2 sc1')
        lab('L_nowb')
    e('s_cmp_ge_u32 s3, 6'); e('s_cbranch_scc1 L_exit')
    for s in range(4): e(f'ds_read_b128 v[{32+4*s}:{35+4*s}], v9 offset:{64*s}')
    for s in range(4):
        e(f's_waitcnt lgkmcnt({3-s})')
        for tl in range(2):
            d = 24 + 4 * tl
            c = '0' if s == 0 else f'v[{d}:{d+3}]'
            e(f'v_mfma_f32_16x16x32_bf16 v[{d}:{d+3}], v[{64+16*tl+4*s}:{67+16*tl+4*s}], v[{32+4*s}:{35+4*s}], {c}')
    for r in range(4): e(f'v_add_f32_dpp v{24+r}, v{24+r}, v{24+r} row_half_mirror row_mask:0xf bank_mask:0x5')
    for r in range(4): e(f'v_add_f32_dpp v{24+r}, v{28+r}, v{28+r} row_half_mirror row_mask:0xf bank_mask:0xa')
    for m in (X1, X2):
        for r in range(4): e(f'v_add_f32_dpp v{24+r}, v{24+r}, v{24+r} {m}')
    if opts.get('dwst'):
        e('s_mov_b32 vcc_lo, 0xaaaaaaaa'); e('s_mov_b32 vcc_hi, 0xaaaaaaaa')
        e('v_cndmask_b32 v24, v24, v25, vcc'); e('v_cndmask_b32 v26, v26, v27, vcc')
        e('s_mov_b32 vcc_lo, 0xcccccccc'); e('s_mov_b32 vcc_hi, 0xcccccccc')
        e('v_cndmask_b32 v24, v24, v26, vcc')
        tag(24, 1, 19)
        e('buffer_store_dword v24, v11, s[36:39], s59 offen sc1')
    else:
        tag(24, 4, 19)
        e('s_mov_b32 exec_lo, 0x11111111'); e('s_mov_b32 exec_hi, 0x11111111')
        e('buffer_store_dwordx4 v[24:27], v11, s[36:39], s59 offen sc1')
    stamp(9)
    endwave()
    lab('L_A_mlp')
    e('s_cmp_eq_u32 s3, 7'); e('s_cbranch_scc1 L_A_fin')
    e('s_cmp_eq_u32 s3, 6'); e('s_cbranch_scc1 L_exit')
    e('s_cmp_ge_u32 s52, 3'); e('s_cselect_b32 s54, 1, 0')
    e('s_mul_i32 s55, s54, 3'); e('s_add_u32 s56, s55, s3'); e('s_sub_u32 s55, s52, s55')
    e('s_cmp_ge_u32 s3, 3'); e('s_cbranch_scc1 L_A_wd')
    e('s_cmp_ge_u32 s56, 4'); e('s_cselect_b32 s44, 7, 8'); e('s_cselect_b32 s47, 1024, 0')
    e('v_bfe_u32 v13, v0, 2, 2'); e('v_lshlrev_b32 v13, s44, v13'); e('v_and_b32 v9, 1, v3'); e(f'v_mul_u32_u24 v9, {3*RS}, v9'); e('v_add_u32 v13, v13, v9')
    e('v_and_b32 v9, 3, v0'); e('v_lshl_add_u32 v13, v9, 4, v13')
    e('s_and_b32 s44, s56, 3'); e('s_lshl_b32 s44, s44, 6'); e('s_add_u32 s44, s44, s47'); e('v_add_u32 v13, s44, v13')
    e(f'v_add_u32 v12, {2*RS}, v13')
    e('s_mov_b32 exec_lo, 0')
    e(f'v_add_u32 v13, {RS}, v13')
    e('v_and_b32 v12, 31, v0'); e('v_min_u32 v12, 5, v12'); e(f'v_mul_u32_u24 v12, {RS}, v12'); e('v_add_u32 v12, 1536, v12')
    e('s_mov_b32 exec_lo, -1')
    e(f's_mul_i32 s57, s51, {6*RS}'); e(f's_add_u32 s57, s57, {HB}')
    e('v_bfe_u32 v10, v0, 2, 1'); e('v_lshl_add_u32 v10, v10, 2, v3'); e('v_lshl_add_u32 v10, v9, 3, v10'); e('s_lshl_b32 s44, s3, 5'); e('v_add_u32 v10, s44, v10')
    e('v_bfe_u32 v11, v0, 3, 1'); e('v_mul_u32_u24 v11, 192, v11'); e('v_lshl_add_u32 v11, v10, 1, v11'); e('v_add_u32 v11, v15, v11')
    e('v_lshl_add_u32 v10, v10, 2, v15')
    if opts.get('nopoll1'):
        for k in range(12): e(f'v_mov_b32 v{32+k}, 1.0')
        e('s_branch L_hnear')
    lab('L_hpoll')
    e('buffer_load_dwordx4 v[32:35], v13, s[36:39], s57 offen sc1')
    e('buffer_load_dwordx4 v[36:39], v12, s[36:39], s57 offen sc1')
    e('s_waitcnt vmcnt(0)')
    untag(list(range(32, 40)), 48)
    poll_tail(48, 'L_hpoll', 'L_hok', sleep=8)
    lab('L_hok')
    e('s_getreg_b32 s44, hwreg(HW_REG_XCC_ID, 0, 4)'); e('s_lshl_b32 s44, s44, 16')
    e('s_mov_b32 exec_lo, 0')
    e('v_cmp_ne_u32 vcc, s44, v36')
    e('s_mov_b32 exec_lo, -1')
    e('s_cbranch_vccz L_hnear')
    e('buffer_wbl2 sc1'); e('s_waitcnt vmcnt(0)')
    lab('L_hnear')
    e('s_mov_b32 exec_hi, 0')
    for k in (0, 2): e(f'v_pk_add_f32 v[{32+k}:{33+k}], v[{32+k}:{33+k}], v[{36+k}:{37+k}]')
    e('s_mov_b32 exec_hi, -1')
    e('v_permlane32_swap_b32 v32, v34'); e('v_permlane32_swap_b32 v33, v35')
    e('v_add_f32 v32, v32, v34'); e('v_add_f32 v33, v33, v35')
    e('v_permlane16_swap_b32 v32, v33')
    e('v_cvt_pk_bf16_f32 v24, v32, v33')
    e('v_and_b32 v25, s50, v24'); e('v_lshlrev_b32 v24, 16, v24')
    e('v_cmp_lt_f32 vcc, 0, v24'); e('v_cndmask_b32 v26, 0, 1.0, vcc')
    e('v_mul_f32 v24, v24, v26'); e('v_mul_f32 v24, v24, v25')
    e('v_cvt_pk_bf16_f32 v24, v24, v24')
    e(f'ds_write_b16 v11, v24 offset:{O_HS}')
    e(f'v_or_b32_dpp v25, v24, v24 {DPP("row_ror:8")}'); e('v_lshlrev_b32 v25, 17, v25')
    e(f'ds_write_b32 v10, v25 offset:{O_NZ}')
    signal(O_CH)
    stamp(5)
    lab('L_A_wd')
    e('s_lshl_b32 s56, s51, 1'); e('s_add_u32 s56, s56, s54')
    e('s_mul_i32 s44, s56, 6'); e('s_add_u32 s44, s44, s3'); e(f's_mul_i32 s44, s44, {16*1152}')
    e('s_mul_i32 s47, s55, 384'); e('s_add_u32 s44, s44, s47')
    srd(32, 24, 25, 's44', 15 * 1152 + 384)
    e('s_lshl_b32 s44, s3, 6'); e('v_add_u32 v57, s44, v15')
    tile_addr(rows=54)
    e(f's_mul_i32 s59, s56, {FS}'); e('s_mul_i32 s47, s55, 1536'); e('s_add_u32 s59, s59, s47')
    e('s_lshl_b32 s44, s3, 8'); e('s_add_u32 s59, s59, s44'); e(f's_add_u32 s59, s59, {FB}')
    e('v_lshrrev_b32 v9, 3, v2'); e('v_mul_u32_u24 v9, 192, v9'); e('v_lshl_add_u32 v9, v3, 4, v9'); e('v_add_u32 v9, v15, v9')
    e('s_mul_i32 s44, s3, 6144'); e('s_mov_b32 m0, s44'); e('s_movk_i32 s47, 9216')
    spin('L_h_wait', O_CH, 3, sleep=4)
    for s in range(3): e(f'ds_read_b128 v[{32+4*s}:{35+4*s}], v9 offset:{O_HS+64*s}')
    if opts.get('skip', 1):
        for m in range(3):
            e(f'ds_read_b32 v{58+m}, v{54+m} offset:{O_NZ}'); e(f'ds_read_b32 v{61+m}, v{54+m} offset:{O_NZ+32}')
        e('v_bfrev_b32 v8, 1')
        e('s_waitcnt lgkmcnt(0)')
        for n in range(6):
            r = 4 + n if n < 3 else 46 + n
            e(f'v_cmp_ne_u32 vcc, 0, v{58+n}'); e(f'v_cndmask_b32 v{r}, v8, v{r}, vcc')
    spin('L_wd_pwait', O_CP, 8, sleep=2)
    WPRE = opts.get('wdpre', 2)
    def wdload(n):
        e(f"buffer_load_dwordx4 v{4+n if n < 3 else 46+n}, s[32:35], {'0' if n < 3 else 's47'} offen{NT} lds")
        if n < 5: e('s_add_u32 m0, m0, 0x400')
    if WPRE:
        spin('L_v_wait', O_CV, opts.get('cvwd', 8))
        for n in range(WPRE): wdload(n)
    stamp(8)
    if BAR and not ONE: e('s_barrier')
    if WPRE < 6:
        if not BAR: spin('L_o_wait', O_CO, opts.get('wdco', 9), sleep=0)
        for n in range(WPRE, 6): wdload(n)
    stamp(10)
    e('s_waitcnt vmcnt(0)')
    stamp(7)
    if BAR: e('s_barrier')
    else:
        signal(O_CW)
        spin('L_wd_wait', O_CW, 6, sleep=0)
    for s in range(3):
        for tl in range(2):
            for hf in range(2):
                r = 64 + 16 * tl + 4 * s + 2 * hf
                e(f'ds_read_b64_tr_b16 v[{r}:{r+1}], v{52 if tl else 10} offset:{12288*s + 1536*hf}')
    for s in range(3):
        for tl in range(2):
            e(f's_waitcnt lgkmcnt({10-4*s-2*tl})')
            d = 24 + 4 * tl
            c = '0' if s == 0 else f'v[{d}:{d+3}]'
            e(f'v_mfma_f32_16x16x32_bf16 v[{d}:{d+3}], v[{64+16*tl+4*s}:{67+16*tl+4*s}], v[{32+4*s}:{35+4*s}], {c}')
    stamp(11)
    for r in range(4): e(f'v_mov_b32_dpp v{24+r}, v{28+r} quad_perm:[0,1,2,3] row_mask:0xf bank_mask:0xa')
    if opts.get('dwst'):
        e('s_mov_b32 vcc_lo, 0xaaaaaaaa'); e('s_mov_b32 vcc_hi, 0xaaaaaaaa')
        e('v_cndmask_b32 v24, v24, v25, vcc'); e('v_cndmask_b32 v26, v26, v27, vcc')
        e('s_mov_b32 vcc_lo, 0xcccccccc'); e('s_mov_b32 vcc_hi, 0xcccccccc')
        e('v_cndmask_b32 v24, v24, v26, vcc')
        tag(24, 1, 19)
        e('buffer_store_dword v24, v11, s[36:39], s59 offen sc1')
    else:
        tag(24, 4, 19)
        e('s_mov_b32 exec_lo, 0x11111111'); e('s_mov_b32 exec_hi, 0x11111111')
        e('buffer_store_dwordx4 v[24:27], v11, s[36:39], s59 offen sc1')
    endwave()
    lab('L_A_fin')
    srd(40, 8, 9, None, 2304)
    e('v_and_b32 v5, 1, v0'); e('v_and_b32 v4, 1, v3'); e('v_lshlrev_b32 v4, 2, v4'); e('v_lshl_add_u32 v4, v5, 5, v4')
    e('s_and_b32 s44, s53, 1'); e('s_mul_i32 s44, s44, 1152'); e('s_lshr_b32 s47, s53, 3'); e('s_lshl_b32 s47, s47, 6'); e('s_add_u32 s44, s44, s47')
    e('s_and_b32 s47, s53, 6'); e('s_lshl_b32 s47, s47, 2'); e('s_add_u32 s44, s44, s47')
    e('v_add_u32 v4, s44, v4'); e('v_lshrrev_b32 v7, 5, v0'); e('v_lshl_add_u32 v4, v7, 1, v4')
    e('buffer_load_ushort v10, v4, s[40:43], 0 offen')
    srd(40, 26, 27, None, 2304)
    e('v_lshrrev_b32 v6, 1, v0'); e(f'v_mul_u32_u24 v6, {FS}, v6'); e('v_lshl_add_u32 v6, v5, 4, v6')
    e('s_lshl_b32 s57, s53, 5'); e(f's_add_u32 s57, s57, {FB}'); e(f's_add_u32 s58, s57, {32*FS}'); e(f's_add_u32 s59, s57, {64*FS}')
    for k in range(4): e(f'v_mov_b32 v{68+k}, s7')
    e('s_mov_b32 s54, 0'); e('s_mov_b32 s55, 0')
    if opts.get('ptf'):
        if opts['ptf'] & 1: e('buffer_load_dwordx4 v[72:75], v6, s[36:39], s59 offen sc1')
        if opts['ptf'] & 2:
            e('buffer_load_dwordx4 v[64:67], v6, s[36:39], s57 offen sc1')
            e('s_mov_b32 exec_hi, 0'); e('buffer_load_dwordx4 v[68:71], v6, s[36:39], s58 offen sc1'); e('s_mov_b32 exec_hi, -1')
    if BAR:
        if not ONE: e('s_barrier')
        if opts.get('warm'):
            e(f's_sleep {opts["warm"]}')
            e('buffer_load_dwordx4 v[72:75], v6, s[36:39], s59 offen sc1')
            e('buffer_load_dwordx4 v[64:67], v6, s[36:39], s57 offen sc1')
            e('s_mov_b32 exec_hi, 0'); e('buffer_load_dwordx4 v[68:71], v6, s[36:39], s58 offen sc1'); e('s_mov_b32 exec_hi, -1')
        e('s_barrier')
        if opts.get('fdelay'): e(f's_sleep {opts["fdelay"]}')
    elif opts.get('fco'): spin('L_s_start', O_CO, 9, sleep=opts['fco'])
    elif opts.get('fcw'): spin('L_s_start', O_CW, opts['fcw'], sleep=1)
    else: spin('L_s_start', O_CYS, opts.get('fstart', 6), sleep=2)
    e('s_waitcnt vmcnt(0)')
    e('v_lshlrev_b32 v10, 16, v10')
    stamp(11)
    lab('L_fpoll')
    e('s_cmp_lg_u32 s54, 0'); e('s_cbranch_scc1 L_f1')
    e('buffer_load_dwordx4 v[64:67], v6, s[36:39], s57 offen sc1')
    e('s_mov_b32 exec_hi, 0')
    e('buffer_load_dwordx4 v[68:71], v6, s[36:39], s58 offen sc1')
    e('s_mov_b32 exec_hi, -1')
    lab('L_f1')
    e('s_cmp_lg_u32 s55, 0'); e('s_cbranch_scc1 L_f2')
    e('buffer_load_dwordx4 v[72:75], v6, s[36:39], s59 offen sc1')
    e('s_waitcnt vmcnt(0)')
    untag([72, 73, 74, 75], 88, dst=[84, 85, 86, 87])
    e('v_and_b32 v88, s45, v88'); e('v_cmp_ne_u32 vcc, 0, v88'); e('s_cbranch_vccnz L_f2')
    stamp(9)
    red32(84)
    rnd(84)
    e('s_mov_b32 s55, 1')
    e('s_cmp_lg_u32 s54, 0'); e('s_cbranch_scc1 L_fok')
    lab('L_f2')
    e('s_cmp_lg_u32 s54, 0'); e('s_cbranch_scc1 L_f3')
    e('s_waitcnt vmcnt(0)')
    untag(list(range(64, 72)), 104, dst=list(range(96, 104)))
    e('v_and_b32 v104, s45, v104'); e('v_cmp_ne_u32 vcc, 0, v104'); e('s_cbranch_vccnz L_f3')
    stamp(12)
    for k in (0, 2): e(f'v_pk_add_f32 v[{96+k}:{97+k}], v[{96+k}:{97+k}], v[{100+k}:{101+k}]')
    red32(96)
    rnd(96)
    e('v_mul_f32 v97, s49, v96'); e('v_exp_f32 v97, -v97'); e('v_add_f32 v97, 1.0, v97'); e('v_rcp_f32 v97, v97')
    e('v_mul_f32 v96, v96, v97')
    rnd(96)
    e('s_mov_b32 s54, 1')
    e('s_cmp_lg_u32 s55, 0'); e('s_cbranch_scc1 L_fok')
    lab('L_f3')
    if opts.get('ssleep'): e(f's_sleep {opts["ssleep"]}')
    e('s_add_u32 s46, s46, 1'); e('s_and_b32 s44, s46, 0xff'); e('s_cbranch_scc1 L_fpoll')
    e('buffer_wbl2 sc1'); e('buffer_inv sc1'); e('s_waitcnt vmcnt(0)')
    e(f's_cmp_le_u32 s46, {SPIN_MAX}'); e('s_cbranch_scc1 L_fpoll')
    lab('L_fok')
    e('v_mul_f32 v84, v84, v96')
    rnd(84)
    e('v_add_f32 v84, v84, v10')
    if opts.get('perturb'):
        e('s_cmp_lg_u32 s53, 0'); e('s_cbranch_scc1 L_nopert'); e('s_mov_b64 exec, 1'); e(f'v_add_f32 v84, {hex(f2u(opts["perturb"]))}, v84'); e('s_mov_b64 exec, -1')
        lab('L_nopert')
    e('v_cvt_pk_bf16_f32 v96, v84, v84')
    if opts.get('hold'):
        if opts.get('holdmul'):
            e('s_memrealtime s[94:95]'); e('s_waitcnt lgkmcnt(0)'); e('s_sub_u32 s93, s94, s62'); e(f's_mul_i32 s93, s93, {opts["holdmul"]}')
        else:
            e(f's_mov_b32 s93, {opts["hold"]}')
        lab('L_hold')
        e('s_memrealtime s[94:95]'); e('s_waitcnt lgkmcnt(0)'); e('s_sub_u32 s94, s94, s62'); e('s_cmp_lt_u32 s94, s93'); e('s_cbranch_scc1 L_hold')
    e('s_mov_b32 exec_lo, 0x00030003'); e('s_mov_b32 exec_hi, 0x00030003')
    e(f'buffer_store_short v96, v4, s[40:43], 0 offen{opts.get("outfl", "")}')
    e('s_cmp_lg_u32 s53, 0'); e('s_cbranch_scc1 L_exit')
    e('s_mov_b64 exec, 3')
    e(f'v_mul_u32_u24 v4, {EPB}, v0'); e('v_mov_b32 v5, s60')
    e(f'buffer_store_dword v5, v4, s[36:39], 0 offen{opts.get("epfl", "")}')
    endwave()

    lab('L_exit')
    if diag:
        lab('L_fin')
        e('s_mov_b64 exec, -1')
        stamp(14)
        e('s_waitcnt vmcnt(0)')
        stamp(15)
        e('s_waitcnt lgkmcnt(0)')
        e('s_lshl_b32 s44, s2, 4'); e('s_add_u32 s44, s44, s61'); e('s_lshl_b32 s44, s44, 6'); e(f's_add_u32 s44, s44, {STAMP_OFF}')
        srd(40, 30, 31, 's44', 64)
        for i in range(16): e(f'v_mov_b32 v{64+i}, s{64+2*i}')
        e('v_mov_b32 v4, 0'); e('s_mov_b64 exec, 1')
        for i in range(4): e(f'buffer_store_dwordx4 v[{64+4*i}:{67+4*i}], v4, s[40:43], 0 offen offset:{16*i}')
    lab('L_end')
    e('s_endpgm')
    if opts.get('codepf'):
        lab('L_codeend')
        L.append(f'.fill (12288-(L_codeend-{KNAME}))/4, 4, 0xbf810000')
    L.append('.section .rodata,"a"'); L.append('.p2align 6'); L.append(f'.amdhsa_kernel {KNAME}')
    L.append('  .amdhsa_next_free_vgpr 128'); L.append('  .amdhsa_next_free_sgpr 96'); L.append('  .amdhsa_accum_offset 128')
    L.append('  .amdhsa_group_segment_fixed_size 0'); L.append('  .amdhsa_kernarg_size 96'); L.append('  .amdhsa_user_sgpr_count 2')
    L.append('  .amdhsa_user_sgpr_kernarg_segment_ptr 1'); L.append('  .amdhsa_system_sgpr_workgroup_id_x 1')
    L.append('  .amdhsa_float_denorm_mode_32 3')
    L.append('.end_amdhsa_kernel')
    return '\n'.join(hazard_pass(L)) + '\n'

if __name__ == '__main__':
    import json
    open('k_diag.s', 'w').write(gen(diag=True))
    open('k_prod.s', 'w').write(gen(diag=False))
    for a in sys.argv[1:]:
        name, o = a.split('=', 1)
        open(f'exp/{name}.s', 'w').write(gen(diag=('diag' in name), opts=json.loads(o)))
```

```python
import sys, struct
from asmlib import hazard_pass

KNAME = "recurrent_scan__sliding_block_cached__glu_gated_reglu__decode_kernel"
def f2u(x): return struct.unpack('<I', struct.pack('<f', x))[0]

BASE = 131072
O_CP, O_CO, O_CK, O_CG, O_CQ, O_CH, O_CY, O_CX = 0, 4, 8, 12, 16, 20, 24, 28
O_FAR, O_CGF, O_CV, O_CYS, O_CW = 32, 36, 40, 44, 48
STG = 49152
O_NZ = 1024
O_KD, O_VD, O_PD = 64, 96, 128
O_ZERO = 256
O_QT = 512
O_XB = 1024
O_ML = 3328
O_HS = 3456
O_PT = 3840
O_GP = 7936
O_OP = 20480
LDS_TOTAL = BASE + 28672
OB = 0x1000; MLB = 0x41000; FB = 0x51000; HB = 0xD0000; RS = 1664; EPB = 0x140000; WS_SPAN = 0x200000
STAMP_OFF = 512 << 20
TAGM = 0x3ff
LOG2E = f2u(1.4426950408889634)
SCALE = f2u(128 ** -0.5)
SPIN_MAX = 200000

HEADER = """; Kernarg layout for this problem (96 bytes, ptrs only, base s[0:1]):
;
; GEMV on n-contiguous weights: MFMA with a diagonal A operand, or LDS + transposing reads.
"""

def gen(diag=False, opts=None):
    opts = dict(dict(p3all=8, lanes=4, dk=5, dv=6, dvt=16, hov=4, ksig=8, ckn=5, ho=1, wdpre=6, do=4, pto=0, codepf=0, fcw=1, dwst=1, po=1, py=1, ps=1, osleep=1, ssleep=1, slate=1), **(opts or {}))
    NTK = ' nt' if opts.get('ntk', True) else ''
    NTV = ' nt' if opts.get('ntv', True) else ''
    NT = ' nt' if opts.get('ntw', True) else ''
    NT3 = ' nt' if opts.get('nt3', opts.get('ntw', True)) else ''
    P1 = ' sc1' if opts.get('p1sc1') else ''
    FS = opts.get('fs', 4736)
    BAR = opts.get('bar', 1)
    PAT = opts.get('pat', 'r'); KVN = 131072 if PAT == 'i' else 0x100000
    LN = opts.get('lanes', 8); LB = {8: 3, 4: 2, 2: 1, 1: 0}[LN]
    SM = opts.get('smooth', 0)
    ONE = opts.get('onebar', 0)
    if opts.get('sfl'): NTK = NTV = NT = NT3 = opts['sfl']
    L = []
    def e(s): L.append('    ' + s)
    NOTES = {
        'L_B_nx': 'first-layer tile loads (gate/up: 9 per wave, wq: 5 or 6)',
        'L_B_isd': 'hand the stream to the K waves; wave 0 computes the layer norm (bf16 roundings as the reference)',
        'L_x_wait': 'wait for xn, build diagonal A operands, MFMA, partials to LDS',
        'L_gu_wait': 'wave 7: sum the 8 row blocks and publish the record',
        'L_B_q': 'wave 0: gather q partials, round to bf16, q table in LDS',
        'L_B_x1': 'V stream into registers',
        'L_p_wait': 'P.V with diagonal p operands; last wave sums the 8 partials and publishes o',
        'L_A': 'A waves: clear flags, K stream into LDS (swizzled)',
        'L_q_wait': 'Q.K, scores rounded as the reference, per-wave max, exp, sums; last wave publishes (max, sum)',
        'L_A_role': 'role dispatch',
        'L_wo_pwait': 'WO role: wo tile into LDS, softmax weights of the 16 producers, gather o, MFMA, publish s',
        'L_A_mlp': 'MLP role: waves 0..2 gather gate/up partials -> h = relu(gate)*up',
        'L_A_wd': 'W_down tile into LDS (rows whose h is zero for both batch rows are not fetched), MFMA, publish y',
        'L_A_fin': 'wave 7: gather y and s for 8 outputs, out = x + s*silu(y)',
    }
    def lab(s):
        if s in NOTES: L.append('    ; ---- ' + NOTES[s])
        L.append(s + ':')
    stamp_idx = {}
    def stamp(i):
        if diag: e(f's_memrealtime s[{64+2*i}:{65+2*i}]')
    def srd(d, lo, hi, off, nrec):
        if off is None:
            e(f's_mov_b32 s{d}, s{lo}'); e(f's_mov_b32 s{d+1}, s{hi}')
        else:
            e(f's_add_u32 s{d}, s{lo}, {off}'); e(f's_addc_u32 s{d+1}, s{hi}, 0')
        e(f's_mov_b32 s{d+2}, {nrec}'); e(f's_mov_b32 s{d+3}, 0x20000')
    DPP = lambda m: f'{m} row_mask:0xf bank_mask:0xf'
    X1 = DPP('quad_perm:[1,0,3,2]'); X2 = DPP('quad_perm:[2,3,0,1]'); HM = DPP('row_half_mirror'); RM = DPP('row_mirror')
    def masks(d):
        t, h = d + 4, d + 5
        e(f'v_and_b32 v{t}, 1, v2'); e(f'v_lshlrev_b32 v{t}, 4, v{t}')
        e(f'v_mov_b32 v{h}, 0xffff'); e(f'v_lshlrev_b32 v{h}, v{t}, v{h}')
        e(f'v_bfe_u32 v{t}, v2, 1, 2')
        for j in range(4):
            e(f'v_cmp_eq_u32 vcc, {j}, v{t}')
            e(f'v_cndmask_b32 v{d+j}, 0, v{h}, vcc')
    def tag(d, n=4, tv=None):
        for k in range(n): e(f'v_bfi_b32 v{d+k}, s45, v{tv}, v{d+k}')
    def finish_tag_setup(tv):
        e(f's_movk_i32 s45, {TAGM}')
        e('s_add_u32 s60, s7, 1'); e('s_xor_b32 s58, s58, s60'); e('s_and_b32 s58, s58, s45'); e('s_cselect_b32 s58, 0, 1'); e('s_add_u32 s60, s60, s58')
        e('s_and_b32 s7, s60, s45')
        e(f'v_mov_b32 v{tv}, s7')
    def epoch_load():
        e('s_load_dword s7, s[30:31], 0'); e(f's_mov_b32 s44, {EPB}'); e('s_load_dword s58, s[30:31], s44')
    def untag(regs, acc, dst=None):
        dst = dst or regs
        for r, d in zip(regs, dst): e(f'v_xor_b32 v{d}, s7, v{r}')
        e(f'v_or3_b32 v{acc}, v{dst[0]}, v{dst[1]}, v{dst[2]}')
        rest = dst[3:]
        while rest:
            if len(rest) >= 2:
                e(f'v_or3_b32 v{acc}, v{acc}, v{rest[0]}, v{rest[1]}'); rest = rest[2:]
            else:
                e(f'v_or_b32 v{acc}, v{acc}, v{rest[0]}'); rest = rest[1:]
    def poll_tail(acc, lpoll, lok, sleep=2):
        e(f'v_and_b32 v{acc}, s45, v{acc}')
        e(f'v_cmp_ne_u32 vcc, 0, v{acc}')
        e(f's_cbranch_vccz {lok}')
        if sleep: e(f's_sleep {sleep}')
        e('s_add_u32 s46, s46, 1'); e(f's_and_b32 s44, s46, {opts.get("flushmask", 0xff)}'); e(f's_cbranch_scc1 {lpoll}')
        e('buffer_wbl2 sc1'); e('buffer_inv sc1'); e('s_waitcnt vmcnt(0)')
        e(f's_cmp_le_u32 s46, {SPIN_MAX}'); e(f's_cbranch_scc1 {lpoll}')
    DK = opts.get('dk', 3); DV = opts.get('dv', 3); DG = opts.get('dg', 0); DW = opts.get('dw', 0); DO = opts.get('do', 3)
    def thr(i, d):
        if isinstance(d, list): d = d[i % len(d)]
        if d and i >= d: e(f's_waitcnt vmcnt({d-1})')
    def spin(name, off, target, areg=15, treg=16, sleep=1):
        lab(name)
        e(f'ds_read_b32 v{treg}, v{areg} offset:{off}')
        e('s_waitcnt lgkmcnt(0)')
        e(f'v_readfirstlane_b32 s44, v{treg}')
        e(f's_cmp_ge_u32 s44, {target}'); e(f's_cbranch_scc1 {name}_ok')
        e(f's_sleep {sleep}'); e(f's_branch {name}')
        lab(name + '_ok')
    def signal(off, areg=15, one=18, rtn=None):
        e('s_mov_b64 exec, 1')
        if rtn is None: e(f'ds_add_u32 v{areg}, v{one} offset:{off}')
        else: e(f'ds_add_rtn_u32 v{rtn}, v{areg}, v{one} offset:{off}')
        e('s_mov_b64 exec, -1')
    def ppoll(name, D, base, dst, addr, soff, pre=None, post=None, sleep=0):
        def ld(k):
            if pre: e(pre)
            e(f'buffer_load_dwordx4 v[{base+4*k}:{base+4*k+3}], v{addr}, s[36:39], {soff} offen sc1')
            if post: e(post)
        acc = dst + 4
        lab(name)
        for k in range(D - 1): ld(k)
        lab(name + '_l')
        for k in range(D):
            ld((k + D - 1) % D)
            e(f's_waitcnt vmcnt({D-1})')
            untag([base + 4 * k + i for i in range(4)], acc, dst=[dst + i for i in range(4)])
            e(f'v_and_b32 v{acc}, s45, v{acc}')
            e(f'v_cmp_ne_u32 vcc, 0, v{acc}')
            e(f's_cbranch_vccz {name}_ok')
            if sleep: e(f's_sleep {sleep}')
        e('s_add_u32 s46, s46, 1'); e(f's_and_b32 s44, s46, {max(1, 256 // D) * 2 - 1 if False else 63}'); e(f's_cbranch_scc1 {name}_l')
        e('s_waitcnt vmcnt(0)')
        e('buffer_wbl2 sc1'); e('buffer_inv sc1'); e('s_waitcnt vmcnt(0)')
        e(f's_cmp_le_u32 s46, {SPIN_MAX}'); e(f's_cbranch_scc1 {name}')
        lab(name + '_ok')
    def tile_addr(rows=None):
        for m in range(3):
            e(f'v_add_u32 v8, {64*m}, v0'); e('v_mul_u32_u24 v9, 2731, v8'); e('v_lshrrev_b32 v9, 16, v9')
            if rows is not None: e(f'v_lshl_add_u32 v{rows+m}, v9, 2, v{rows+3}')
            e('v_and_b32 v10, 2, v9'); e('v_lshlrev_b32 v10, 4, v10')
            e(f'v_mul_u32_u24 v9, {1152-384}, v9'); e(f'v_lshl_add_u32 v{4+m}, v8, 4, v9')
            e(f'v_xor_b32 v{4+m}, v{4+m}, v10'); e(f'v_xor_b32 v{49+m}, 64, v{4+m}')
        e('v_bfe_u32 v10, v0, 2, 2'); e('v_lshl_add_u32 v10, v3, 3, v10'); e('v_mul_u32_u24 v10, 384, v10'); e('v_and_b32 v11, 3, v0'); e('v_lshl_add_u32 v10, v11, 3, v10')
        e('s_lshl_b32 s44, s3, 6'); e('v_add_u32 v10, s44, v10')
        e('v_and_b32 v11, 24, v0'); e('v_lshlrev_b32 v11, 2, v11'); e('v_xor_b32 v10, v10, v11'); e('v_xor_b32 v52, 32, v10')
        e('v_lshlrev_b32 v11, 2, v0')
    def drain(d, off, areg):
        e('s_mov_b64 exec, 1')
        for k in range(d - 1, -1, -1):
            e(f's_waitcnt vmcnt({k})'); e(f'ds_add_u32 v{areg}, v18 offset:{off}')
        e('s_mov_b64 exec, -1')
    def credit(name, need, areg):
        e(f's_cmp_ge_u32 s62, {need}'); e(f's_cbranch_scc1 {name}_ok')
        lab(name)
        e(f'ds_read_b32 v16, v{areg}')
        e('s_waitcnt lgkmcnt(0)')
        e('v_readfirstlane_b32 s62, v16')
        e(f's_cmp_lt_u32 s62, {need}'); e(f's_cbranch_scc1 {name}')
        lab(name + '_ok')
    def red32(r):
        e(f'v_permlane16_swap_b32 v{r}, v{r+2}'); e(f'v_permlane16_swap_b32 v{r+1}, v{r+3}')
        e(f'v_add_f32 v{r}, v{r}, v{r+2}'); e(f'v_add_f32 v{r+1}, v{r+1}, v{r+3}')
        e(f'v_permlane32_swap_b32 v{r}, v{r+1}')
        e(f'v_add_f32 v{r}, v{r}, v{r+1}')
        for m in ('row_ror:8', 'row_ror:4', 'row_ror:2'):
            e(f'v_add_f32_dpp v{r}, v{r}, v{r} {DPP(m)}')
    def rnd(r):
        e(f'v_cvt_pk_bf16_f32 v{r}, v{r}, v{r}'); e(f'v_and_b32 v{r}, s50, v{r}')
    def endwave():
        e('s_branch L_fin' if diag else 's_endpgm')


    L.append(HEADER.rstrip())
    L.append(f"; @launch grid=(256,1,1) block=(1024,1,1) lds={LDS_TOTAL}")
    L.append('.amdgcn_target "amdgcn-amd-amdhsa--gfx950"')
    L.append('.text'); L.append(f'.globl {KNAME}'); L.append('.p2align 8'); L.append(f'.type {KNAME},@function'); lab(KNAME)
    if opts.get('hold') and opts.get('holdpos') == 0: e('s_memrealtime s[62:63]'); e('s_waitcnt lgkmcnt(0)')
    KA = opts.get('ka', 0)
    if KA: e('s_load_dwordx16 s[8:23], s[0:1], 0')
    e('s_cmp_ge_u32 s2, 256'); e('s_cbranch_scc1 L_end')
    if not KA:
        e('s_load_dwordx16 s[8:23], s[0:1], 0')
        e('s_load_dwordx8 s[24:31], s[0:1], 64')
    if diag:
        for i in range(64, 96): e(f's_mov_b32 s{i}, 0')
    stamp(0)
    if opts.get('hold') and opts.get('holdpos') == 2: e('s_waitcnt lgkmcnt(0)'); e('s_memrealtime s[62:63]')
    e('v_lshrrev_b32 v1, 6, v0'); e('v_and_b32 v0, 63, v0')
    e('s_and_b32 s4, s2, 7'); e('v_readfirstlane_b32 s3, v1')
    if opts.get('xx'): e(f's_xor_b32 s4, s4, {opts["xx"]}')
    e('s_lshl_b32 s4, s4, 1'); e('s_lshr_b32 s5, s2, 7'); e('s_add_u32 s4, s4, s5')
    e('s_bfe_u32 s5, s2, 0x40003')
    e('v_and_b32 v2, 15, v0'); e('v_lshrrev_b32 v3, 4, v0')
    e('s_mul_i32 s53, s4, 9'); e('s_add_u32 s53, s53, s5')
    e('s_mul_i32 s51, s53, 171'); e('s_lshr_b32 s51, s51, 10')
    e('s_mul_i32 s52, s51, 6'); e('s_sub_u32 s52, s53, s52')
    if diag: e('s_mov_b32 s61, s3')
    for i in range(opts.get('padn', 0)): e('s_mov_b32 s46, 0x12345678')
    for i in range(opts.get('jumps', 0)):
        e(f's_branch L_j{i}'); L.append('.fill 255, 4, 0xbf810000'); lab(f'L_j{i}')
    e('s_cmp_ge_u32 s3, 8'); e('s_cbranch_scc1 L_A')
    def layernorm():
        e(f'v_add_u32 v113, {BASE+O_XB}, v113')
        e('s_mov_b32 s50, 0xffff0000'); e(f's_mov_b32 s48, {f2u(1.0/576)}'); e(f's_mov_b32 s49, {f2u(1e-5)}')
        e('s_waitcnt vmcnt(5)')
        X = list(range(22, 40))
        for k in range(9):
            e(f'v_lshlrev_b32 v{X[2*k]}, 16, v{104+k}'); e(f'v_and_b32 v{X[2*k+1]}, s50, v{104+k}')
        def half_allreduce(a, t):
            for m in (X1, X2, HM, RM): e(f'v_add_f32_dpp v{a}, v{a}, v{a} {m}')
            e(f'v_mov_b32 v{t}, v{a}'); e(f'v_permlane16_swap_b32 v{a}, v{t}'); e(f'v_add_f32 v{a}, v{a}, v{t}')
        e(f'v_pk_add_f32 v[40:41], v[22:23], v[24:25]')
        for k in range(4, 18, 2): e(f'v_pk_add_f32 v[40:41], v[40:41], v[{X[k]}:{X[k+1]}]')
        e('v_add_f32 v40, v40, v41')
        half_allreduce(40, 41)
        e('v_mul_f32 v40, s48, v40')
        e('v_mov_b32 v42, 0'); e('v_mov_b32 v43, 0')
        for k in range(0, 18, 2):
            e(f'v_sub_f32 v44, v{X[k]}, v40'); e(f'v_sub_f32 v45, v{X[k+1]}, v40')
            e('v_fmac_f32 v42, v44, v44'); e('v_fmac_f32 v43, v45, v45')
        e('v_add_f32 v42, v42, v43')
        half_allreduce(42, 43)
        e('v_mul_f32 v42, s48, v42')
        e('v_cvt_pk_bf16_f32 v40, v40, v42')
        e('v_and_b32 v42, s50, v40'); e('v_lshlrev_b32 v40, 16, v40')
        e('v_add_f32 v42, s49, v42'); e('v_cvt_pk_bf16_f32 v42, v42, v42'); e('v_and_b32 v42, s50, v42')
        e('v_sqrt_f32 v42, v42'); e('v_cvt_pk_bf16_f32 v42, v42, v42'); e('v_and_b32 v42, s50, v42')
        e('v_rcp_f32 v42, v42')
        for k in range(9):
            a, b = X[2*k], X[2*k+1]
            e(f'v_sub_f32 v{a}, v{a}, v40'); e(f'v_sub_f32 v{b}, v{b}, v40')
            e(f'v_cvt_pk_bf16_f32 v{104+k}, v{a}, v{b}')
            e(f'v_lshlrev_b32 v{a}, 16, v{104+k}'); e(f'v_and_b32 v{b}, s50, v{104+k}')
            e(f'v_mul_f32 v{a}, v{a}, v42'); e(f'v_mul_f32 v{b}, v{b}, v42')
            e(f'v_cvt_pk_bf16_f32 v{104+k}, v{a}, v{b}')
        for k in range(0, 8, 2): e(f'ds_write2_b32 v113, v{104+k}, v{105+k} offset0:{k} offset1:{k+1}')
        e('ds_write_b32 v113, v112 offset:32')
        signal(O_CX)
        stamp(11)
    if opts.get('bprio'): e(f's_setprio {opts["bprio"]}')
    e('s_sub_u32 s44, s5, 9'); e('s_lshl_b32 s59, s4, 3'); e('s_add_u32 s59, s59, s44'); e('s_add_u32 s59, s59, 144')
    e('s_movk_i32 s49, 0x2000')
    e('s_cmp_lt_u32 s5, 9')
    e('s_cselect_b32 s44, s52, s44')
    e('s_cselect_b32 s55, 9216, s49')
    e('s_cselect_b32 s59, s53, s59')
    e('s_cmp_ge_u32 s44, 3'); e('s_cselect_b32 s62, 1, 0')
    e('s_mul_i32 s47, s62, 3'); e('s_sub_u32 s44, s44, s47')
    e('s_lshr_b32 s49, s3, 2'); e('s_cmp_eq_u32 s5, 15'); e('s_cselect_b32 s49, s49, s62')
    e('s_lshl_b32 s49, s49, 8'); e('s_lshl_b32 s48, s4, 9'); e('s_add_u32 s48, s48, s49'); e('s_mul_i32 s47, s51, 384')
    e('s_cmp_lt_u32 s5, 9'); e('s_cselect_b32 s47, s47, s48')
    e('s_and_b32 s58, s3, 3'); e('s_mul_i32 s58, s58, 144'); e('s_add_u32 s58, s58, 5')
    e('s_lshl_b32 s44, s44, 3'); e('s_add_u32 s54, s3, s44'); e('s_mul_i32 s54, s54, 24')
    e('s_cmp_eq_u32 s5, 15'); e('s_cselect_b32 s54, s58, s54')
    e('s_mul_i32 s44, s54, s55'); e('s_cselect_b32 s55, 0xc000, s55'); e('s_add_u32 s44, s44, s47')
    e('s_mul_i32 s47, s55, 6'); e('v_mul_u32_u24 v10, s47, v3'); e('v_lshl_add_u32 v10, v2, 4, v10')
    e('v_lshrrev_b32 v11, 3, v2'); e(f'v_mul_u32_u24 v11, {9216-128}, v11'); e('v_add_u32 v11, v10, v11')
    e('s_mul_i32 s34, s55, 23'); e('s_add_u32 s34, s34, 256'); e('s_mov_b32 s35, 0x20000')
    e('s_waitcnt lgkmcnt(0)')
    e('s_cmp_eq_u32 s62, 0'); e('s_cselect_b32 s56, s20, s22'); e('s_cselect_b32 s57, s21, s23')
    e('s_cmp_lt_u32 s5, 9'); e('s_cselect_b32 s56, s56, s14'); e('s_cselect_b32 s57, s57, s15')
    e('s_add_u32 s32, s56, s44'); e('s_addc_u32 s33, s57, 0')
    e('s_cmp_lg_u32 s3, 0'); e('s_cbranch_scc1 L_B_nx')
    srd(40, 8, 9, None, 2304)
    e('v_lshrrev_b32 v22, 5, v0'); e('v_and_b32 v23, 31, v0')
    e('v_mul_u32_u24 v113, 1152, v22'); e('v_mad_u32_u24 v113, v23, 36, v113')
    e('buffer_load_dwordx4 v[104:107], v113, s[40:43], 0 offen')
    e('buffer_load_dwordx4 v[108:111], v113, s[40:43], 0 offen offset:16')
    e('buffer_load_dword v112, v113, s[40:43], 0 offen offset:32')
    lab('L_B_nx')
    D1 = opts.get('d1', 3)
    def d0load(t, so): e(f'buffer_load_dwordx4 v[{64+4*t}:{67+4*t}], v10, s[32:35], {so} offen{NT}')
    def d1load(p, so): e(f'buffer_load_dwordx4 v[{88+4*p}:{91+4*p}], v11, s[32:35], {so} offen offset:256{NT}')
    d0load(0, '0'); d0load(1, 's55')
    if opts.get('holdpos') in (4, 5): e('s_memrealtime s[90:91]')
    if KA: e('s_load_dwordx8 s[24:31], s[0:1], 64')
    e('s_lshl_b32 s44, s55, 1')
    e('s_cmp_ge_u32 s5, 9'); e('s_cbranch_scc1 L_B_dq')
    e('s_add_u32 s34, s34, 128')
    seq = [('1', 0, 0), ('0', 2, 2), ('0', 3, 3), ('1', 1, 2), ('0', 4, 4), ('0', 5, 5), ('1', 2, 4)]
    for n, (kind, idx, row) in enumerate(seq):
        i = n + 2
        if i == D1: e('s_barrier')
        thr(i, D1)
        if row: e(f's_mov_b32 s44, {row*9216}')
        so = 's44' if row else '0'
        (d0load if kind == '0' else d1load)(idx, so)
    e('s_branch L_B_isd')
    lab('L_B_dq')
    for t in range(2, 5):
        if t == D1: e('s_barrier')
        thr(t, D1)
        d0load(t, 's44')
        e('s_add_u32 s44, s44, s55')
    if D1 >= 5: e('s_barrier')
    e('s_cmp_lg_u32 s5, 15'); e('s_cbranch_scc1 L_B_isd')
    thr(5, D1)
    d0load(5, 's44')
    lab('L_B_isd')
    if opts.get('bprio') and opts.get('bprio0', 1): e('s_setprio 0')
    e(f'v_mov_b32 v15, {BASE}'); e('v_mov_b32 v18, 1')
    e(f's_and_b32 s44, s3, {LN-1}'); e('s_lshl_b32 s44, s44, 2'); e('v_add_u32 v9, s44, v15')
    if SM: drain(D1, O_PD, 9)
    else:
        if 'ho' in opts: e(f's_waitcnt vmcnt({opts["ho"]})')
        signal(O_PD, areg=9)
    e('s_cmp_lg_u32 s3, 0'); e('s_cbranch_scc1 L_B_noln')
    layernorm()
    lab('L_B_noln')
    if opts.get('holdpos') in (4, 5):
        e('s_waitcnt lgkmcnt(0)'); e('v_mov_b32 v20, s90'); e('s_cmp_lg_u32 s3, %d' % opts.get('holdw', 7)); e('s_cbranch_scc1 L_hw'); e('ds_write_b32 v15, v20 offset:200'); lab('L_hw')
    if KA: e('s_waitcnt lgkmcnt(0)')
    stamp(1)
    epoch_load()
    masks(4)
    e('s_cmp_eq_u32 s5, 15'); e('s_cselect_b32 s44, 72, 12')
    e('v_lshrrev_b32 v9, 3, v2'); e('v_mul_u32_u24 v9, 1152, v9'); e('v_mad_u32_u24 v9, v3, s44, v9')
    e('s_lshl_b32 s44, s54, 1'); e('s_and_b32 s44, s44, -4'); e(f's_add_u32 s44, s44, {BASE+O_XB}'); e('v_add_u32 v9, s44, v9')
    e('s_mov_b32 s48, 0x01000100'); e('s_mov_b32 s49, 0x03020302')
    e('v_lshlrev_b32 v8, 4, v0')
    e('v_lshlrev_b32 v12, 4, v2'); e('v_lshl_add_u32 v12, v3, 7, v12')
    e('s_mul_i32 s44, s3, 1536'); e(f's_add_u32 s44, s44, {BASE+O_GP}'); e('v_add_u32 v13, s44, v8'); e('v_add_u32 v14, s44, v12')
    for k in range(4): e(f'v_mov_b32 v{56+k}, 0')
    spin('L_x_wait', O_CX, 1, sleep=2)
    e('s_cmp_eq_u32 s5, 15'); e('s_cbranch_scc1 L_B_xs')
    for p in range(3): e(f'ds_read2_b32 v[{24+2*p}:{25+2*p}], v9 offset0:{p} offset1:{p}')
    e('s_branch L_B_xd')
    lab('L_B_xs')
    for p in range(3): e(f'ds_read2_b32 v[{24+2*p}:{25+2*p}], v9 offset0:{6*p} offset1:{6*p+3}')
    e('s_mov_b32 s48, s49')
    lab('L_B_xd')
    e('s_waitcnt lgkmcnt(0)')
    stamp(2)
    for t in range(6):
        e(f'v_perm_b32 v31, v{24+t}, v{24+t}, s{48+(t&1)}')
        for j in range(4): e(f'v_and_b32 v{32+4*t+j}, v31, v{4+j}')
    e('s_waitcnt vmcnt(0)')
    e('s_cmp_eq_u32 s5, 15'); e('s_cbranch_scc1 L_B_m5')
    e('s_cmp_ge_u32 s5, 9'); e('s_cbranch_scc1 L_B_m0')
    for t in range(6):
        d = 60 if t % 2 == 0 else 100
        c = '0' if t < 2 else f'v[{d}:{d+3}]'
        e(f'v_mfma_f32_16x16x32_bf16 v[{d}:{d+3}], v[{32+4*t}:{35+4*t}], v[{88+4*(t>>1)}:{91+4*(t>>1)}], {c}')
    for k in range(4): e(f'v_add_f32_dpp v{60+k}, v{100+k}, v{60+k} {DPP("row_ror:8")}')
    lab('L_B_m5')
    e('v_mfma_f32_16x16x32_bf16 v[56:59], v[52:55], v[84:87], v[56:59]')
    lab('L_B_m0')
    for t in range(5):
        e(f'v_mfma_f32_16x16x32_bf16 v[56:59], v[{32+4*t}:{35+4*t}], v[{64+4*t}:{67+4*t}], v[56:59]')
    e('ds_write_b128 v13, v[56:59]')
    e('s_mov_b32 exec_lo, 0x00ff00ff'); e('s_mov_b32 exec_hi, 0x00ff00ff')
    e('ds_write_b128 v14, v[60:63] offset:1024')
    signal(O_CG)
    stamp(3)
    srd(36, 30, 31, None, WS_SPAN)
    finish_tag_setup(21)
    e('s_mov_b32 s46, 0')
    if opts.get('nopub1'): e('s_branch L_B_q')
    e('s_cmp_lg_u32 s3, 7'); e('s_cbranch_scc1 L_B_q')
    e(f'v_add_u32 v13, {BASE+O_GP}, v8'); e(f'v_add_u32 v14, {BASE+O_GP}, v12')
    e(f's_mul_i32 s56, s59, {RS}'); e(f's_add_u32 s56, s56, {HB}')
    spin('L_gu_wait', O_CG, 8)
    for m in range(2):
        for qd in range(4):
            r = 64 + 32 * m + 8 * qd
            e(f'ds_read_b128 v[{r}:{r+3}], v13 offset:{(4*m+qd)*1536}')
            e(f'ds_read_b128 v[{r+4}:{r+7}], v14 offset:{(4*m+qd)*1536+1024}')
        e('s_waitcnt lgkmcnt(0)')
        r0 = 64 + 32 * m
        for qd in range(1, 4):
            for k in range(0, 8, 2): e(f'v_pk_add_f32 v[{r0+k}:{r0+k+1}], v[{r0+k}:{r0+k+1}], v[{r0+8*qd+k}:{r0+8*qd+k+1}]')
    def rtag(r0, n):
        for k in range(n): e(f'v_add_u32 v{r0+k}, 0x200, v{r0+k}')
        tag(r0, n, 21)
    e('s_cmp_lg_u32 s5, 15'); e('s_cbranch_scc1 L_B_pl')
    for m in range(2):
        rtag(64 + 32 * m, 4)
        e(f'buffer_store_dwordx4 v[{64+32*m}:{67+32*m}], v8, s[36:39], s56 offen offset:{RS*m} sc1')
    e('s_branch L_B_x1')
    lab('L_B_pl')
    for k in range(0, 8, 2): e(f'v_pk_add_f32 v[{64+k}:{65+k}], v[{64+k}:{65+k}], v[{96+k}:{97+k}]')
    rtag(64, 8)
    e(f'buffer_store_dwordx4 v[64:67], v8, s[36:39], s56 offen{P1}')
    e('s_cmp_ge_u32 s5, 9'); e('s_cbranch_scc1 L_B_xcc')
    e('s_mov_b32 exec_lo, 0x00ff00ff'); e('s_mov_b32 exec_hi, 0x00ff00ff')
    e(f'buffer_store_dwordx4 v[68:71], v12, s[36:39], s56 offen offset:1024{P1}')
    lab('L_B_xcc')
    e('s_getreg_b32 s44, hwreg(HW_REG_XCC_ID, 0, 4)'); e('s_lshl_b32 s44, s44, 16'); e('s_or_b32 s44, s44, s7')
    e('s_mov_b64 exec, 0xff')
    for k in range(4): e(f'v_mov_b32 v{72+k}, s44')
    e(f'buffer_store_dwordx4 v[72:75], v8, s[36:39], s56 offen offset:1536{P1}')
    e('s_mov_b64 exec, -1')
    e('s_branch L_B_x1')
    lab('L_B_q')
    e('s_cmp_lg_u32 s3, 0'); e('s_cbranch_scc1 L_B_x1')
    e('v_lshrrev_b32 v10, 5, v0'); e('v_and_b32 v11, 31, v0'); e(f'v_mul_u32_u24 v9, {3*RS}, v10'); e('v_lshl_add_u32 v9, v11, 4, v9')
    e(f'v_mul_u32_u24 v13, {RS}, v10'); e('v_lshl_add_u32 v13, v11, 4, v13')
    e(f's_mul_i32 s58, s4, {8*RS}'); e(f's_add_u32 s58, s58, {HB+144*RS}'); e('s_lshr_b32 s47, s5, 3'); e('s_lshl_b32 s47, s47, 9'); e('s_add_u32 s54, s58, s47')
    e(f's_add_u32 s55, s54, {6*RS}')
    e('v_min_u32 v12, 5, v0'); e(f'v_mul_u32_u24 v12, {RS}, v12')
    spin('L_k_wait', O_CK, opts.get('ckn', 1), sleep=4)
    stamp(9)
    if opts.get('nopoll1'): e('s_branch L_qok')
    lab('L_qpoll')
    for p in range(3):
        e(f'buffer_load_dwordx4 v[{24+4*p}:{27+4*p}], v9, s[36:39], s54 offen offset:{p*RS} sc1')
    e('buffer_load_dwordx4 v[36:39], v13, s[36:39], s55 offen sc1')
    e('buffer_load_dwordx4 v[40:43], v12, s[36:39], s58 offen offset:1536 sc1')
    e('s_waitcnt vmcnt(0)')
    untag(list(range(24, 44)), 22)
    poll_tail(22, 'L_qpoll', 'L_qok', sleep=8)
    lab('L_qok')
    for p in range(1, 4):
        for k in (0, 2): e(f'v_pk_add_f32 v[{24+k}:{25+k}], v[{24+k}:{25+k}], v[{24+4*p+k}:{25+4*p+k}]')
    e('v_cvt_pk_bf16_f32 v24, v24, v25'); e('v_cvt_pk_bf16_f32 v25, v26, v27')
    e('v_lshlrev_b32 v9, 8, v10'); e('v_lshl_add_u32 v9, v2, 4, v9'); e('v_and_b32 v10, 1, v3'); e('v_lshl_add_u32 v9, v10, 3, v9'); e(f'v_add_u32 v9, {BASE}, v9')
    e(f'ds_write_b64 v9, v[24:25] offset:{O_QT}')
    e('s_getreg_b32 s44, hwreg(HW_REG_XCC_ID, 0, 4)'); e('s_lshl_b32 s44, s44, 16')
    e('v_cmp_ne_u32 vcc, s44, v40')
    e('s_branch L_near' if opts.get('nopoll1') else 's_cbranch_vccz L_near')
    signal(O_FAR)
    lab('L_near')
    signal(O_CQ)
    lab('L_B_x1')
    def kvoff():
        e('s_lshr_b32 s6, s5, 3'); e('s_lshl_b32 s6, s6, 4'); e('s_add_u32 s6, s6, s4'); e('s_lshl_b32 s6, s6, 23')
        if PAT == 'i': e('s_and_b32 s44, s5, 7'); e('s_lshl_b32 s44, s44, 17'); e('s_add_u32 s6, s6, s44')
        e('s_add_u32 s6, s6, 0x700000')
    kvoff()
    srd(32, 12, 13, 's6', KVN)
    def kvstart(d):
        if LN < 8:
            e(f's_and_b32 s{d}, s5, 7'); e(f's_lshl_b32 s{d}, s{d}, 15')
            e(f's_lshr_b32 s44, s3, {LB}'); e(f's_lshl_b32 s44, s44, {4+LB}'); e('s_lshr_b32 s44, s44, 5'); e('s_lshl_b32 s44, s44, 18'); e(f's_add_u32 s{d}, s{d}, s44')
            e(f's_lshr_b32 s44, s3, {LB}'); e(f's_lshl_b32 s44, s44, {4+LB}'); e('s_add_u32 s49, s5, s4'); e('s_lshl_b32 s49, s49, 3'); e('s_add_u32 s44, s44, s49')
            e(f's_and_b32 s49, s3, {LN-1}'); e('s_add_u32 s44, s44, s49'); e('s_and_b32 s44, s44, 31'); e('s_lshl_b32 s44, s44, 10'); e(f's_add_u32 s{d}, s{d}, s44')
            return
        if PAT == 'i': e(f's_lshl_b32 s{d}, s5, 13')
        elif PAT == 'm': e(f's_and_b32 s{d}, s5, 7'); e(f's_lshl_b32 s{d}, s{d}, 13')
        elif PAT == 'j': e(f's_and_b32 s{d}, s5, 7'); e(f's_lshl_b32 s{d}, s{d}, 15')
        elif PAT == 'r':
            e(f's_and_b32 s{d}, s5, 7'); e(f's_lshl_b32 s{d}, s{d}, 15'); e('s_add_u32 s44, s5, s4'); e('s_and_b32 s44, s44, 3'); e('s_lshl_b32 s44, s44, 13'); e(f's_add_u32 s{d}, s{d}, s44')
        elif PAT == 'r2':
            e(f's_and_b32 s{d}, s5, 7'); e(f's_lshl_b32 s{d}, s{d}, 15'); e('s_lshr_b32 s44, s5, 2'); e('s_and_b32 s44, s44, 2'); e('s_add_u32 s44, s44, s4'); e('s_and_b32 s44, s44, 3'); e('s_lshl_b32 s44, s44, 13'); e(f's_add_u32 s{d}, s{d}, s44')
        elif PAT in ('h', 'h2', 'h3'):
            e(f's_and_b32 s{d}, s5, 7'); e(f's_lshl_b32 s{d}, s{d}, 12')
            if PAT == 'h2': e('s_and_b32 s44, s4, 3'); e('s_lshl_b32 s44, s44, 10'); e(f's_add_u32 s{d}, s{d}, s44')
            if PAT == 'h3': e('s_add_u32 s44, s4, s3'); e('s_and_b32 s44, s44, 3'); e('s_lshl_b32 s44, s44, 10'); e(f's_add_u32 s{d}, s{d}, s44')
            e('s_lshl_b32 s44, s3, 15'); e(f's_add_u32 s{d}, s{d}, s44')
            return
        elif PAT == 'p':
            e(f's_and_b32 s{d}, s5, 7'); e(f's_lshl_b32 s{d}, s{d}, 13'); e('s_lshr_b32 s44, s3, 1'); e('s_lshl_b32 s44, s44, 16'); e(f's_add_u32 s{d}, s{d}, s44')
            e('s_and_b32 s44, s3, 1'); e('s_lshl_b32 s44, s44, 10'); e(f's_add_u32 s{d}, s{d}, s44')
            return
        e('s_lshl_b32 s44, s3, 10'); e(f's_add_u32 s{d}, s{d}, s44')
    def kvnext(d, n):
        if LN < 8:
            e(f's_add_u32 s44, s{d}, {LN*1024}'); e('s_and_b32 s44, s44, 0x7c00'); e(f's_andn2_b32 s{d}, s{d}, 0x7c00'); e(f's_or_b32 s{d}, s{d}, s44')
            if ((n + 1) * LN) % 32 == 0: e(f's_add_u32 s{d}, s{d}, 0x40000')
        elif PAT == 'i':
            e(f's_add_u32 s{d}, s{d}, 0x2000'); e(f's_and_b32 s{d}, s{d}, 0x1ffff')
        elif PAT == 'm':
            e(f's_add_u32 s{d}, s{d}, 0x2000'); e(f's_and_b32 s{d}, s{d}, 0xffff'); e(f's_or_b32 s{d}, s{d}, {(n+1)*65536}')
        elif PAT == 'j':
            e(f's_add_u32 s{d}, s{d}, {0x2000 if n % 4 < 3 else 0x40000 - 0x6000}')
        elif PAT in ('h', 'h2', 'h3'):
            e(f's_add_u32 s44, s{d}, 0x400'); e('s_and_b32 s44, s44, 0xc00'); e(f's_andn2_b32 s{d}, s{d}, 0xc00'); e(f's_or_b32 s{d}, s{d}, s44')
            if n % 4 == 3:
                e(f's_add_u32 s44, s{d}, 0x1000'); e('s_and_b32 s44, s44, 0x7000'); e(f's_andn2_b32 s{d}, s{d}, 0x7000'); e(f's_or_b32 s{d}, s{d}, s44'); e(f's_add_u32 s{d}, s{d}, 0x40000')
        elif PAT == 'p':
            e(f's_add_u32 s{d}, s{d}, {0x800 if n % 4 < 3 else 0x40000 - 0x1800}')
        elif PAT in ('r', 'r2'):
            e(f's_add_u32 s44, s{d}, 0x2000'); e('s_and_b32 s44, s44, 0x6000'); e(f's_andn2_b32 s{d}, s{d}, 0x6000'); e(f's_or_b32 s{d}, s{d}, s44')
            if n % 4 == 3: e(f's_add_u32 s{d}, s{d}, 0x40000')
    kvstart(47)
    e('s_lshl_b32 s44, s3, 2'); e('v_add_u32 v9, s44, v15')
    stamp(5)
    spin('L_kd_wait', O_VD - 4 * LN, 1, areg=9, sleep=opts.get('pdsleep', 1))
    if SM: e('s_mov_b32 s62, s44'); e(f'v_add_u32 v17, {O_VD - 4 * LN}, v9')
    stamp(4)
    def vloop(dv, dvt):
        for n in range(16):
            if SM and 0 < n < dv: credit(f'L_vc{n}', min(n + 1 - opts.get('sml', 0), DK), 17)
            if n < dvt: thr(n, dv)
            else: thr(n, opts.get('dv2', 0))
            e(f'buffer_load_dwordx4 v[{64+4*n}:{67+4*n}], v8, s[32:35], s47 offen{NTV}')
            if n < 15: kvnext(47, n)
            if n == 15:
                signal(O_CV)
                if SM:
                    e(f's_cmp_ge_u32 s3, {8-LN}'); e('s_cbranch_scc1 L_v_done')
                    drain(dv, O_VD, 9)
                elif LN < 8:
                    e(f's_cmp_ge_u32 s3, {8-LN}'); e('s_cbranch_scc1 L_v_done')
                    e(f's_waitcnt vmcnt({opts.get("hov", opts["ho"])})')
                    signal(O_VD, areg=9)
    if opts.get('dvwo'):
        e('s_sub_u32 s44, s5, 9'); e('s_cmp_ge_u32 s44, 6'); e('s_cbranch_scc1 L_v_mlp')
        vloop(opts['dvwo'], opts.get('dvtwo', 16))
        e('s_branch L_v_done')
        lab('L_v_mlp')
    vloop(DV, opts.get('dvt', 16))
    lab('L_v_done')
    stamp(6)
    e('v_lshrrev_b32 v10, 3, v2'); e('v_lshlrev_b32 v10, 11, v10'); e('v_lshl_add_u32 v10, v3, 6, v10')
    e('s_lshl_b32 s44, s3, 8'); e(f's_add_u32 s44, s44, {BASE+O_PT}'); e('v_add_u32 v10, s44, v10')
    e('v_lshrrev_b32 v12, 5, v0'); e('v_lshlrev_b32 v12, 3, v12'); e(f'v_add_u32 v12, {BASE+O_ML}, v12')
    e('v_and_b32 v11, 7, v0'); e('v_lshl_add_u32 v11, v11, 4, v12')
    e('s_lshl_b32 s44, s3, 4'); e('v_add_u32 v12, s44, v12')
    e(f's_mov_b32 s49, {LOG2E}')
    e(f'v_add_u32 v13, {BASE+O_OP}, v8'); e('s_lshl_b32 s44, s3, 10'); e('v_add_u32 v14, s44, v13')
    e('s_lshl_b32 s56, s4, 4'); e('s_add_u32 s56, s56, s5'); e('s_lshl_b32 s56, s56, 10'); e(f's_add_u32 s56, s56, {OB}')
    spin('L_p_wait', O_CP, 8)
    stamp(7)
    for k in range(4): e(f'ds_read_b128 v[{40+4*k}:{43+4*k}], v10 offset:{16*k}')
    e('ds_read_b32 v16, v11'); e('ds_read_b32 v17, v12'); e(f'ds_read_b32 v19, v15 offset:{O_FAR}')
    e('s_waitcnt lgkmcnt(6)')
    def pv_and(n):
        a = 24 + 4 * (n & 1)
        for j in range(4): e(f'v_and_b32 v{a+j}, v{40+n}, v{4+j}')
    pv_and(0)
    for n in range(16):
        if n == 3:
            e('s_waitcnt lgkmcnt(0)')
            e(f'v_max_f32_dpp v16, v16, v16 {X1}')
        if n == 4: e(f'v_max_f32_dpp v16, v16, v16 {X2}')
        if n == 5: e(f'v_max_f32_dpp v16, v16, v16 {HM}')
        if n == 6: e('v_sub_f32 v17, v17, v16'); e('v_mul_f32 v17, s49, v17')
        if n == 7: e('v_exp_f32 v17, v17')
        if n == 8: e('v_readfirstlane_b32 s57, v19')
        if n < 15: pv_and(n + 1)
        a = 24 + 4 * (n & 1)
        e(f's_waitcnt vmcnt({15-n})')
        c = '0' if n == 0 else 'v[32:35]'
        e(f'v_mfma_f32_16x16x32_bf16 v[32:35], v[{a}:{a+3}], v[{64+4*n}:{67+4*n}], {c}')
    stamp(8)
    e('v_pk_mul_f32 v[32:33], v[32:33], v[16:17] op_sel:[0,1]'); e('v_pk_mul_f32 v[34:35], v[34:35], v[16:17] op_sel:[0,1]')
    e('ds_write_b128 v14, v[32:35]')
    signal(O_CO, rtn=20)
    for w in range(8): e(f'ds_read_b128 v[{64+4*w}:{67+4*w}], v13 offset:{w*1024}')
    e('s_waitcnt lgkmcnt(8)')
    e('v_readfirstlane_b32 s44, v20')
    e('s_cmp_lg_u32 s44, 7'); e('s_cbranch_scc1 L_exit')
    def padd(a, b):
        for k in (0, 2): e(f'v_pk_add_f32 v[{a+k}:{a+k+1}], v[{a+k}:{a+k+1}], v[{b+k}:{b+k+1}]')
    e('s_waitcnt lgkmcnt(6)'); padd(64, 68)
    e('s_waitcnt lgkmcnt(4)'); padd(72, 76); padd(64, 72)
    e('s_waitcnt lgkmcnt(2)'); padd(80, 84); padd(64, 80)
    e('s_waitcnt lgkmcnt(0)'); padd(88, 92); padd(64, 88)
    tag(64, 4, 21)
    if opts.get('omlp'): e('s_cmp_lt_u32 s5, 9'); e('s_cbranch_scc1 L_ofar')
    e('s_cmp_lg_u32 s57, 0'); e('s_cbranch_scc1 L_ofar')
    e(f'buffer_store_dwordx4 v[64:67], v8, s[36:39], s56 offen{opts.get("ofl", "")}')
    lab('L_odone')
    if opts.get('wb') == 1:
        e('s_cmp_lg_u32 s5, 15'); e('s_cbranch_scc1 L_nowb'); e('s_bitcmp1_b32 s4, 0'); e('s_cbranch_scc1 L_nowb')
        e('buffer_wbl2 sc1')
        lab('L_nowb')
    stamp(10)
    if BAR and ONE == 1: pass
    elif BAR:
        e('s_cmp_ge_u32 s5, 9'); e('s_cbranch_scc1 L_exit')
        e('s_barrier')
    else:
        signal(O_CO)
    endwave()
    lab('L_ofar')
    e('buffer_store_dwordx4 v[64:67], v8, s[36:39], s56 offen sc1')
    e('s_branch L_odone')

    lab('L_A')
    if KA: e('s_load_dwordx8 s[24:31], s[0:1], 64')
    e('s_sub_u32 s3, s3, 8')
    e(f'v_mov_b32 v15, {BASE}'); e('v_mov_b32 v18, 1')
    e('s_cmp_lg_u32 s3, 0'); e('s_cbranch_scc1 L_A_n0')
    e('v_lshl_add_u32 v9, v0, 3, v15'); e('v_mov_b32 v10, 0'); e('v_mov_b32 v11, 0')
    e('ds_write_b64 v9, v[10:11]')
    lab('L_A_n0')
    if opts.get('codepf', True):
        e('s_cmp_lg_u32 s3, 1'); e('s_cbranch_scc1 L_A_n1')
        e('s_getpc_b64 s[40:41]')
        lab('L_pc')
        e(f's_sub_u32 s40, s40, L_pc-{KNAME}'); e('s_subb_u32 s41, s41, 0')
        e('s_bfe_u32 s44, s2, 0x20003'); e('s_mul_i32 s44, s44, 3072')
        e('v_lshlrev_b32 v9, 4, v0'); e('v_add_u32 v9, s44, v9')
        e('global_load_dwordx4 v[20:23], v9, s[40:41]'); e('global_load_dwordx4 v[24:27], v9, s[40:41] offset:1024')
        e('global_load_dwordx4 v[28:31], v9, s[40:41] offset:2048')
        lab('L_A_n1')
    kvoff()
    e('v_xor_b32 v4, v2, v3'); e('v_lshlrev_b32 v4, 4, v4'); e('v_lshl_add_u32 v4, v3, 8, v4')
    e('v_xor_b32 v5, 64, v4'); e('v_xor_b32 v6, 0x80, v4'); e('v_xor_b32 v7, 0xc0, v4')
    e('s_lshl_b32 s47, s3, 14'); e('s_mov_b32 m0, s47')
    kvstart(48)
    e('s_lshl_b32 s44, s3, 2'); e('v_add_u32 v53, s44, v15')
    e('s_mov_b32 s46, 0')
    e('s_waitcnt lgkmcnt(0)')
    srd(32, 10, 11, 's6', KVN)
    if opts.get('tlb'):
        e('s_cmp_lg_u32 s3, 7'); e('s_cbranch_scc1 L_A_nt')
        e('s_mov_b64 exec, 1')
        e('v_mov_b32 v20, s6'); e('global_load_dword v21, v20, s[10:11] nt'); e('global_load_dword v22, v20, s[12:13] nt')
        e('s_mov_b64 exec, 7')
        e('v_lshlrev_b32 v20, 21, v0'); e('global_load_dword v23, v20, s[16:17] nt'); e('global_load_dword v24, v20, s[24:25] nt')
        e('s_mov_b64 exec, 1')
        e('global_load_dword v25, v20, s[30:31] offset:128 nt'); e('global_load_dword v26, v20, s[26:27] nt')
        e('s_mov_b64 exec, -1')
        lab('L_A_nt')
    epoch_load()
    e('s_barrier')
    if LN < 8:
        e(f's_cmp_lt_u32 s3, {LN}'); e('s_cbranch_scc1 L_pd_wait')
        spin('L_kc_wait', O_KD - 4 * LN, 1, areg=53, sleep=opts.get('pdsleep', 1))
        e('s_branch L_pd_wait_ok')
    spin('L_pd_wait', O_PD, 1 if SM else 8 // LN, areg=53, sleep=opts.get('pdsleep', 1))
    if SM:
        e('s_mov_b32 s62, s44')
        e(f's_cmp_lt_u32 s3, {LN}'); e(f's_cselect_b32 s44, {O_PD}, {O_KD - 4 * LN}'); e('v_add_u32 v17, s44, v53')
    def kloop(dk):
        for n in range(16):
            if SM and 0 < n < dk: credit(f'L_kc{n}', n + 1 - opts.get('sml', 0), 17)
            thr(n, dk)
            e(f'buffer_load_dwordx4 v{4+(n&3)}, s[32:35], s48 offen{NTK} lds')
            if n < 15: e('s_add_u32 m0, m0, 0x400'); kvnext(48, n)
            if n == opts.get('ksig', 10): signal(O_CK)
            if n == opts.get('kdsig', 15):
                if SM: drain(dk, O_KD, 53)
                else:
                    if 'ho' in opts: e(f's_waitcnt vmcnt({opts.get("hok", opts.get("hov", opts["ho"]))})')
                    signal(O_KD, areg=53)
    if opts.get('dkwo'):
        e('s_sub_u32 s44, s5, 9'); e('s_cmp_ge_u32 s44, 6'); e('s_cbranch_scc1 L_k_mlp')
        kloop(opts['dkwo'])
        e('s_branch L_k_done')
        lab('L_k_mlp')
    kloop(DK)
    lab('L_k_done')
    if opts.get('hold') and opts.get('holdpos') == 3: e('s_memrealtime s[62:63]')
    stamp(1)
    srd(36, 30, 31, None, WS_SPAN)
    for s in range(4):
        e(f'v_or_b32 v{4+s}, {4*s}, v3'); e(f'v_xor_b32 v{4+s}, v{4+s}, v2'); e(f'v_lshlrev_b32 v{4+s}, 4, v{4+s}')
        e(f'v_lshl_add_u32 v{4+s}, v2, 8, v{4+s}'); e(f'v_add_u32 v{4+s}, s47, v{4+s}')
    e('v_and_b32 v12, 1, v2'); e('v_lshlrev_b32 v12, 8, v12'); e('v_lshl_add_u32 v12, v3, 4, v12')
    e(f'v_add_u32 v12, {BASE+O_QT}, v12')
    e(f'v_mov_b32 v13, {BASE+O_ZERO}')
    e('v_lshrrev_b32 v14, 2, v2')
    for T in range(4):
        e(f'v_cmp_eq_u32 vcc, {T}, v14'); e(f'v_cndmask_b32 v{8+T}, v13, v12, vcc')
    spin('L_q_wait', O_CQ, 1)
    stamp(2)
    for T in range(4):
        for s in range(4):
            r = 64 + 16 * T + 4 * s
            e(f'ds_read_b128 v[{r}:{r+3}], v{8+T} offset:{64*s}')
        if T in (1, 2): e('s_waitcnt lgkmcnt(4)')
    def kread(T):
        e(f's_waitcnt vmcnt({12-4*T})')
        for s in range(4):
            r = 32 + 16 * (T & 1) + 4 * s
            e(f'ds_read_b128 v[{r}:{r+3}], v{4+s} offset:{4096*T}')
    e('s_waitcnt lgkmcnt(0)')
    kread(0)
    for T in range(4):
        if T < 3: kread(T + 1)
        e(f's_waitcnt lgkmcnt({4 if T < 3 else 0})')
        for s in range(4):
            r = 32 + 16 * (T & 1) + 4 * s; q = 64 + 16 * T + 4 * s
            c = '0' if (T == 0 and s == 0) else 'v[20:23]'
            e(f'v_mfma_f32_16x16x32_bf16 v[20:23], v[{q}:{q+3}], v[{r}:{r+3}], {c}')
        if T < 2: e('s_nop 7')
    finish_tag_setup(19)
    e(f's_mov_b32 s48, {SCALE}'); e(f's_mov_b32 s49, {LOG2E}'); e('s_mov_b32 s50, 0xffff0000')
    e('v_cvt_pk_bf16_f32 v24, v20, v21')
    e('v_lshlrev_b32 v20, 16, v24'); e('v_and_b32 v21, s50, v24')
    e('v_mul_f32 v20, s48, v20'); e('v_mul_f32 v21, s48, v21')
    e('v_cvt_pk_bf16_f32 v24, v20, v21')
    e('v_lshlrev_b32 v20, 16, v24'); e('v_and_b32 v21, s50, v24')
    def wave_reduce2(op, a, b, sa, sb):
        e(f'{op}_dpp v{a}, v{sa}, v{sa} {X1}'); e(f'{op}_dpp v{b}, v{sb}, v{sb} {X1}')
        for m in (X2, HM, RM, 'row_bcast:15 row_mask:0xa bank_mask:0xf', 'row_bcast:31 row_mask:0xc bank_mask:0xf'):
            e(f'{op}_dpp v{a}, v{a}, v{a} {m}'); e(f'{op}_dpp v{b}, v{b}, v{b} {m}')
    wave_reduce2('v_max_f32', 24, 26, 20, 21)
    e('v_readlane_b32 s54, v24, 63'); e('v_readlane_b32 s55, v26, 63')
    e('v_subrev_f32 v20, s54, v20'); e('v_subrev_f32 v21, s55, v21')
    e('v_mul_f32 v20, s49, v20'); e('v_mul_f32 v21, s49, v21')
    e('v_exp_f32 v20, v20'); e('v_exp_f32 v21, v21')
    e('v_and_b32 v28, 3, v0'); e('v_lshlrev_b32 v28, 6, v28'); e('v_and_b32 v29, 0x3c, v0'); e('v_add_u32 v28, v28, v29')
    e('s_lshl_b32 s44, s3, 8'); e(f's_add_u32 s44, s44, {BASE}'); e('v_add_u32 v28, s44, v28')
    e('v_cvt_pk_bf16_f32 v22, v20, v20'); e('v_cvt_pk_bf16_f32 v23, v21, v21')
    e(f'ds_write_b32 v28, v22 offset:{O_PT}'); e(f'ds_write_b32 v28, v23 offset:{O_PT+2048}')
    wave_reduce2('v_add_f32', 25, 27, 20, 21)
    e('s_lshl_b32 s44, s3, 4'); e(f's_add_u32 s44, s44, {BASE}'); e('v_mov_b32 v28, s44')
    e('s_mov_b32 exec_lo, 0'); e('s_mov_b32 exec_hi, 0x80000000')
    e(f'ds_write_b128 v28, v[24:27] offset:{O_ML}')
    signal(O_CP, rtn=17)
    e('s_waitcnt lgkmcnt(0)')
    stamp(4)
    e('v_readfirstlane_b32 s44, v17')
    if opts.get('nopub1'): e('s_branch L_A_role')
    e('s_cmp_lg_u32 s44, 7'); e('s_cbranch_scc1 L_A_role')
    e('v_and_b32 v20, 7, v0'); e('v_lshlrev_b32 v20, 4, v20'); e('v_and_b32 v21, 8, v0'); e('v_add_u32 v20, v21, v20')
    e(f'v_add_u32 v20, {BASE}, v20')
    e(f'ds_read_b64 v[22:23], v20 offset:{O_ML}'); e(f'ds_read_b32 v28, v15 offset:{O_FAR}')
    e('s_lshl_b32 s44, s4, 12'); e('s_lshl_b32 s47, s5, 8'); e('s_add_u32 s44, s44, s47'); e(f's_add_u32 s44, s44, {MLB}')
    e('v_lshlrev_b32 v21, 4, v0')
    e('s_waitcnt lgkmcnt(0)')
    e(f'v_max_f32_dpp v24, v22, v22 {X1}'); e(f'v_max_f32_dpp v24, v24, v24 {X2}'); e(f'v_max_f32_dpp v24, v24, v24 {HM}')
    e('v_sub_f32 v22, v22, v24'); e('v_mul_f32 v22, s49, v22'); e('v_exp_f32 v22, v22')
    e('v_mul_f32 v25, v22, v23')
    e(f'v_add_f32_dpp v25, v25, v25 {X1}'); e(f'v_add_f32_dpp v25, v25, v25 {X2}'); e(f'v_add_f32_dpp v25, v25, v25 {HM}')
    tag(24, 2, 19)
    e('v_mov_b32 v26, v24'); e('v_mov_b32 v27, v25')
    e('v_readfirstlane_b32 s47, v28')
    e('s_mov_b64 exec, 0xffff')
    e('s_cmp_lg_u32 s47, 0'); e('s_cbranch_scc1 L_mlfar')
    e(f'buffer_store_dwordx4 v[24:27], v21, s[36:39], s44 offen{P1}')
    e('s_branch L_mldone')
    lab('L_mlfar')
    e('buffer_store_dwordx4 v[24:27], v21, s[36:39], s44 offen sc1')
    lab('L_mldone')
    e('s_mov_b64 exec, -1')
    lab('L_A_role')
    if opts.get('ptp'):
        e('s_cmp_lg_u32 s3, 6'); e('s_cbranch_scc1 L_A_role2')
        e('s_lshl_b32 s44, s4, 4'); e('s_add_u32 s44, s44, s5'); e('s_lshl_b32 s44, s44, 10'); e(f's_add_u32 s44, s44, {OB}')
        e('v_lshlrev_b32 v20, 4, v0')
        e('buffer_load_dwordx4 v[60:63], v20, s[36:39], s44 offen sc1')
        lab('L_A_role2')
    e('s_cmp_lt_u32 s5, 9'); e('s_cbranch_scc1 L_A_mlp')
    e('s_cmp_eq_u32 s5, 15'); e('s_cbranch_scc1 L_exit')
    e('s_cmp_ge_u32 s5, 12'); e('s_cselect_b32 s53, 1, 0')
    e('s_mul_i32 s44, s53, 3'); e('s_sub_u32 s54, s5, 9'); e('s_sub_u32 s54, s54, s44')
    e('s_lshl_b32 s55, s4, 1'); e('s_add_u32 s55, s55, s53')
    e('s_lshl_b32 s44, s55, 3'); e('s_add_u32 s44, s44, s3'); e(f's_mul_i32 s44, s44, {16*1152}')
    e('s_mul_i32 s47, s54, 384'); e('s_add_u32 s44, s44, s47')
    srd(32, 16, 17, 's44', 15 * 1152 + 384)
    tile_addr()
    e('s_lshl_b32 s57, s4, 12'); e('s_lshl_b32 s47, s53, 7'); e('s_add_u32 s57, s57, s47'); e(f's_add_u32 s57, s57, {MLB}')
    e('v_lshlrev_b32 v8, 8, v2')
    e('s_lshl_b32 s58, s4, 4'); e('s_add_u32 s58, s58, s3'); e('s_lshl_b32 s58, s58, 10'); e('s_lshl_b32 s47, s53, 9'); e('s_add_u32 s58, s58, s47'); e(f's_add_u32 s58, s58, {OB}')
    e('v_lshrrev_b32 v12, 5, v0'); e('v_and_b32 v13, 31, v0'); e('v_lshlrev_b32 v7, 13, v12'); e('v_lshl_add_u32 v7, v13, 4, v7')
    e(f'v_mul_u32_u24 v12, {8*272}, v12'); e('v_lshl_add_u32 v12, v2, 4, v12'); e('v_and_b32 v13, 1, v3'); e('v_lshl_add_u32 v12, v13, 3, v12')
    e('s_mul_i32 s44, s3, 272'); e(f's_add_u32 s44, s44, {STG}'); e('v_add_u32 v12, s44, v12')
    e('v_mul_u32_u24 v9, 272, v2'); e('v_lshl_add_u32 v9, v3, 4, v9'); e(f'v_add_u32 v9, {STG}, v9')
    e('s_add_u32 s59, s55, 64'); e(f's_mul_i32 s59, s59, {FS}'); e('s_mul_i32 s47, s54, 1536'); e('s_add_u32 s59, s59, s47')
    e('s_lshl_b32 s44, s3, 8'); e('s_add_u32 s59, s59, s44'); e(f's_add_u32 s59, s59, {FB}')
    e('s_mul_i32 s44, s3, 6144'); e('s_mov_b32 m0, s44'); e('s_movk_i32 s47, 9216'); e('s_add_u32 s52, s3, 8')
    spin('L_wo_pwait', O_CP, 8, sleep=2)
    e('s_lshl_b32 s44, s3, 2'); e('v_add_u32 v53, s44, v15')
    spin('L_wo_vwait', O_CV, opts.get('cvwo', 8))
    stamp(5)
    if opts.get('pto', 1): e('buffer_load_dwordx4 v[28:31], v7, s[36:39], s58 offen sc1')
    e('buffer_load_dwordx4 v[20:23], v8, s[36:39], s57 offen sc1')
    for n in range(6):
        thr(n, DO)
        e(f"buffer_load_dwordx4 v{4+n if n < 3 else 46+n}, s[32:35], {'0' if n < 3 else 's47'} offen{NT3} lds")
        if n < 5: e('s_add_u32 m0, m0, 0x400')
    stamp(6)
    e('s_waitcnt vmcnt(6)')
    e('s_branch L_mlok' if opts.get('nopoll1') else 's_branch L_mlchk')
    lab('L_mlpoll')
    e('buffer_load_dwordx4 v[20:23], v8, s[36:39], s57 offen sc1')
    e('s_waitcnt vmcnt(0)')
    lab('L_mlchk')
    untag([20, 21, 22, 23], 24)
    poll_tail(24, 'L_mlpoll', 'L_mlok', sleep=4)
    lab('L_mlok')
    e(f'v_max_f32_dpp v24, v20, v20 {X1}'); e(f'v_max_f32_dpp v24, v24, v24 {X2}'); e(f'v_max_f32_dpp v24, v24, v24 {HM}')
    e('v_sub_f32 v20, v20, v24'); e('v_mul_f32 v20, s49, v20'); e('v_exp_f32 v20, v20')
    e('v_mul_f32 v25, v20, v21')
    e(f'v_add_f32_dpp v25, v25, v25 {X1}'); e(f'v_add_f32_dpp v25, v25, v25 {X2}'); e(f'v_add_f32_dpp v25, v25, v25 {HM}')
    e('v_rcp_f32 v25, v25'); e('v_mul_f32 v14, v20, v25')
    e('v_readlane_b32 s54, v14, s3'); e('v_readlane_b32 s55, v14, s52')
    e('v_mov_b32 v14, s55'); e('s_mov_b32 exec_hi, 0'); e('v_mov_b32 v14, s54'); e('s_mov_b32 exec_hi, -1')
    e('s_waitcnt vmcnt(0)')
    e('buffer_load_dwordx4 v[20:23], v7, s[36:39], s58 offen sc1')
    stamp(7)
    if BAR:
        e('s_barrier')
        e('s_cmp_ge_u32 s3, 6'); e('s_cbranch_scc1 L_ochk')
    else:
        signal(O_CW)
        e('s_cmp_ge_u32 s3, 6'); e('s_cbranch_scc1 L_ochk')
        spin('L_w_wait', O_CW, 8, sleep=0)
    for tl in range(2):
        for s in range(4):
            for hf in range(2):
                r = 64 + 16 * tl + 4 * s + 2 * hf
                e(f'ds_read_b64_tr_b16 v[{r}:{r+1}], v{52 if tl else 10} offset:{12288*s + 1536*hf}')
        if tl == 0: e('s_waitcnt lgkmcnt(4)')
    e('s_branch L_ochk')
    lab('L_opoll')
    e('buffer_load_dwordx4 v[20:23], v7, s[36:39], s58 offen sc1')
    lab('L_ochk')
    e('s_waitcnt vmcnt(0)')
    untag([20, 21, 22, 23], 24)
    poll_tail(24, 'L_opoll', 'L_ook', sleep=opts.get('osleep', 1))
    lab('L_ook')
    stamp(8)
    e('v_pk_mul_f32 v[20:21], v[20:21], v[14:15] op_sel_hi:[1,0]'); e('v_pk_mul_f32 v[22:23], v[22:23], v[14:15] op_sel_hi:[1,0]')
    e('v_cvt_pk_bf16_f32 v20, v20, v21'); e('v_cvt_pk_bf16_f32 v21, v22, v23')
    e('ds_write_b64 v12, v[20:21]')
    e('s_waitcnt lgkmcnt(0)')
    e('s_barrier')
    stamp(11)
    if opts.get('wb') == 2:
        e('s_cmp_lg_u32 s3, 7'); e('s_cbranch_scc1 L_nowb'); e('s_cmp_lg_u32 s5, 9'); e('s_cbranch_scc1 L_nowb'); e('s_bitcmp1_b32 s4, 0'); e('s_cbranch_scc1 L_nowb')
        e('buffer_wbl2 sc1')
        lab('L_nowb')
    e('s_cmp_ge_u32 s3, 6'); e('s_cbranch_scc1 L_exit')
    for s in range(4): e(f'ds_read_b128 v[{32+4*s}:{35+4*s}], v9 offset:{64*s}')
    for s in range(4):
        e(f's_waitcnt lgkmcnt({3-s})')
        for tl in range(2):
            d = 24 + 4 * tl
            c = '0' if s == 0 else f'v[{d}:{d+3}]'
            e(f'v_mfma_f32_16x16x32_bf16 v[{d}:{d+3}], v[{64+16*tl+4*s}:{67+16*tl+4*s}], v[{32+4*s}:{35+4*s}], {c}')
    for r in range(4): e(f'v_add_f32_dpp v{24+r}, v{24+r}, v{24+r} row_half_mirror row_mask:0xf bank_mask:0x5')
    for r in range(4): e(f'v_add_f32_dpp v{24+r}, v{28+r}, v{28+r} row_half_mirror row_mask:0xf bank_mask:0xa')
    for m in (X1, X2):
        for r in range(4): e(f'v_add_f32_dpp v{24+r}, v{24+r}, v{24+r} {m}')
    if opts.get('dwst'):
        e('s_mov_b32 vcc_lo, 0xaaaaaaaa'); e('s_mov_b32 vcc_hi, 0xaaaaaaaa')
        e('v_cndmask_b32 v24, v24, v25, vcc'); e('v_cndmask_b32 v26, v26, v27, vcc')
        e('s_mov_b32 vcc_lo, 0xcccccccc'); e('s_mov_b32 vcc_hi, 0xcccccccc')
        e('v_cndmask_b32 v24, v24, v26, vcc')
        tag(24, 1, 19)
        e('buffer_store_dword v24, v11, s[36:39], s59 offen sc1')
    else:
        tag(24, 4, 19)
        e('s_mov_b32 exec_lo, 0x11111111'); e('s_mov_b32 exec_hi, 0x11111111')
        e('buffer_store_dwordx4 v[24:27], v11, s[36:39], s59 offen sc1')
    stamp(9)
    endwave()
    lab('L_A_mlp')
    e('s_cmp_eq_u32 s3, 7'); e('s_cbranch_scc1 L_A_fin')
    e('s_cmp_eq_u32 s3, 6'); e('s_cbranch_scc1 L_exit')
    e('s_cmp_ge_u32 s52, 3'); e('s_cselect_b32 s54, 1, 0')
    e('s_mul_i32 s55, s54, 3'); e('s_add_u32 s56, s55, s3'); e('s_sub_u32 s55, s52, s55')
    e('s_cmp_ge_u32 s3, 3'); e('s_cbranch_scc1 L_A_wd')
    e('s_cmp_ge_u32 s56, 4'); e('s_cselect_b32 s44, 7, 8'); e('s_cselect_b32 s47, 1024, 0')
    e('v_bfe_u32 v13, v0, 2, 2'); e('v_lshlrev_b32 v13, s44, v13'); e('v_and_b32 v9, 1, v3'); e(f'v_mul_u32_u24 v9, {3*RS}, v9'); e('v_add_u32 v13, v13, v9')
    e('v_and_b32 v9, 3, v0'); e('v_lshl_add_u32 v13, v9, 4, v13')
    e('s_and_b32 s44, s56, 3'); e('s_lshl_b32 s44, s44, 6'); e('s_add_u32 s44, s44, s47'); e('v_add_u32 v13, s44, v13')
    e(f'v_add_u32 v12, {2*RS}, v13')
    e('s_mov_b32 exec_lo, 0')
    e(f'v_add_u32 v13, {RS}, v13')
    e('v_and_b32 v12, 31, v0'); e('v_min_u32 v12, 5, v12'); e(f'v_mul_u32_u24 v12, {RS}, v12'); e('v_add_u32 v12, 1536, v12')
    e('s_mov_b32 exec_lo, -1')
    e(f's_mul_i32 s57, s51, {6*RS}'); e(f's_add_u32 s57, s57, {HB}')
    e('v_bfe_u32 v10, v0, 2, 1'); e('v_lshl_add_u32 v10, v10, 2, v3'); e('v_lshl_add_u32 v10, v9, 3, v10'); e('s_lshl_b32 s44, s3, 5'); e('v_add_u32 v10, s44, v10')
    e('v_bfe_u32 v11, v0, 3, 1'); e('v_mul_u32_u24 v11, 192, v11'); e('v_lshl_add_u32 v11, v10, 1, v11'); e('v_add_u32 v11, v15, v11')
    e('v_lshl_add_u32 v10, v10, 2, v15')
    if opts.get('nopoll1'):
        for k in range(12): e(f'v_mov_b32 v{32+k}, 1.0')
        e('s_branch L_hnear')
    lab('L_hpoll')
    e('buffer_load_dwordx4 v[32:35], v13, s[36:39], s57 offen sc1')
    e('buffer_load_dwordx4 v[36:39], v12, s[36:39], s57 offen sc1')
    e('s_waitcnt vmcnt(0)')
    untag(list(range(32, 40)), 48)
    poll_tail(48, 'L_hpoll', 'L_hok', sleep=8)
    lab('L_hok')
    e('s_getreg_b32 s44, hwreg(HW_REG_XCC_ID, 0, 4)'); e('s_lshl_b32 s44, s44, 16')
    e('s_mov_b32 exec_lo, 0')
    e('v_cmp_ne_u32 vcc, s44, v36')
    e('s_mov_b32 exec_lo, -1')
    e('s_cbranch_vccz L_hnear')
    e('buffer_wbl2 sc1'); e('s_waitcnt vmcnt(0)')
    lab('L_hnear')
    e('s_mov_b32 exec_hi, 0')
    for k in (0, 2): e(f'v_pk_add_f32 v[{32+k}:{33+k}], v[{32+k}:{33+k}], v[{36+k}:{37+k}]')
    e('s_mov_b32 exec_hi, -1')
    e('v_permlane32_swap_b32 v32, v34'); e('v_permlane32_swap_b32 v33, v35')
    e('v_add_f32 v32, v32, v34'); e('v_add_f32 v33, v33, v35')
    e('v_permlane16_swap_b32 v32, v33')
    e('v_cvt_pk_bf16_f32 v24, v32, v33')
    e('v_and_b32 v25, s50, v24'); e('v_lshlrev_b32 v24, 16, v24')
    e('v_cmp_lt_f32 vcc, 0, v24'); e('v_cndmask_b32 v26, 0, 1.0, vcc')
    e('v_mul_f32 v24, v24, v26'); e('v_mul_f32 v24, v24, v25')
    e('v_cvt_pk_bf16_f32 v24, v24, v24')
    e(f'ds_write_b16 v11, v24 offset:{O_HS}')
    e(f'v_or_b32_dpp v25, v24, v24 {DPP("row_ror:8")}'); e('v_lshlrev_b32 v25, 17, v25')
    e(f'ds_write_b32 v10, v25 offset:{O_NZ}')
    signal(O_CH)
    stamp(5)
    lab('L_A_wd')
    e('s_lshl_b32 s56, s51, 1'); e('s_add_u32 s56, s56, s54')
    e('s_mul_i32 s44, s56, 6'); e('s_add_u32 s44, s44, s3'); e(f's_mul_i32 s44, s44, {16*1152}')
    e('s_mul_i32 s47, s55, 384'); e('s_add_u32 s44, s44, s47')
    srd(32, 24, 25, 's44', 15 * 1152 + 384)
    e('s_lshl_b32 s44, s3, 6'); e('v_add_u32 v57, s44, v15')
    tile_addr(rows=54)
    e(f's_mul_i32 s59, s56, {FS}'); e('s_mul_i32 s47, s55, 1536'); e('s_add_u32 s59, s59, s47')
    e('s_lshl_b32 s44, s3, 8'); e('s_add_u32 s59, s59, s44'); e(f's_add_u32 s59, s59, {FB}')
    e('v_lshrrev_b32 v9, 3, v2'); e('v_mul_u32_u24 v9, 192, v9'); e('v_lshl_add_u32 v9, v3, 4, v9'); e('v_add_u32 v9, v15, v9')
    e('s_mul_i32 s44, s3, 6144'); e('s_mov_b32 m0, s44'); e('s_movk_i32 s47, 9216')
    spin('L_h_wait', O_CH, 3, sleep=4)
    for s in range(3): e(f'ds_read_b128 v[{32+4*s}:{35+4*s}], v9 offset:{O_HS+64*s}')
    if opts.get('skip', 1):
        for m in range(3):
            e(f'ds_read_b32 v{58+m}, v{54+m} offset:{O_NZ}'); e(f'ds_read_b32 v{61+m}, v{54+m} offset:{O_NZ+32}')
        e('v_bfrev_b32 v8, 1')
        e('s_waitcnt lgkmcnt(0)')
        for n in range(6):
            r = 4 + n if n < 3 else 46 + n
            e(f'v_cmp_ne_u32 vcc, 0, v{58+n}'); e(f'v_cndmask_b32 v{r}, v8, v{r}, vcc')
    spin('L_wd_pwait', O_CP, 8, sleep=2)
    WPRE = opts.get('wdpre', 2)
    def wdload(n):
        e(f"buffer_load_dwordx4 v{4+n if n < 3 else 46+n}, s[32:35], {'0' if n < 3 else 's47'} offen{NT3} lds")
        if n < 5: e('s_add_u32 m0, m0, 0x400')
    if WPRE:
        spin('L_v_wait', O_CV, opts.get('cvwd', 8))
        for n in range(WPRE): wdload(n)
    stamp(8)
    if BAR and not ONE: e('s_barrier')
    if WPRE < 6:
        if not BAR: spin('L_o_wait', O_CO, opts.get('wdco', 9), sleep=0)
        for n in range(WPRE, 6): wdload(n)
    stamp(10)
    e('s_waitcnt vmcnt(0)')
    stamp(7)
    if BAR: e('s_barrier')
    else:
        signal(O_CW)
        spin('L_wd_wait', O_CW, 6, sleep=0)
    for s in range(3):
        for tl in range(2):
            for hf in range(2):
                r = 64 + 16 * tl + 4 * s + 2 * hf
                e(f'ds_read_b64_tr_b16 v[{r}:{r+1}], v{52 if tl else 10} offset:{12288*s + 1536*hf}')
    for s in range(3):
        for tl in range(2):
            e(f's_waitcnt lgkmcnt({10-4*s-2*tl})')
            d = 24 + 4 * tl
            c = '0' if s == 0 else f'v[{d}:{d+3}]'
            e(f'v_mfma_f32_16x16x32_bf16 v[{d}:{d+3}], v[{64+16*tl+4*s}:{67+16*tl+4*s}], v[{32+4*s}:{35+4*s}], {c}')
    stamp(11)
    for r in range(4): e(f'v_mov_b32_dpp v{24+r}, v{28+r} quad_perm:[0,1,2,3] row_mask:0xf bank_mask:0xa')
    if opts.get('dwst'):
        e('s_mov_b32 vcc_lo, 0xaaaaaaaa'); e('s_mov_b32 vcc_hi, 0xaaaaaaaa')
        e('v_cndmask_b32 v24, v24, v25, vcc'); e('v_cndmask_b32 v26, v26, v27, vcc')
        e('s_mov_b32 vcc_lo, 0xcccccccc'); e('s_mov_b32 vcc_hi, 0xcccccccc')
        e('v_cndmask_b32 v24, v24, v26, vcc')
        tag(24, 1, 19)
        e('buffer_store_dword v24, v11, s[36:39], s59 offen sc1')
    else:
        tag(24, 4, 19)
        e('s_mov_b32 exec_lo, 0x11111111'); e('s_mov_b32 exec_hi, 0x11111111')
        e('buffer_store_dwordx4 v[24:27], v11, s[36:39], s59 offen sc1')
    endwave()
    lab('L_A_fin')
    srd(40, 8, 9, None, 2304)
    e('v_and_b32 v5, 1, v0'); e('v_and_b32 v4, 1, v3'); e('v_lshlrev_b32 v4, 2, v4'); e('v_lshl_add_u32 v4, v5, 5, v4')
    e('s_and_b32 s44, s53, 1'); e('s_mul_i32 s44, s44, 1152'); e('s_lshr_b32 s47, s53, 3'); e('s_lshl_b32 s47, s47, 6'); e('s_add_u32 s44, s44, s47')
    e('s_and_b32 s47, s53, 6'); e('s_lshl_b32 s47, s47, 2'); e('s_add_u32 s44, s44, s47')
    e('v_add_u32 v4, s44, v4'); e('v_lshrrev_b32 v7, 5, v0'); e('v_lshl_add_u32 v4, v7, 1, v4')
    e('buffer_load_ushort v10, v4, s[40:43], 0 offen')
    srd(40, 26, 27, None, 2304)
    e('v_lshrrev_b32 v6, 1, v0'); e(f'v_mul_u32_u24 v6, {FS}, v6'); e('v_lshl_add_u32 v6, v5, 4, v6')
    e('s_lshl_b32 s57, s53, 5'); e(f's_add_u32 s57, s57, {FB}'); e(f's_add_u32 s58, s57, {32*FS}'); e(f's_add_u32 s59, s57, {64*FS}')
    for k in range(4): e(f'v_mov_b32 v{68+k}, s7')
    e('s_mov_b32 s54, 0'); e('s_mov_b32 s55, 0')
    if opts.get('ptf'):
        if opts['ptf'] & 1: e('buffer_load_dwordx4 v[72:75], v6, s[36:39], s59 offen sc1')
        if opts['ptf'] & 2:
            e('buffer_load_dwordx4 v[64:67], v6, s[36:39], s57 offen sc1')
            e('s_mov_b32 exec_hi, 0'); e('buffer_load_dwordx4 v[68:71], v6, s[36:39], s58 offen sc1'); e('s_mov_b32 exec_hi, -1')
    if BAR:
        if not ONE: e('s_barrier')
        if opts.get('warm'):
            e(f's_sleep {opts["warm"]}')
            e('buffer_load_dwordx4 v[72:75], v6, s[36:39], s59 offen sc1')
            e('buffer_load_dwordx4 v[64:67], v6, s[36:39], s57 offen sc1')
            e('s_mov_b32 exec_hi, 0'); e('buffer_load_dwordx4 v[68:71], v6, s[36:39], s58 offen sc1'); e('s_mov_b32 exec_hi, -1')
        e('s_barrier')
        if opts.get('fdelay'): e(f's_sleep {opts["fdelay"]}')
    elif opts.get('fco'): spin('L_s_start', O_CO, 9, sleep=opts['fco'])
    elif opts.get('fcw'): spin('L_s_start', O_CW, opts['fcw'], sleep=1)
    else: spin('L_s_start', O_CYS, opts.get('fstart', 6), sleep=2)
    e('s_waitcnt vmcnt(0)')
    e('v_lshlrev_b32 v10, 16, v10')
    stamp(11)
    lab('L_fpoll')
    e('s_cmp_lg_u32 s54, 0'); e('s_cbranch_scc1 L_f1')
    e('buffer_load_dwordx4 v[64:67], v6, s[36:39], s57 offen sc1')
    e('s_mov_b32 exec_hi, 0')
    e('buffer_load_dwordx4 v[68:71], v6, s[36:39], s58 offen sc1')
    e('s_mov_b32 exec_hi, -1')
    lab('L_f1')
    e('s_cmp_lg_u32 s55, 0'); e('s_cbranch_scc1 L_f2')
    e('buffer_load_dwordx4 v[72:75], v6, s[36:39], s59 offen sc1')
    e('s_waitcnt vmcnt(0)')
    untag([72, 73, 74, 75], 88, dst=[84, 85, 86, 87])
    e('v_and_b32 v88, s45, v88'); e('v_cmp_ne_u32 vcc, 0, v88'); e('s_cbranch_vccnz L_f2')
    stamp(9)
    red32(84)
    rnd(84)
    e('s_mov_b32 s55, 1')
    e('s_cmp_lg_u32 s54, 0'); e('s_cbranch_scc1 L_fok')
    lab('L_f2')
    e('s_cmp_lg_u32 s54, 0'); e('s_cbranch_scc1 L_f3')
    e('s_waitcnt vmcnt(0)')
    untag(list(range(64, 72)), 104, dst=list(range(96, 104)))
    e('v_and_b32 v104, s45, v104'); e('v_cmp_ne_u32 vcc, 0, v104'); e('s_cbranch_vccnz L_f3')
    stamp(12)
    for k in (0, 2): e(f'v_pk_add_f32 v[{96+k}:{97+k}], v[{96+k}:{97+k}], v[{100+k}:{101+k}]')
    red32(96)
    rnd(96)
    e('v_mul_f32 v97, s49, v96'); e('v_exp_f32 v97, -v97'); e('v_add_f32 v97, 1.0, v97'); e('v_rcp_f32 v97, v97')
    e('v_mul_f32 v96, v96, v97')
    rnd(96)
    e('s_mov_b32 s54, 1')
    e('s_cmp_lg_u32 s55, 0'); e('s_cbranch_scc1 L_fok')
    lab('L_f3')
    if opts.get('ssleep'): e(f's_sleep {opts["ssleep"]}')
    e('s_add_u32 s46, s46, 1'); e('s_and_b32 s44, s46, 0xff'); e('s_cbranch_scc1 L_fpoll')
    e('buffer_wbl2 sc1'); e('buffer_inv sc1'); e('s_waitcnt vmcnt(0)')
    e(f's_cmp_le_u32 s46, {SPIN_MAX}'); e('s_cbranch_scc1 L_fpoll')
    lab('L_fok')
    e('v_mul_f32 v84, v84, v96')
    rnd(84)
    e('v_add_f32 v84, v84, v10')
    if opts.get('perturb'):
        e('s_cmp_lg_u32 s53, 0'); e('s_cbranch_scc1 L_nopert'); e('s_mov_b64 exec, 1'); e(f'v_add_f32 v84, {hex(f2u(opts["perturb"]))}, v84'); e('s_mov_b64 exec, -1')
        lab('L_nopert')
    e('v_cvt_pk_bf16_f32 v96, v84, v84')
    if opts.get('hold'):
        if opts.get('holdmul'):
            e('s_memrealtime s[94:95]'); e('s_waitcnt lgkmcnt(0)'); e('s_sub_u32 s93, s94, s62'); e(f's_mul_i32 s93, s93, {opts["holdmul"]}')
        else:
            e(f's_mov_b32 s93, {opts["hold"]}')
            if opts.get('holdpos') in (4, 5):
                e('ds_read_b32 v20, v15 offset:200'); e('s_waitcnt lgkmcnt(0)'); e('v_readfirstlane_b32 s62, v20')
            if 'holdx' in opts:
                e('s_and_b32 s92, s2, 7'); e(f's_cmp_eq_u32 s92, {opts["holdx"]}'); e('s_cselect_b32 s93, s93, 0')
        lab('L_hold')
        e('s_memrealtime s[94:95]'); e('s_waitcnt lgkmcnt(0)'); e('s_sub_u32 s94, s94, s62'); e('s_cmp_lt_u32 s94, s93'); e('s_cbranch_scc1 L_hold')
    e('s_mov_b32 exec_lo, 0x00030003'); e('s_mov_b32 exec_hi, 0x00030003')
    e(f'buffer_store_short v96, v4, s[40:43], 0 offen{opts.get("outfl", "")}')
    e('s_cmp_lg_u32 s53, 0'); e('s_cbranch_scc1 L_exit')
    e('s_mov_b64 exec, 3')
    e(f'v_mul_u32_u24 v4, {EPB}, v0'); e('v_mov_b32 v5, s60')
    e(f'buffer_store_dword v5, v4, s[36:39], 0 offen{opts.get("epfl", "")}')
    endwave()

    lab('L_exit')
    if diag:
        lab('L_fin')
        e('s_mov_b64 exec, -1')
        stamp(14)
        e('s_waitcnt vmcnt(0)')
        stamp(15)
        e('s_waitcnt lgkmcnt(0)')
        e('s_lshl_b32 s44, s2, 4'); e('s_add_u32 s44, s44, s61'); e('s_lshl_b32 s44, s44, 6'); e(f's_add_u32 s44, s44, {STAMP_OFF}')
        srd(40, 30, 31, 's44', 64)
        for i in range(16): e(f'v_mov_b32 v{64+i}, s{64+2*i}')
        e('v_mov_b32 v4, 0'); e('s_mov_b64 exec, 1')
        for i in range(4): e(f'buffer_store_dwordx4 v[{64+4*i}:{67+4*i}], v4, s[40:43], 0 offen offset:{16*i}')
    lab('L_end')
    e('s_endpgm')
    if opts.get('codepf'):
        lab('L_codeend')
        L.append(f'.fill (12288-(L_codeend-{KNAME}))/4, 4, 0xbf810000')
    L.append('.section .rodata,"a"'); L.append('.p2align 6'); L.append(f'.amdhsa_kernel {KNAME}')
    L.append('  .amdhsa_next_free_vgpr 128'); L.append('  .amdhsa_next_free_sgpr 96'); L.append('  .amdhsa_accum_offset 128')
    L.append('  .amdhsa_group_segment_fixed_size 0'); L.append('  .amdhsa_kernarg_size 96'); L.append('  .amdhsa_user_sgpr_count 2')
    L.append('  .amdhsa_user_sgpr_kernarg_segment_ptr 1'); L.append('  .amdhsa_system_sgpr_workgroup_id_x 1')
    L.append('  .amdhsa_float_denorm_mode_32 3')
    L.append('.end_amdhsa_kernel')
    return '\n'.join(hazard_pass(L)) + '\n'

if __name__ == '__main__':
    import json
    open('k_diag.s', 'w').write(gen(diag=True))
    open('k_prod.s', 'w').write(gen(diag=False))
    for a in sys.argv[1:]:
        name, o = a.split('=', 1)
        open(f'exp/{name}.s', 'w').write(gen(diag=('diag' in name), opts=json.loads(o)))
```

```python
import sys, json, gen, importlib
vs = json.loads(sys.argv[1])
names = []
for n, o in vs.items():
    open(f's_{n}.s', 'w').write(gen.gen(diag=False, opts=o)); names.append(f's_{n}')
print(' '.join(names))
print(json.dumps([f'exp/{n}.s' for n in names]))
```

```python
import sys, struct
from asmlib import hazard_pass

KNAME = "recurrent_scan__sliding_block_cached__glu_gated_reglu__decode_kernel"
def f2u(x): return struct.unpack('<I', struct.pack('<f', x))[0]

BASE = 131072
O_CP, O_CO, O_CK, O_CG, O_CQ, O_CH, O_CY, O_CX = 0, 4, 8, 12, 16, 20, 24, 28
O_FAR, O_CGF, O_CV, O_CYS, O_CW = 32, 36, 40, 44, 48
STG = 49152
O_NZ = 1024
O_KD, O_VD, O_PD = 64, 96, 128
O_ZERO = 256
O_QT = 512
O_XB = 1024
O_ML = 3328
O_HS = 3456
O_PT = 3840
O_GP = 7936
O_OP = 20480
LDS_TOTAL = BASE + 28672
OB = 0x1000; MLB = 0x41000; FB = 0x51000; HB = 0xD0000; RS = 1664; EPB = 0x140000; WS_SPAN = 0x200000
STAMP_OFF = 512 << 20
TAGM = 0x3ff
LOG2E = f2u(1.4426950408889634)
SCALE = f2u(128 ** -0.5)
SPIN_MAX = 200000

HEADER = """; Kernarg layout for this problem (96 bytes, ptrs only, base s[0:1]):
;
; GEMV on n-contiguous weights: MFMA with a diagonal A operand, or LDS + transposing reads.
"""

def gen(diag=False, opts=None):
    opts = dict(dict(p3all=8, fast=1, bprio=3, lanes=4, dk=5, dv=6, dvt=16, hov=4, ksig=8, ckn=5, ho=1, wdpre=6, do=4, pto=0, codepf=0, fcw=1, dwst=1, po=1, py=1, ps=1, osleep=1, ssleep=1, slate=1), **(opts or {}))
    NTK = ' nt' if opts.get('ntk', True) else ''
    NTV = ' nt' if opts.get('ntv', True) else ''
    NT = ' nt' if opts.get('ntw', True) else ''
    NT3 = ' nt' if opts.get('nt3', opts.get('ntw', True)) else ''
    P1 = ' sc1' if opts.get('p1sc1') else ''
    FS = opts.get('fs', 4736)
    BAR = opts.get('bar', 1)
    PAT = opts.get('pat', 'r'); KVN = 131072 if PAT == 'i' else 0x100000
    LN = opts.get('lanes', 8); LB = {8: 3, 4: 2, 2: 1, 1: 0}[LN]
    SM = opts.get('smooth', 0)
    ONE = opts.get('onebar', 0)
    if opts.get('sfl'): NTK = NTV = NT = NT3 = opts['sfl']
    L = []
    def e(s): L.append('    ' + s)
    NOTES = {
        'L_B_nx': 'first-layer tile loads (gate/up: 9 per wave, wq: 5 or 6)',
        'L_B_isd': 'hand the stream to the K waves; wave 0 computes the layer norm (bf16 roundings as the reference)',
        'L_x_wait': 'wait for xn, build diagonal A operands, MFMA, partials to LDS',
        'L_gu_wait': 'wave 7: sum the 8 row blocks and publish the record',
        'L_B_q': 'wave 0: gather q partials, round to bf16, q table in LDS',
        'L_B_x1': 'V stream into registers',
        'L_p_wait': 'P.V with diagonal p operands; last wave sums the 8 partials and publishes o',
        'L_A': 'A waves: clear flags, K stream into LDS (swizzled)',
        'L_q_wait': 'Q.K, scores rounded as the reference, per-wave max, exp, sums; last wave publishes (max, sum)',
        'L_A_role': 'role dispatch',
        'L_wo_pwait': 'WO role: wo tile into LDS, softmax weights of the 16 producers, gather o, MFMA, publish s',
        'L_A_mlp': 'MLP role: waves 0..2 gather gate/up partials -> h = relu(gate)*up',
        'L_A_wd': 'W_down tile into LDS (rows whose h is zero for both batch rows are not fetched), MFMA, publish y',
        'L_A_fin': 'wave 7: gather y and s for 8 outputs, out = x + s*silu(y)',
    }
    def lab(s):
        if s in NOTES: L.append('    ; ---- ' + NOTES[s])
        L.append(s + ':')
    stamp_idx = {}
    def stamp(i):
        if diag: e(f's_memrealtime s[{64+2*i}:{65+2*i}]')
    def srd(d, lo, hi, off, nrec):
        if off is None:
            e(f's_mov_b32 s{d}, s{lo}'); e(f's_mov_b32 s{d+1}, s{hi}')
        else:
            e(f's_add_u32 s{d}, s{lo}, {off}'); e(f's_addc_u32 s{d+1}, s{hi}, 0')
        e(f's_mov_b32 s{d+2}, {nrec}'); e(f's_mov_b32 s{d+3}, 0x20000')
    DPP = lambda m: f'{m} row_mask:0xf bank_mask:0xf'
    X1 = DPP('quad_perm:[1,0,3,2]'); X2 = DPP('quad_perm:[2,3,0,1]'); HM = DPP('row_half_mirror'); RM = DPP('row_mirror')
    def masks(d):
        t, h = d + 4, d + 5
        e(f'v_and_b32 v{t}, 1, v2'); e(f'v_lshlrev_b32 v{t}, 4, v{t}')
        e(f'v_mov_b32 v{h}, 0xffff'); e(f'v_lshlrev_b32 v{h}, v{t}, v{h}')
        e(f'v_bfe_u32 v{t}, v2, 1, 2')
        for j in range(4):
            e(f'v_cmp_eq_u32 vcc, {j}, v{t}')
            e(f'v_cndmask_b32 v{d+j}, 0, v{h}, vcc')
    def tag(d, n=4, tv=None):
        for k in range(n): e(f'v_bfi_b32 v{d+k}, s45, v{tv}, v{d+k}')
    def finish_tag_setup(tv):
        e(f's_movk_i32 s45, {TAGM}')
        e('s_add_u32 s60, s7, 1'); e('s_xor_b32 s58, s58, s60'); e('s_and_b32 s58, s58, s45'); e('s_cselect_b32 s58, 0, 1'); e('s_add_u32 s60, s60, s58')
        e('s_and_b32 s7, s60, s45')
        e(f'v_mov_b32 v{tv}, s7')
    def epoch_load():
        e('s_load_dword s7, s[30:31], 0'); e(f's_mov_b32 s44, {EPB}'); e('s_load_dword s58, s[30:31], s44')
    def untag(regs, acc, dst=None):
        dst = dst or regs
        for r, d in zip(regs, dst): e(f'v_xor_b32 v{d}, s7, v{r}')
        e(f'v_or3_b32 v{acc}, v{dst[0]}, v{dst[1]}, v{dst[2]}')
        rest = dst[3:]
        while rest:
            if len(rest) >= 2:
                e(f'v_or3_b32 v{acc}, v{acc}, v{rest[0]}, v{rest[1]}'); rest = rest[2:]
            else:
                e(f'v_or_b32 v{acc}, v{acc}, v{rest[0]}'); rest = rest[1:]
    def poll_tail(acc, lpoll, lok, sleep=2):
        e(f'v_and_b32 v{acc}, s45, v{acc}')
        e(f'v_cmp_ne_u32 vcc, 0, v{acc}')
        e(f's_cbranch_vccz {lok}')
        if sleep: e(f's_sleep {sleep}')
        e('s_add_u32 s46, s46, 1'); e(f's_and_b32 s44, s46, {opts.get("flushmask", 0xff)}'); e(f's_cbranch_scc1 {lpoll}')
        e('buffer_wbl2 sc1'); e('buffer_inv sc1'); e('s_waitcnt vmcnt(0)')
        e(f's_cmp_le_u32 s46, {SPIN_MAX}'); e(f's_cbranch_scc1 {lpoll}')
    DK = opts.get('dk', 3); DV = opts.get('dv', 3); DG = opts.get('dg', 0); DW = opts.get('dw', 0); DO = opts.get('do', 3)
    def thr(i, d):
        if isinstance(d, list): d = d[i % len(d)]
        if d and i >= d: e(f's_waitcnt vmcnt({d-1})')
    def spin(name, off, target, areg=15, treg=16, sleep=1):
        lab(name)
        e(f'ds_read_b32 v{treg}, v{areg} offset:{off}')
        e('s_waitcnt lgkmcnt(0)')
        e(f'v_readfirstlane_b32 s44, v{treg}')
        e(f's_cmp_ge_u32 s44, {target}'); e(f's_cbranch_scc1 {name}_ok')
        e(f's_sleep {sleep}'); e(f's_branch {name}')
        lab(name + '_ok')
    def signal(off, areg=15, one=18, rtn=None):
        e('s_mov_b64 exec, 1')
        if rtn is None: e(f'ds_add_u32 v{areg}, v{one} offset:{off}')
        else: e(f'ds_add_rtn_u32 v{rtn}, v{areg}, v{one} offset:{off}')
        e('s_mov_b64 exec, -1')
    def ppoll(name, D, base, dst, addr, soff, pre=None, post=None, sleep=0):
        def ld(k):
            if pre: e(pre)
            e(f'buffer_load_dwordx4 v[{base+4*k}:{base+4*k+3}], v{addr}, s[36:39], {soff} offen sc1')
            if post: e(post)
        acc = dst + 4
        lab(name)
        for k in range(D - 1): ld(k)
        lab(name + '_l')
        for k in range(D):
            ld((k + D - 1) % D)
            e(f's_waitcnt vmcnt({D-1})')
            untag([base + 4 * k + i for i in range(4)], acc, dst=[dst + i for i in range(4)])
            e(f'v_and_b32 v{acc}, s45, v{acc}')
            e(f'v_cmp_ne_u32 vcc, 0, v{acc}')
            e(f's_cbranch_vccz {name}_ok')
            if sleep: e(f's_sleep {sleep}')
        e('s_add_u32 s46, s46, 1'); e(f's_and_b32 s44, s46, {max(1, 256 // D) * 2 - 1 if False else 63}'); e(f's_cbranch_scc1 {name}_l')
        e('s_waitcnt vmcnt(0)')
        e('buffer_wbl2 sc1'); e('buffer_inv sc1'); e('s_waitcnt vmcnt(0)')
        e(f's_cmp_le_u32 s46, {SPIN_MAX}'); e(f's_cbranch_scc1 {name}')
        lab(name + '_ok')
    def tile_addr(rows=None):
        for m in range(3):
            e(f'v_add_u32 v8, {64*m}, v0'); e('v_mul_u32_u24 v9, 2731, v8'); e('v_lshrrev_b32 v9, 16, v9')
            if rows is not None: e(f'v_lshl_add_u32 v{rows+m}, v9, 2, v{rows+3}')
            e('v_and_b32 v10, 2, v9'); e('v_lshlrev_b32 v10, 4, v10')
            e(f'v_mul_u32_u24 v9, {1152-384}, v9'); e(f'v_lshl_add_u32 v{4+m}, v8, 4, v9')
            e(f'v_xor_b32 v{4+m}, v{4+m}, v10'); e(f'v_xor_b32 v{49+m}, 64, v{4+m}')
        e('v_bfe_u32 v10, v0, 2, 2'); e('v_lshl_add_u32 v10, v3, 3, v10'); e('v_mul_u32_u24 v10, 384, v10'); e('v_and_b32 v11, 3, v0'); e('v_lshl_add_u32 v10, v11, 3, v10')
        e('s_lshl_b32 s44, s3, 6'); e('v_add_u32 v10, s44, v10')
        e('v_and_b32 v11, 24, v0'); e('v_lshlrev_b32 v11, 2, v11'); e('v_xor_b32 v10, v10, v11'); e('v_xor_b32 v52, 32, v10')
        e('v_lshlrev_b32 v11, 2, v0')
    def drain(d, off, areg):
        e('s_mov_b64 exec, 1')
        for k in range(d - 1, -1, -1):
            e(f's_waitcnt vmcnt({k})'); e(f'ds_add_u32 v{areg}, v18 offset:{off}')
        e('s_mov_b64 exec, -1')
    def credit(name, need, areg):
        e(f's_cmp_ge_u32 s62, {need}'); e(f's_cbranch_scc1 {name}_ok')
        lab(name)
        e(f'ds_read_b32 v16, v{areg}')
        e('s_waitcnt lgkmcnt(0)')
        e('v_readfirstlane_b32 s62, v16')
        e(f's_cmp_lt_u32 s62, {need}'); e(f's_cbranch_scc1 {name}')
        lab(name + '_ok')
    def red32(r):
        e(f'v_permlane16_swap_b32 v{r}, v{r+2}'); e(f'v_permlane16_swap_b32 v{r+1}, v{r+3}')
        e(f'v_add_f32 v{r}, v{r}, v{r+2}'); e(f'v_add_f32 v{r+1}, v{r+1}, v{r+3}')
        e(f'v_permlane32_swap_b32 v{r}, v{r+1}')
        e(f'v_add_f32 v{r}, v{r}, v{r+1}')
        for m in ('row_ror:8', 'row_ror:4', 'row_ror:2'):
            e(f'v_add_f32_dpp v{r}, v{r}, v{r} {DPP(m)}')
    def rnd(r):
        e(f'v_cvt_pk_bf16_f32 v{r}, v{r}, v{r}'); e(f'v_and_b32 v{r}, s50, v{r}')
    def endwave():
        e('s_branch L_fin' if diag else 's_endpgm')


    L.append(HEADER.rstrip())
    L.append(f"; @launch grid=(256,1,1) block=(1024,1,1) lds={LDS_TOTAL}")
    L.append('.amdgcn_target "amdgcn-amd-amdhsa--gfx950"')
    L.append('.text'); L.append(f'.globl {KNAME}'); L.append('.p2align 8'); L.append(f'.type {KNAME},@function'); lab(KNAME)
    if opts.get('hold') and opts.get('holdpos') == 0: e('s_memrealtime s[62:63]'); e('s_waitcnt lgkmcnt(0)')
    KA = opts.get('ka', 0)
    if KA: e('s_load_dwordx16 s[8:23], s[0:1], 0')
    e('s_cmp_ge_u32 s2, 256'); e('s_cbranch_scc1 L_end')
    if not KA:
        e('s_load_dwordx16 s[8:23], s[0:1], 0')
        e('s_load_dwordx8 s[24:31], s[0:1], 64')
    if diag:
        for i in range(64, 96): e(f's_mov_b32 s{i}, 0')
    stamp(0)
    if opts.get('hold') and opts.get('holdpos') == 2: e('s_waitcnt lgkmcnt(0)'); e('s_memrealtime s[62:63]')
    FAST = opts.get('fast', 0)
    def decode():
        e('s_and_b32 s4, s2, 7')
        e('s_lshl_b32 s4, s4, 1'); e('s_lshr_b32 s5, s2, 7'); e('s_add_u32 s4, s4, s5')
        e('s_bfe_u32 s5, s2, 0x40003')
        e('v_and_b32 v2, 15, v0'); e('v_lshrrev_b32 v3, 4, v0')
        e('s_mul_i32 s53, s4, 9'); e('s_add_u32 s53, s53, s5')
        e('s_mul_i32 s51, s53, 171'); e('s_lshr_b32 s51, s51, 10')
        e('s_mul_i32 s52, s51, 6'); e('s_sub_u32 s52, s53, s52')
    if FAST:
        e('v_readfirstlane_b32 s3, v0'); e('v_and_b32 v0, 63, v0'); e('s_lshr_b32 s3, s3, 6')
    else:
        e('v_lshrrev_b32 v1, 6, v0'); e('v_and_b32 v0, 63, v0'); e('v_readfirstlane_b32 s3, v1')
        decode()
    if diag: e('s_mov_b32 s61, s3')
    for i in range(opts.get('padn', 0)): e('s_mov_b32 s46, 0x12345678')
    for i in range(opts.get('jumps', 0)):
        e(f's_branch L_j{i}'); L.append('.fill 255, 4, 0xbf810000'); lab(f'L_j{i}')
    e('s_cmp_ge_u32 s3, 8'); e('s_cbranch_scc1 L_A')
    def layernorm():
        e(f'v_add_u32 v113, {BASE+O_XB}, v113')
        e('s_mov_b32 s50, 0xffff0000'); e(f's_mov_b32 s48, {f2u(1.0/576)}'); e(f's_mov_b32 s49, {f2u(1e-5)}')
        e('s_waitcnt vmcnt(3)')
        X = list(range(22, 40))
        for k in range(9):
            e(f'v_lshlrev_b32 v{X[2*k]}, 16, v{104+k}'); e(f'v_and_b32 v{X[2*k+1]}, s50, v{104+k}')
        def half_allreduce(a, t):
            for m in (X1, X2, HM, RM): e(f'v_add_f32_dpp v{a}, v{a}, v{a} {m}')
            e(f'v_mov_b32 v{t}, v{a}'); e(f'v_permlane16_swap_b32 v{a}, v{t}'); e(f'v_add_f32 v{a}, v{a}, v{t}')
        e(f'v_pk_add_f32 v[40:41], v[22:23], v[24:25]')
        for k in range(4, 18, 2): e(f'v_pk_add_f32 v[40:41], v[40:41], v[{X[k]}:{X[k+1]}]')
        e('v_add_f32 v40, v40, v41')
        half_allreduce(40, 41)
        e('v_mul_f32 v40, s48, v40')
        e('v_mov_b32 v42, 0'); e('v_mov_b32 v43, 0')
        for k in range(0, 18, 2):
            e(f'v_sub_f32 v44, v{X[k]}, v40'); e(f'v_sub_f32 v45, v{X[k+1]}, v40')
            e('v_fmac_f32 v42, v44, v44'); e('v_fmac_f32 v43, v45, v45')
        e('v_add_f32 v42, v42, v43')
        half_allreduce(42, 43)
        e('v_mul_f32 v42, s48, v42')
        e('v_cvt_pk_bf16_f32 v40, v40, v42')
        e('v_and_b32 v42, s50, v40'); e('v_lshlrev_b32 v40, 16, v40')
        e('v_add_f32 v42, s49, v42'); e('v_cvt_pk_bf16_f32 v42, v42, v42'); e('v_and_b32 v42, s50, v42')
        e('v_sqrt_f32 v42, v42'); e('v_cvt_pk_bf16_f32 v42, v42, v42'); e('v_and_b32 v42, s50, v42')
        e('v_rcp_f32 v42, v42')
        for k in range(9):
            a, b = X[2*k], X[2*k+1]
            e(f'v_sub_f32 v{a}, v{a}, v40'); e(f'v_sub_f32 v{b}, v{b}, v40')
            e(f'v_cvt_pk_bf16_f32 v{104+k}, v{a}, v{b}')
            e(f'v_lshlrev_b32 v{a}, 16, v{104+k}'); e(f'v_and_b32 v{b}, s50, v{104+k}')
            e(f'v_mul_f32 v{a}, v{a}, v42'); e(f'v_mul_f32 v{b}, v{b}, v42')
            e(f'v_cvt_pk_bf16_f32 v{104+k}, v{a}, v{b}')
        for k in range(0, 8, 2): e(f'ds_write2_b32 v113, v{104+k}, v{105+k} offset0:{k} offset1:{k+1}')
        e('ds_write_b32 v113, v112 offset:32')
        signal(O_CX)
        stamp(11)
    if FAST: decode()
    if opts.get('bprio'): e(f's_setprio {opts["bprio"]}')
    e('s_sub_u32 s44, s5, 9'); e('s_lshl_b32 s59, s4, 3'); e('s_add_u32 s59, s59, s44'); e('s_add_u32 s59, s59, 144')
    e('s_movk_i32 s49, 0x2000')
    e('s_cmp_lt_u32 s5, 9')
    e('s_cselect_b32 s44, s52, s44')
    e('s_cselect_b32 s55, 9216, s49')
    e('s_cselect_b32 s59, s53, s59')
    e('s_cmp_ge_u32 s44, 3'); e('s_cselect_b32 s62, 1, 0')
    e('s_mul_i32 s47, s62, 3'); e('s_sub_u32 s44, s44, s47')
    e('s_lshr_b32 s49, s3, 2'); e('s_cmp_eq_u32 s5, 15'); e('s_cselect_b32 s49, s49, s62')
    e('s_lshl_b32 s49, s49, 8'); e('s_lshl_b32 s48, s4, 9'); e('s_add_u32 s48, s48, s49'); e('s_mul_i32 s47, s51, 384')
    e('s_cmp_lt_u32 s5, 9'); e('s_cselect_b32 s47, s47, s48')
    e('s_and_b32 s58, s3, 3'); e('s_mul_i32 s58, s58, 144'); e('s_add_u32 s58, s58, 5')
    e('s_lshl_b32 s44, s44, 3'); e('s_add_u32 s54, s3, s44'); e('s_mul_i32 s54, s54, 24')
    e('s_cmp_eq_u32 s5, 15'); e('s_cselect_b32 s54, s58, s54')
    e('s_mul_i32 s44, s54, s55'); e('s_cselect_b32 s55, 0xc000, s55'); e('s_add_u32 s44, s44, s47')
    e('s_mul_i32 s47, s55, 6'); e('v_mul_u32_u24 v10, s47, v3'); e('v_lshl_add_u32 v10, v2, 4, v10')
    e('v_lshrrev_b32 v11, 3, v2'); e(f'v_mul_u32_u24 v11, {9216-128}, v11'); e('v_add_u32 v11, v10, v11')
    e('s_mul_i32 s34, s55, 23'); e('s_add_u32 s34, s34, 256'); e('s_mov_b32 s35, 0x20000')
    if FAST: e('s_cmp_eq_u32 s62, 0')
    e('s_waitcnt lgkmcnt(0)')
    if FAST:
        e('s_cselect_b64 s[56:57], s[20:21], s[22:23]')
        e('s_cmp_lt_u32 s5, 9'); e('s_cselect_b64 s[56:57], s[56:57], s[14:15]')
    else:
        e('s_cmp_eq_u32 s62, 0'); e('s_cselect_b32 s56, s20, s22'); e('s_cselect_b32 s57, s21, s23')
        e('s_cmp_lt_u32 s5, 9'); e('s_cselect_b32 s56, s56, s14'); e('s_cselect_b32 s57, s57, s15')
    e('s_add_u32 s32, s56, s44'); e('s_addc_u32 s33, s57, 0')
    if FAST:
        e(f'buffer_load_dwordx4 v[64:67], v10, s[32:35], 0 offen{NT}'); e(f'buffer_load_dwordx4 v[68:71], v10, s[32:35], s55 offen{NT}')
    e('s_cmp_lg_u32 s3, 0'); e('s_cbranch_scc1 L_B_nx')
    srd(40, 8, 9, None, 2304)
    e('v_lshrrev_b32 v22, 5, v0'); e('v_and_b32 v23, 31, v0')
    e('v_mul_u32_u24 v113, 1152, v22'); e('v_mad_u32_u24 v113, v23, 36, v113')
    e('buffer_load_dwordx4 v[104:107], v113, s[40:43], 0 offen')
    e('buffer_load_dwordx4 v[108:111], v113, s[40:43], 0 offen offset:16')
    e('buffer_load_dword v112, v113, s[40:43], 0 offen offset:32')
    lab('L_B_nx')
    D1 = opts.get('d1', 3)
    def d0load(t, so): e(f'buffer_load_dwordx4 v[{64+4*t}:{67+4*t}], v10, s[32:35], {so} offen{NT}')
    def d1load(p, so): e(f'buffer_load_dwordx4 v[{88+4*p}:{91+4*p}], v11, s[32:35], {so} offen offset:256{NT}')
    if not FAST: d0load(0, '0'); d0load(1, 's55')
    if opts.get('holdpos') in (4, 5): e('s_memrealtime s[90:91]')
    if KA: e('s_load_dwordx8 s[24:31], s[0:1], 64')
    e('s_lshl_b32 s44, s55, 1')
    e('s_cmp_ge_u32 s5, 9'); e('s_cbranch_scc1 L_B_dq')
    e('s_add_u32 s34, s34, 128')
    seq = [('1', 0, 0), ('0', 2, 2), ('0', 3, 3), ('1', 1, 2), ('0', 4, 4), ('0', 5, 5), ('1', 2, 4)]
    for n, (kind, idx, row) in enumerate(seq):
        i = n + 2
        if i == D1: e('s_barrier')
        thr(i, D1)
        if row: e(f's_mov_b32 s44, {row*9216}')
        so = 's44' if row else '0'
        (d0load if kind == '0' else d1load)(idx, so)
    e('s_branch L_B_isd')
    lab('L_B_dq')
    for t in range(2, 5):
        if t == D1: e('s_barrier')
        thr(t, D1)
        d0load(t, 's44')
        e('s_add_u32 s44, s44, s55')
    if D1 >= 5: e('s_barrier')
    e('s_cmp_lg_u32 s5, 15'); e('s_cbranch_scc1 L_B_isd')
    thr(5, D1)
    d0load(5, 's44')
    lab('L_B_isd')
    if opts.get('bprio') and opts.get('bprio0', 1): e('s_setprio 0')
    e(f'v_mov_b32 v15, {BASE}'); e('v_mov_b32 v18, 1')
    e(f's_and_b32 s44, s3, {LN-1}'); e('s_lshl_b32 s44, s44, 2'); e('v_add_u32 v9, s44, v15')
    if SM: drain(D1, O_PD, 9)
    else:
        if 'ho' in opts: e(f's_waitcnt vmcnt({opts["ho"]})')
        signal(O_PD, areg=9)
    e('s_cmp_lg_u32 s3, 0'); e('s_cbranch_scc1 L_B_noln')
    layernorm()
    lab('L_B_noln')
    if opts.get('holdpos') in (4, 5):
        e('s_waitcnt lgkmcnt(0)'); e('v_mov_b32 v20, s90'); e('s_cmp_lg_u32 s3, %d' % opts.get('holdw', 7)); e('s_cbranch_scc1 L_hw'); e('ds_write_b32 v15, v20 offset:200'); lab('L_hw')
    if KA: e('s_waitcnt lgkmcnt(0)')
    stamp(1)
    epoch_load()
    masks(4)
    e('s_cmp_eq_u32 s5, 15'); e('s_cselect_b32 s44, 72, 12')
    e('v_lshrrev_b32 v9, 3, v2'); e('v_mul_u32_u24 v9, 1152, v9'); e('v_mad_u32_u24 v9, v3, s44, v9')
    e('s_lshl_b32 s44, s54, 1'); e('s_and_b32 s44, s44, -4'); e(f's_add_u32 s44, s44, {BASE+O_XB}'); e('v_add_u32 v9, s44, v9')
    e('s_mov_b32 s48, 0x01000100'); e('s_mov_b32 s49, 0x03020302')
    e('v_lshlrev_b32 v8, 4, v0')
    e('v_lshlrev_b32 v12, 4, v2'); e('v_lshl_add_u32 v12, v3, 7, v12')
    e('s_mul_i32 s44, s3, 1536'); e(f's_add_u32 s44, s44, {BASE+O_GP}'); e('v_add_u32 v13, s44, v8'); e('v_add_u32 v14, s44, v12')
    for k in range(4): e(f'v_mov_b32 v{56+k}, 0')
    spin('L_x_wait', O_CX, 1, sleep=2)
    e('s_cmp_eq_u32 s5, 15'); e('s_cbranch_scc1 L_B_xs')
    for p in range(3): e(f'ds_read2_b32 v[{24+2*p}:{25+2*p}], v9 offset0:{p} offset1:{p}')
    e('s_branch L_B_xd')
    lab('L_B_xs')
    for p in range(3): e(f'ds_read2_b32 v[{24+2*p}:{25+2*p}], v9 offset0:{6*p} offset1:{6*p+3}')
    e('s_mov_b32 s48, s49')
    lab('L_B_xd')
    e('s_waitcnt lgkmcnt(0)')
    stamp(2)
    for t in range(6):
        e(f'v_perm_b32 v31, v{24+t}, v{24+t}, s{48+(t&1)}')
        for j in range(4): e(f'v_and_b32 v{32+4*t+j}, v31, v{4+j}')
    e('s_waitcnt vmcnt(0)')
    e('s_cmp_eq_u32 s5, 15'); e('s_cbranch_scc1 L_B_m5')
    e('s_cmp_ge_u32 s5, 9'); e('s_cbranch_scc1 L_B_m0')
    for t in range(6):
        d = 60 if t % 2 == 0 else 100
        c = '0' if t < 2 else f'v[{d}:{d+3}]'
        e(f'v_mfma_f32_16x16x32_bf16 v[{d}:{d+3}], v[{32+4*t}:{35+4*t}], v[{88+4*(t>>1)}:{91+4*(t>>1)}], {c}')
    for k in range(4): e(f'v_add_f32_dpp v{60+k}, v{100+k}, v{60+k} {DPP("row_ror:8")}')
    lab('L_B_m5')
    e('v_mfma_f32_16x16x32_bf16 v[56:59], v[52:55], v[84:87], v[56:59]')
    lab('L_B_m0')
    for t in range(5):
        e(f'v_mfma_f32_16x16x32_bf16 v[56:59], v[{32+4*t}:{35+4*t}], v[{64+4*t}:{67+4*t}], v[56:59]')
    e('ds_write_b128 v13, v[56:59]')
    e('s_mov_b32 exec_lo, 0x00ff00ff'); e('s_mov_b32 exec_hi, 0x00ff00ff')
    e('ds_write_b128 v14, v[60:63] offset:1024')
    signal(O_CG)
    stamp(3)
    srd(36, 30, 31, None, WS_SPAN)
    finish_tag_setup(21)
    e('s_mov_b32 s46, 0')
    if opts.get('nopub1'): e('s_branch L_B_q')
    e('s_cmp_lg_u32 s3, 7'); e('s_cbranch_scc1 L_B_q')
    e(f'v_add_u32 v13, {BASE+O_GP}, v8'); e(f'v_add_u32 v14, {BASE+O_GP}, v12')
    e(f's_mul_i32 s56, s59, {RS}'); e(f's_add_u32 s56, s56, {HB}')
    spin('L_gu_wait', O_CG, 8)
    for m in range(2):
        for qd in range(4):
            r = 64 + 32 * m + 8 * qd
            e(f'ds_read_b128 v[{r}:{r+3}], v13 offset:{(4*m+qd)*1536}')
            e(f'ds_read_b128 v[{r+4}:{r+7}], v14 offset:{(4*m+qd)*1536+1024}')
        e('s_waitcnt lgkmcnt(0)')
        r0 = 64 + 32 * m
        for qd in range(1, 4):
            for k in range(0, 8, 2): e(f'v_pk_add_f32 v[{r0+k}:{r0+k+1}], v[{r0+k}:{r0+k+1}], v[{r0+8*qd+k}:{r0+8*qd+k+1}]')
    def rtag(r0, n):
        for k in range(n): e(f'v_add_u32 v{r0+k}, 0x200, v{r0+k}')
        tag(r0, n, 21)
    e('s_cmp_lg_u32 s5, 15'); e('s_cbranch_scc1 L_B_pl')
    for m in range(2):
        rtag(64 + 32 * m, 4)
        e(f'buffer_store_dwordx4 v[{64+32*m}:{67+32*m}], v8, s[36:39], s56 offen offset:{RS*m} sc1')
    e('s_branch L_B_x1')
    lab('L_B_pl')
    for k in range(0, 8, 2): e(f'v_pk_add_f32 v[{64+k}:{65+k}], v[{64+k}:{65+k}], v[{96+k}:{97+k}]')
    rtag(64, 8)
    e(f'buffer_store_dwordx4 v[64:67], v8, s[36:39], s56 offen{P1}')
    e('s_cmp_ge_u32 s5, 9'); e('s_cbranch_scc1 L_B_xcc')
    e('s_mov_b32 exec_lo, 0x00ff00ff'); e('s_mov_b32 exec_hi, 0x00ff00ff')
    e(f'buffer_store_dwordx4 v[68:71], v12, s[36:39], s56 offen offset:1024{P1}')
    lab('L_B_xcc')
    e('s_getreg_b32 s44, hwreg(HW_REG_XCC_ID, 0, 4)'); e('s_lshl_b32 s44, s44, 16'); e('s_or_b32 s44, s44, s7')
    e('s_mov_b64 exec, 0xff')
    for k in range(4): e(f'v_mov_b32 v{72+k}, s44')
    e(f'buffer_store_dwordx4 v[72:75], v8, s[36:39], s56 offen offset:1536{P1}')
    e('s_mov_b64 exec, -1')
    e('s_branch L_B_x1')
    lab('L_B_q')
    e('s_cmp_lg_u32 s3, 0'); e('s_cbranch_scc1 L_B_x1')
    e('v_lshrrev_b32 v10, 5, v0'); e('v_and_b32 v11, 31, v0'); e(f'v_mul_u32_u24 v9, {3*RS}, v10'); e('v_lshl_add_u32 v9, v11, 4, v9')
    e(f'v_mul_u32_u24 v13, {RS}, v10'); e('v_lshl_add_u32 v13, v11, 4, v13')
    e(f's_mul_i32 s58, s4, {8*RS}'); e(f's_add_u32 s58, s58, {HB+144*RS}'); e('s_lshr_b32 s47, s5, 3'); e('s_lshl_b32 s47, s47, 9'); e('s_add_u32 s54, s58, s47')
    e(f's_add_u32 s55, s54, {6*RS}')
    e('v_min_u32 v12, 5, v0'); e(f'v_mul_u32_u24 v12, {RS}, v12')
    spin('L_k_wait', O_CK, opts.get('ckn', 1), sleep=4)
    stamp(9)
    if opts.get('nopoll1'): e('s_branch L_qok')
    lab('L_qpoll')
    for p in range(3):
        e(f'buffer_load_dwordx4 v[{24+4*p}:{27+4*p}], v9, s[36:39], s54 offen offset:{p*RS} sc1')
    e('buffer_load_dwordx4 v[36:39], v13, s[36:39], s55 offen sc1')
    e('buffer_load_dwordx4 v[40:43], v12, s[36:39], s58 offen offset:1536 sc1')
    e('s_waitcnt vmcnt(0)')
    untag(list(range(24, 44)), 22)
    poll_tail(22, 'L_qpoll', 'L_qok', sleep=8)
    lab('L_qok')
    for p in range(1, 4):
        for k in (0, 2): e(f'v_pk_add_f32 v[{24+k}:{25+k}], v[{24+k}:{25+k}], v[{24+4*p+k}:{25+4*p+k}]')
    e('v_cvt_pk_bf16_f32 v24, v24, v25'); e('v_cvt_pk_bf16_f32 v25, v26, v27')
    e('v_lshlrev_b32 v9, 8, v10'); e('v_lshl_add_u32 v9, v2, 4, v9'); e('v_and_b32 v10, 1, v3'); e('v_lshl_add_u32 v9, v10, 3, v9'); e(f'v_add_u32 v9, {BASE}, v9')
    e(f'ds_write_b64 v9, v[24:25] offset:{O_QT}')
    e('s_getreg_b32 s44, hwreg(HW_REG_XCC_ID, 0, 4)'); e('s_lshl_b32 s44, s44, 16')
    e('v_cmp_ne_u32 vcc, s44, v40')
    e('s_branch L_near' if opts.get('nopoll1') else 's_cbranch_vccz L_near')
    signal(O_FAR)
    lab('L_near')
    signal(O_CQ)
    lab('L_B_x1')
    def kvoff():
        e('s_lshr_b32 s6, s5, 3'); e('s_lshl_b32 s6, s6, 4'); e('s_add_u32 s6, s6, s4'); e('s_lshl_b32 s6, s6, 23')
        if PAT == 'i': e('s_and_b32 s44, s5, 7'); e('s_lshl_b32 s44, s44, 17'); e('s_add_u32 s6, s6, s44')
        e('s_add_u32 s6, s6, 0x700000')
    kvoff()
    srd(32, 12, 13, 's6', KVN)
    def kvstart(d):
        if LN < 8:
            e(f's_and_b32 s{d}, s5, 7'); e(f's_lshl_b32 s{d}, s{d}, 15')
            e(f's_lshr_b32 s44, s3, {LB}'); e(f's_lshl_b32 s44, s44, {4+LB}'); e('s_lshr_b32 s44, s44, 5'); e('s_lshl_b32 s44, s44, 18'); e(f's_add_u32 s{d}, s{d}, s44')
            e(f's_lshr_b32 s44, s3, {LB}'); e(f's_lshl_b32 s44, s44, {4+LB}'); e('s_add_u32 s49, s5, s4'); e('s_lshl_b32 s49, s49, 3'); e('s_add_u32 s44, s44, s49')
            e(f's_and_b32 s49, s3, {LN-1}'); e('s_add_u32 s44, s44, s49'); e('s_and_b32 s44, s44, 31'); e('s_lshl_b32 s44, s44, 10'); e(f's_add_u32 s{d}, s{d}, s44')
            return
        if PAT == 'i': e(f's_lshl_b32 s{d}, s5, 13')
        elif PAT == 'm': e(f's_and_b32 s{d}, s5, 7'); e(f's_lshl_b32 s{d}, s{d}, 13')
        elif PAT == 'j': e(f's_and_b32 s{d}, s5, 7'); e(f's_lshl_b32 s{d}, s{d}, 15')
        elif PAT == 'r':
            e(f's_and_b32 s{d}, s5, 7'); e(f's_lshl_b32 s{d}, s{d}, 15'); e('s_add_u32 s44, s5, s4'); e('s_and_b32 s44, s44, 3'); e('s_lshl_b32 s44, s44, 13'); e(f's_add_u32 s{d}, s{d}, s44')
        elif PAT == 'r2':
            e(f's_and_b32 s{d}, s5, 7'); e(f's_lshl_b32 s{d}, s{d}, 15'); e('s_lshr_b32 s44, s5, 2'); e('s_and_b32 s44, s44, 2'); e('s_add_u32 s44, s44, s4'); e('s_and_b32 s44, s44, 3'); e('s_lshl_b32 s44, s44, 13'); e(f's_add_u32 s{d}, s{d}, s44')
        elif PAT in ('h', 'h2', 'h3'):
            e(f's_and_b32 s{d}, s5, 7'); e(f's_lshl_b32 s{d}, s{d}, 12')
            if PAT == 'h2': e('s_and_b32 s44, s4, 3'); e('s_lshl_b32 s44, s44, 10'); e(f's_add_u32 s{d}, s{d}, s44')
            if PAT == 'h3': e('s_add_u32 s44, s4, s3'); e('s_and_b32 s44, s44, 3'); e('s_lshl_b32 s44, s44, 10'); e(f's_add_u32 s{d}, s{d}, s44')
            e('s_lshl_b32 s44, s3, 15'); e(f's_add_u32 s{d}, s{d}, s44')
            return
        elif PAT == 'p':
            e(f's_and_b32 s{d}, s5, 7'); e(f's_lshl_b32 s{d}, s{d}, 13'); e('s_lshr_b32 s44, s3, 1'); e('s_lshl_b32 s44, s44, 16'); e(f's_add_u32 s{d}, s{d}, s44')
            e('s_and_b32 s44, s3, 1'); e('s_lshl_b32 s44, s44, 10'); e(f's_add_u32 s{d}, s{d}, s44')
            return
        e('s_lshl_b32 s44, s3, 10'); e(f's_add_u32 s{d}, s{d}, s44')
    def kvnext(d, n):
        if LN < 8:
            e(f's_add_u32 s44, s{d}, {LN*1024}'); e('s_and_b32 s44, s44, 0x7c00'); e(f's_andn2_b32 s{d}, s{d}, 0x7c00'); e(f's_or_b32 s{d}, s{d}, s44')
            if ((n + 1) * LN) % 32 == 0: e(f's_add_u32 s{d}, s{d}, 0x40000')
        elif PAT == 'i':
            e(f's_add_u32 s{d}, s{d}, 0x2000'); e(f's_and_b32 s{d}, s{d}, 0x1ffff')
        elif PAT == 'm':
            e(f's_add_u32 s{d}, s{d}, 0x2000'); e(f's_and_b32 s{d}, s{d}, 0xffff'); e(f's_or_b32 s{d}, s{d}, {(n+1)*65536}')
        elif PAT == 'j':
            e(f's_add_u32 s{d}, s{d}, {0x2000 if n % 4 < 3 else 0x40000 - 0x6000}')
        elif PAT in ('h', 'h2', 'h3'):
            e(f's_add_u32 s44, s{d}, 0x400'); e('s_and_b32 s44, s44, 0xc00'); e(f's_andn2_b32 s{d}, s{d}, 0xc00'); e(f's_or_b32 s{d}, s{d}, s44')
            if n % 4 == 3:
                e(f's_add_u32 s44, s{d}, 0x1000'); e('s_and_b32 s44, s44, 0x7000'); e(f's_andn2_b32 s{d}, s{d}, 0x7000'); e(f's_or_b32 s{d}, s{d}, s44'); e(f's_add_u32 s{d}, s{d}, 0x40000')
        elif PAT == 'p':
            e(f's_add_u32 s{d}, s{d}, {0x800 if n % 4 < 3 else 0x40000 - 0x1800}')
        elif PAT in ('r', 'r2'):
            e(f's_add_u32 s44, s{d}, 0x2000'); e('s_and_b32 s44, s44, 0x6000'); e(f's_andn2_b32 s{d}, s{d}, 0x6000'); e(f's_or_b32 s{d}, s{d}, s44')
            if n % 4 == 3: e(f's_add_u32 s{d}, s{d}, 0x40000')
    kvstart(47)
    e('s_lshl_b32 s44, s3, 2'); e('v_add_u32 v9, s44, v15')
    stamp(5)
    spin('L_kd_wait', O_VD - 4 * LN, 1, areg=9, sleep=opts.get('pdsleep', 1))
    if SM: e('s_mov_b32 s62, s44'); e(f'v_add_u32 v17, {O_VD - 4 * LN}, v9')
    stamp(4)
    def vloop(dv, dvt):
        for n in range(16):
            if SM and 0 < n < dv: credit(f'L_vc{n}', min(n + 1 - opts.get('sml', 0), DK), 17)
            if n < dvt: thr(n, dv)
            else: thr(n, opts.get('dv2', 0))
            e(f'buffer_load_dwordx4 v[{64+4*n}:{67+4*n}], v8, s[32:35], s47 offen{NTV}')
            if n < 15: kvnext(47, n)
            if n == 15:
                signal(O_CV)
                if SM:
                    e(f's_cmp_ge_u32 s3, {8-LN}'); e('s_cbranch_scc1 L_v_done')
                    drain(dv, O_VD, 9)
                elif LN < 8:
                    e(f's_cmp_ge_u32 s3, {8-LN}'); e('s_cbranch_scc1 L_v_done')
                    e(f's_waitcnt vmcnt({opts.get("hov", opts["ho"])})')
                    signal(O_VD, areg=9)
    if opts.get('dvwo'):
        e('s_sub_u32 s44, s5, 9'); e('s_cmp_ge_u32 s44, 6'); e('s_cbranch_scc1 L_v_mlp')
        vloop(opts['dvwo'], opts.get('dvtwo', 16))
        e('s_branch L_v_done')
        lab('L_v_mlp')
    vloop(DV, opts.get('dvt', 16))
    lab('L_v_done')
    stamp(6)
    e('v_lshrrev_b32 v10, 3, v2'); e('v_lshlrev_b32 v10, 11, v10'); e('v_lshl_add_u32 v10, v3, 6, v10')
    e('s_lshl_b32 s44, s3, 8'); e(f's_add_u32 s44, s44, {BASE+O_PT}'); e('v_add_u32 v10, s44, v10')
    e('v_lshrrev_b32 v12, 5, v0'); e('v_lshlrev_b32 v12, 3, v12'); e(f'v_add_u32 v12, {BASE+O_ML}, v12')
    e('v_and_b32 v11, 7, v0'); e('v_lshl_add_u32 v11, v11, 4, v12')
    e('s_lshl_b32 s44, s3, 4'); e('v_add_u32 v12, s44, v12')
    e(f's_mov_b32 s49, {LOG2E}')
    e(f'v_add_u32 v13, {BASE+O_OP}, v8'); e('s_lshl_b32 s44, s3, 10'); e('v_add_u32 v14, s44, v13')
    e('s_lshl_b32 s56, s4, 4'); e('s_add_u32 s56, s56, s5'); e('s_lshl_b32 s56, s56, 10'); e(f's_add_u32 s56, s56, {OB}')
    spin('L_p_wait', O_CP, 8)
    stamp(7)
    for k in range(4): e(f'ds_read_b128 v[{40+4*k}:{43+4*k}], v10 offset:{16*k}')
    e('ds_read_b32 v16, v11'); e('ds_read_b32 v17, v12'); e(f'ds_read_b32 v19, v15 offset:{O_FAR}')
    e('s_waitcnt lgkmcnt(6)')
    def pv_and(n):
        a = 24 + 4 * (n & 1)
        for j in range(4): e(f'v_and_b32 v{a+j}, v{40+n}, v{4+j}')
    pv_and(0)
    for n in range(16):
        if n == 3:
            e('s_waitcnt lgkmcnt(0)')
            e(f'v_max_f32_dpp v16, v16, v16 {X1}')
        if n == 4: e(f'v_max_f32_dpp v16, v16, v16 {X2}')
        if n == 5: e(f'v_max_f32_dpp v16, v16, v16 {HM}')
        if n == 6: e('v_sub_f32 v17, v17, v16'); e('v_mul_f32 v17, s49, v17')
        if n == 7: e('v_exp_f32 v17, v17')
        if n == 8: e('v_readfirstlane_b32 s57, v19')
        if n < 15: pv_and(n + 1)
        a = 24 + 4 * (n & 1)
        e(f's_waitcnt vmcnt({15-n})')
        c = '0' if n == 0 else 'v[32:35]'
        e(f'v_mfma_f32_16x16x32_bf16 v[32:35], v[{a}:{a+3}], v[{64+4*n}:{67+4*n}], {c}')
    stamp(8)
    e('v_pk_mul_f32 v[32:33], v[32:33], v[16:17] op_sel:[0,1]'); e('v_pk_mul_f32 v[34:35], v[34:35], v[16:17] op_sel:[0,1]')
    e('ds_write_b128 v14, v[32:35]')
    signal(O_CO, rtn=20)
    for w in range(8): e(f'ds_read_b128 v[{64+4*w}:{67+4*w}], v13 offset:{w*1024}')
    e('s_waitcnt lgkmcnt(8)')
    e('v_readfirstlane_b32 s44, v20')
    e('s_cmp_lg_u32 s44, 7'); e('s_cbranch_scc1 L_exit')
    def padd(a, b):
        for k in (0, 2): e(f'v_pk_add_f32 v[{a+k}:{a+k+1}], v[{a+k}:{a+k+1}], v[{b+k}:{b+k+1}]')
    e('s_waitcnt lgkmcnt(6)'); padd(64, 68)
    e('s_waitcnt lgkmcnt(4)'); padd(72, 76); padd(64, 72)
    e('s_waitcnt lgkmcnt(2)'); padd(80, 84); padd(64, 80)
    e('s_waitcnt lgkmcnt(0)'); padd(88, 92); padd(64, 88)
    tag(64, 4, 21)
    if opts.get('omlp'): e('s_cmp_lt_u32 s5, 9'); e('s_cbranch_scc1 L_ofar')
    e('s_cmp_lg_u32 s57, 0'); e('s_cbranch_scc1 L_ofar')
    e(f'buffer_store_dwordx4 v[64:67], v8, s[36:39], s56 offen{opts.get("ofl", "")}')
    lab('L_odone')
    if opts.get('wb') == 1:
        e('s_cmp_lg_u32 s5, 15'); e('s_cbranch_scc1 L_nowb'); e('s_bitcmp1_b32 s4, 0'); e('s_cbranch_scc1 L_nowb')
        e('buffer_wbl2 sc1')
        lab('L_nowb')
    stamp(10)
    if BAR and ONE == 1: pass
    elif BAR:
        e('s_cmp_ge_u32 s5, 9'); e('s_cbranch_scc1 L_exit')
        e('s_barrier')
    else:
        signal(O_CO)
    endwave()
    lab('L_ofar')
    e('buffer_store_dwordx4 v[64:67], v8, s[36:39], s56 offen sc1')
    e('s_branch L_odone')

    lab('L_A')
    if FAST: decode()
    if KA: e('s_load_dwordx8 s[24:31], s[0:1], 64')
    e('s_sub_u32 s3, s3, 8')
    e(f'v_mov_b32 v15, {BASE}'); e('v_mov_b32 v18, 1')
    e('s_cmp_lg_u32 s3, 0'); e('s_cbranch_scc1 L_A_n0')
    e('v_lshl_add_u32 v9, v0, 3, v15'); e('v_mov_b32 v10, 0'); e('v_mov_b32 v11, 0')
    e('ds_write_b64 v9, v[10:11]')
    lab('L_A_n0')
    if opts.get('codepf', True):
        e('s_cmp_lg_u32 s3, 1'); e('s_cbranch_scc1 L_A_n1')
        e('s_getpc_b64 s[40:41]')
        lab('L_pc')
        e(f's_sub_u32 s40, s40, L_pc-{KNAME}'); e('s_subb_u32 s41, s41, 0')
        e('s_bfe_u32 s44, s2, 0x20003'); e('s_mul_i32 s44, s44, 3072')
        e('v_lshlrev_b32 v9, 4, v0'); e('v_add_u32 v9, s44, v9')
        e('global_load_dwordx4 v[20:23], v9, s[40:41]'); e('global_load_dwordx4 v[24:27], v9, s[40:41] offset:1024')
        e('global_load_dwordx4 v[28:31], v9, s[40:41] offset:2048')
        lab('L_A_n1')
    kvoff()
    e('v_xor_b32 v4, v2, v3'); e('v_lshlrev_b32 v4, 4, v4'); e('v_lshl_add_u32 v4, v3, 8, v4')
    e('v_xor_b32 v5, 64, v4'); e('v_xor_b32 v6, 0x80, v4'); e('v_xor_b32 v7, 0xc0, v4')
    e('s_lshl_b32 s47, s3, 14'); e('s_mov_b32 m0, s47')
    kvstart(48)
    e('s_lshl_b32 s44, s3, 2'); e('v_add_u32 v53, s44, v15')
    e('s_mov_b32 s46, 0')
    e('s_waitcnt lgkmcnt(0)')
    srd(32, 10, 11, 's6', KVN)
    if opts.get('tlb'):
        e('s_cmp_lg_u32 s3, 7'); e('s_cbranch_scc1 L_A_nt')
        e('s_mov_b64 exec, 1')
        e('v_mov_b32 v20, s6'); e('global_load_dword v21, v20, s[10:11] nt'); e('global_load_dword v22, v20, s[12:13] nt')
        e('s_mov_b64 exec, 7')
        e('v_lshlrev_b32 v20, 21, v0'); e('global_load_dword v23, v20, s[16:17] nt'); e('global_load_dword v24, v20, s[24:25] nt')
        e('s_mov_b64 exec, 1')
        e('global_load_dword v25, v20, s[30:31] offset:128 nt'); e('global_load_dword v26, v20, s[26:27] nt')
        e('s_mov_b64 exec, -1')
        lab('L_A_nt')
    epoch_load()
    e('s_barrier')
    if LN < 8:
        e(f's_cmp_lt_u32 s3, {LN}'); e('s_cbranch_scc1 L_pd_wait')
        spin('L_kc_wait', O_KD - 4 * LN, 1, areg=53, sleep=opts.get('pdsleep', 1))
        e('s_branch L_pd_wait_ok')
    spin('L_pd_wait', O_PD, 1 if SM else 8 // LN, areg=53, sleep=opts.get('pdsleep', 1))
    if SM:
        e('s_mov_b32 s62, s44')
        e(f's_cmp_lt_u32 s3, {LN}'); e(f's_cselect_b32 s44, {O_PD}, {O_KD - 4 * LN}'); e('v_add_u32 v17, s44, v53')
    def kloop(dk):
        for n in range(16):
            if SM and 0 < n < dk: credit(f'L_kc{n}', n + 1 - opts.get('sml', 0), 17)
            thr(n, dk)
            e(f'buffer_load_dwordx4 v{4+(n&3)}, s[32:35], s48 offen{NTK} lds')
            if n < 15: e('s_add_u32 m0, m0, 0x400'); kvnext(48, n)
            if n == opts.get('ksig', 10): signal(O_CK)
            if n == opts.get('kdsig', 15):
                if SM: drain(dk, O_KD, 53)
                else:
                    if 'ho' in opts: e(f's_waitcnt vmcnt({opts.get("hok", opts.get("hov", opts["ho"]))})')
                    signal(O_KD, areg=53)
    if opts.get('dkwo'):
        e('s_sub_u32 s44, s5, 9'); e('s_cmp_ge_u32 s44, 6'); e('s_cbranch_scc1 L_k_mlp')
        kloop(opts['dkwo'])
        e('s_branch L_k_done')
        lab('L_k_mlp')
    kloop(DK)
    lab('L_k_done')
    if opts.get('hold') and opts.get('holdpos') == 3: e('s_memrealtime s[62:63]')
    stamp(1)
    srd(36, 30, 31, None, WS_SPAN)
    for s in range(4):
        e(f'v_or_b32 v{4+s}, {4*s}, v3'); e(f'v_xor_b32 v{4+s}, v{4+s}, v2'); e(f'v_lshlrev_b32 v{4+s}, 4, v{4+s}')
        e(f'v_lshl_add_u32 v{4+s}, v2, 8, v{4+s}'); e(f'v_add_u32 v{4+s}, s47, v{4+s}')
    e('v_and_b32 v12, 1, v2'); e('v_lshlrev_b32 v12, 8, v12'); e('v_lshl_add_u32 v12, v3, 4, v12')
    e(f'v_add_u32 v12, {BASE+O_QT}, v12')
    e(f'v_mov_b32 v13, {BASE+O_ZERO}')
    e('v_lshrrev_b32 v14, 2, v2')
    for T in range(4):
        e(f'v_cmp_eq_u32 vcc, {T}, v14'); e(f'v_cndmask_b32 v{8+T}, v13, v12, vcc')
    spin('L_q_wait', O_CQ, 1)
    stamp(2)
    for T in range(4):
        for s in range(4):
            r = 64 + 16 * T + 4 * s
            e(f'ds_read_b128 v[{r}:{r+3}], v{8+T} offset:{64*s}')
        if T in (1, 2): e('s_waitcnt lgkmcnt(4)')
    def kread(T):
        e(f's_waitcnt vmcnt({12-4*T})')
        for s in range(4):
            r = 32 + 16 * (T & 1) + 4 * s
            e(f'ds_read_b128 v[{r}:{r+3}], v{4+s} offset:{4096*T}')
    e('s_waitcnt lgkmcnt(0)')
    kread(0)
    for T in range(4):
        if T < 3: kread(T + 1)
        e(f's_waitcnt lgkmcnt({4 if T < 3 else 0})')
        for s in range(4):
            r = 32 + 16 * (T & 1) + 4 * s; q = 64 + 16 * T + 4 * s
            c = '0' if (T == 0 and s == 0) else 'v[20:23]'
            e(f'v_mfma_f32_16x16x32_bf16 v[20:23], v[{q}:{q+3}], v[{r}:{r+3}], {c}')
        if T < 2: e('s_nop 7')
    finish_tag_setup(19)
    e(f's_mov_b32 s48, {SCALE}'); e(f's_mov_b32 s49, {LOG2E}'); e('s_mov_b32 s50, 0xffff0000')
    e('v_cvt_pk_bf16_f32 v24, v20, v21')
    e('v_lshlrev_b32 v20, 16, v24'); e('v_and_b32 v21, s50, v24')
    e('v_mul_f32 v20, s48, v20'); e('v_mul_f32 v21, s48, v21')
    e('v_cvt_pk_bf16_f32 v24, v20, v21')
    e('v_lshlrev_b32 v20, 16, v24'); e('v_and_b32 v21, s50, v24')
    def wave_reduce2(op, a, b, sa, sb):
        e(f'{op}_dpp v{a}, v{sa}, v{sa} {X1}'); e(f'{op}_dpp v{b}, v{sb}, v{sb} {X1}')
        for m in (X2, HM, RM, 'row_bcast:15 row_mask:0xa bank_mask:0xf', 'row_bcast:31 row_mask:0xc bank_mask:0xf'):
            e(f'{op}_dpp v{a}, v{a}, v{a} {m}'); e(f'{op}_dpp v{b}, v{b}, v{b} {m}')
    wave_reduce2('v_max_f32', 24, 26, 20, 21)
    e('v_readlane_b32 s54, v24, 63'); e('v_readlane_b32 s55, v26, 63')
    e('v_subrev_f32 v20, s54, v20'); e('v_subrev_f32 v21, s55, v21')
    e('v_mul_f32 v20, s49, v20'); e('v_mul_f32 v21, s49, v21')
    e('v_exp_f32 v20, v20'); e('v_exp_f32 v21, v21')
    e('v_and_b32 v28, 3, v0'); e('v_lshlrev_b32 v28, 6, v28'); e('v_and_b32 v29, 0x3c, v0'); e('v_add_u32 v28, v28, v29')
    e('s_lshl_b32 s44, s3, 8'); e(f's_add_u32 s44, s44, {BASE}'); e('v_add_u32 v28, s44, v28')
    e('v_cvt_pk_bf16_f32 v22, v20, v20'); e('v_cvt_pk_bf16_f32 v23, v21, v21')
    e(f'ds_write_b32 v28, v22 offset:{O_PT}'); e(f'ds_write_b32 v28, v23 offset:{O_PT+2048}')
    wave_reduce2('v_add_f32', 25, 27, 20, 21)
    e('s_lshl_b32 s44, s3, 4'); e(f's_add_u32 s44, s44, {BASE}'); e('v_mov_b32 v28, s44')
    e('s_mov_b32 exec_lo, 0'); e('s_mov_b32 exec_hi, 0x80000000')
    e(f'ds_write_b128 v28, v[24:27] offset:{O_ML}')
    signal(O_CP, rtn=17)
    e('s_waitcnt lgkmcnt(0)')
    stamp(4)
    e('v_readfirstlane_b32 s44, v17')
    if opts.get('nopub1'): e('s_branch L_A_role')
    e('s_cmp_lg_u32 s44, 7'); e('s_cbranch_scc1 L_A_role')
    e('v_and_b32 v20, 7, v0'); e('v_lshlrev_b32 v20, 4, v20'); e('v_and_b32 v21, 8, v0'); e('v_add_u32 v20, v21, v20')
    e(f'v_add_u32 v20, {BASE}, v20')
    e(f'ds_read_b64 v[22:23], v20 offset:{O_ML}'); e(f'ds_read_b32 v28, v15 offset:{O_FAR}')
    e('s_lshl_b32 s44, s4, 12'); e('s_lshl_b32 s47, s5, 8'); e('s_add_u32 s44, s44, s47'); e(f's_add_u32 s44, s44, {MLB}')
    e('v_lshlrev_b32 v21, 4, v0')
    e('s_waitcnt lgkmcnt(0)')
    e(f'v_max_f32_dpp v24, v22, v22 {X1}'); e(f'v_max_f32_dpp v24, v24, v24 {X2}'); e(f'v_max_f32_dpp v24, v24, v24 {HM}')
    e('v_sub_f32 v22, v22, v24'); e('v_mul_f32 v22, s49, v22'); e('v_exp_f32 v22, v22')
    e('v_mul_f32 v25, v22, v23')
    e(f'v_add_f32_dpp v25, v25, v25 {X1}'); e(f'v_add_f32_dpp v25, v25, v25 {X2}'); e(f'v_add_f32_dpp v25, v25, v25 {HM}')
    tag(24, 2, 19)
    e('v_mov_b32 v26, v24'); e('v_mov_b32 v27, v25')
    e('v_readfirstlane_b32 s47, v28')
    e('s_mov_b64 exec, 0xffff')
    e('s_cmp_lg_u32 s47, 0'); e('s_cbranch_scc1 L_mlfar')
    e(f'buffer_store_dwordx4 v[24:27], v21, s[36:39], s44 offen{P1}')
    e('s_branch L_mldone')
    lab('L_mlfar')
    e('buffer_store_dwordx4 v[24:27], v21, s[36:39], s44 offen sc1')
    lab('L_mldone')
    e('s_mov_b64 exec, -1')
    lab('L_A_role')
    if opts.get('ptp'):
        e('s_cmp_lg_u32 s3, 6'); e('s_cbranch_scc1 L_A_role2')
        e('s_lshl_b32 s44, s4, 4'); e('s_add_u32 s44, s44, s5'); e('s_lshl_b32 s44, s44, 10'); e(f's_add_u32 s44, s44, {OB}')
        e('v_lshlrev_b32 v20, 4, v0')
        e('buffer_load_dwordx4 v[60:63], v20, s[36:39], s44 offen sc1')
        lab('L_A_role2')
    e('s_cmp_lt_u32 s5, 9'); e('s_cbranch_scc1 L_A_mlp')
    e('s_cmp_eq_u32 s5, 15'); e('s_cbranch_scc1 L_exit')
    e('s_cmp_ge_u32 s5, 12'); e('s_cselect_b32 s53, 1, 0')
    e('s_mul_i32 s44, s53, 3'); e('s_sub_u32 s54, s5, 9'); e('s_sub_u32 s54, s54, s44')
    e('s_lshl_b32 s55, s4, 1'); e('s_add_u32 s55, s55, s53')
    e('s_lshl_b32 s44, s55, 3'); e('s_add_u32 s44, s44, s3'); e(f's_mul_i32 s44, s44, {16*1152}')
    e('s_mul_i32 s47, s54, 384'); e('s_add_u32 s44, s44, s47')
    srd(32, 16, 17, 's44', 15 * 1152 + 384)
    tile_addr()
    e('s_lshl_b32 s57, s4, 12'); e('s_lshl_b32 s47, s53, 7'); e('s_add_u32 s57, s57, s47'); e(f's_add_u32 s57, s57, {MLB}')
    e('v_lshlrev_b32 v8, 8, v2')
    e('s_lshl_b32 s58, s4, 4'); e('s_add_u32 s58, s58, s3'); e('s_lshl_b32 s58, s58, 10'); e('s_lshl_b32 s47, s53, 9'); e('s_add_u32 s58, s58, s47'); e(f's_add_u32 s58, s58, {OB}')
    e('v_lshrrev_b32 v12, 5, v0'); e('v_and_b32 v13, 31, v0'); e('v_lshlrev_b32 v7, 13, v12'); e('v_lshl_add_u32 v7, v13, 4, v7')
    e(f'v_mul_u32_u24 v12, {8*272}, v12'); e('v_lshl_add_u32 v12, v2, 4, v12'); e('v_and_b32 v13, 1, v3'); e('v_lshl_add_u32 v12, v13, 3, v12')
    e('s_mul_i32 s44, s3, 272'); e(f's_add_u32 s44, s44, {STG}'); e('v_add_u32 v12, s44, v12')
    e('v_mul_u32_u24 v9, 272, v2'); e('v_lshl_add_u32 v9, v3, 4, v9'); e(f'v_add_u32 v9, {STG}, v9')
    e('s_add_u32 s59, s55, 64'); e(f's_mul_i32 s59, s59, {FS}'); e('s_mul_i32 s47, s54, 1536'); e('s_add_u32 s59, s59, s47')
    e('s_lshl_b32 s44, s3, 8'); e('s_add_u32 s59, s59, s44'); e(f's_add_u32 s59, s59, {FB}')
    e('s_mul_i32 s44, s3, 6144'); e('s_mov_b32 m0, s44'); e('s_movk_i32 s47, 9216'); e('s_add_u32 s52, s3, 8')
    spin('L_wo_pwait', O_CP, 8, sleep=2)
    e('s_lshl_b32 s44, s3, 2'); e('v_add_u32 v53, s44, v15')
    spin('L_wo_vwait', O_CV, opts.get('cvwo', 8))
    stamp(5)
    if opts.get('pto', 1): e('buffer_load_dwordx4 v[28:31], v7, s[36:39], s58 offen sc1')
    e('buffer_load_dwordx4 v[20:23], v8, s[36:39], s57 offen sc1')
    for n in range(6):
        thr(n, DO)
        e(f"buffer_load_dwordx4 v{4+n if n < 3 else 46+n}, s[32:35], {'0' if n < 3 else 's47'} offen{NT3} lds")
        if n < 5: e('s_add_u32 m0, m0, 0x400')
    stamp(6)
    e('s_waitcnt vmcnt(6)')
    e('s_branch L_mlok' if opts.get('nopoll1') else 's_branch L_mlchk')
    lab('L_mlpoll')
    e('buffer_load_dwordx4 v[20:23], v8, s[36:39], s57 offen sc1')
    e('s_waitcnt vmcnt(0)')
    lab('L_mlchk')
    untag([20, 21, 22, 23], 24)
    poll_tail(24, 'L_mlpoll', 'L_mlok', sleep=4)
    lab('L_mlok')
    e(f'v_max_f32_dpp v24, v20, v20 {X1}'); e(f'v_max_f32_dpp v24, v24, v24 {X2}'); e(f'v_max_f32_dpp v24, v24, v24 {HM}')
    e('v_sub_f32 v20, v20, v24'); e('v_mul_f32 v20, s49, v20'); e('v_exp_f32 v20, v20')
    e('v_mul_f32 v25, v20, v21')
    e(f'v_add_f32_dpp v25, v25, v25 {X1}'); e(f'v_add_f32_dpp v25, v25, v25 {X2}'); e(f'v_add_f32_dpp v25, v25, v25 {HM}')
    e('v_rcp_f32 v25, v25'); e('v_mul_f32 v14, v20, v25')
    e('v_readlane_b32 s54, v14, s3'); e('v_readlane_b32 s55, v14, s52')
    e('v_mov_b32 v14, s55'); e('s_mov_b32 exec_hi, 0'); e('v_mov_b32 v14, s54'); e('s_mov_b32 exec_hi, -1')
    e('s_waitcnt vmcnt(0)')
    e('buffer_load_dwordx4 v[20:23], v7, s[36:39], s58 offen sc1')
    stamp(7)
    if BAR:
        e('s_barrier')
        e('s_cmp_ge_u32 s3, 6'); e('s_cbranch_scc1 L_ochk')
    else:
        signal(O_CW)
        e('s_cmp_ge_u32 s3, 6'); e('s_cbranch_scc1 L_ochk')
        spin('L_w_wait', O_CW, 8, sleep=0)
    for tl in range(2):
        for s in range(4):
            for hf in range(2):
                r = 64 + 16 * tl + 4 * s + 2 * hf
                e(f'ds_read_b64_tr_b16 v[{r}:{r+1}], v{52 if tl else 10} offset:{12288*s + 1536*hf}')
        if tl == 0: e('s_waitcnt lgkmcnt(4)')
    e('s_branch L_ochk')
    lab('L_opoll')
    e('buffer_load_dwordx4 v[20:23], v7, s[36:39], s58 offen sc1')
    lab('L_ochk')
    e('s_waitcnt vmcnt(0)')
    untag([20, 21, 22, 23], 24)
    poll_tail(24, 'L_opoll', 'L_ook', sleep=opts.get('osleep', 1))
    lab('L_ook')
    stamp(8)
    e('v_pk_mul_f32 v[20:21], v[20:21], v[14:15] op_sel_hi:[1,0]'); e('v_pk_mul_f32 v[22:23], v[22:23], v[14:15] op_sel_hi:[1,0]')
    e('v_cvt_pk_bf16_f32 v20, v20, v21'); e('v_cvt_pk_bf16_f32 v21, v22, v23')
    e('ds_write_b64 v12, v[20:21]')
    e('s_waitcnt lgkmcnt(0)')
    e('s_barrier')
    stamp(11)
    if opts.get('wb') == 2:
        e('s_cmp_lg_u32 s3, 7'); e('s_cbranch_scc1 L_nowb'); e('s_cmp_lg_u32 s5, 9'); e('s_cbranch_scc1 L_nowb'); e('s_bitcmp1_b32 s4, 0'); e('s_cbranch_scc1 L_nowb')
        e('buffer_wbl2 sc1')
        lab('L_nowb')
    e('s_cmp_ge_u32 s3, 6'); e('s_cbranch_scc1 L_exit')
    for s in range(4): e(f'ds_read_b128 v[{32+4*s}:{35+4*s}], v9 offset:{64*s}')
    for s in range(4):
        e(f's_waitcnt lgkmcnt({3-s})')
        for tl in range(2):
            d = 24 + 4 * tl
            c = '0' if s == 0 else f'v[{d}:{d+3}]'
            e(f'v_mfma_f32_16x16x32_bf16 v[{d}:{d+3}], v[{64+16*tl+4*s}:{67+16*tl+4*s}], v[{32+4*s}:{35+4*s}], {c}')
    for r in range(4): e(f'v_add_f32_dpp v{24+r}, v{24+r}, v{24+r} row_half_mirror row_mask:0xf bank_mask:0x5')
    for r in range(4): e(f'v_add_f32_dpp v{24+r}, v{28+r}, v{28+r} row_half_mirror row_mask:0xf bank_mask:0xa')
    for m in (X1, X2):
        for r in range(4): e(f'v_add_f32_dpp v{24+r}, v{24+r}, v{24+r} {m}')
    if opts.get('dwst'):
        e('s_mov_b32 vcc_lo, 0xaaaaaaaa'); e('s_mov_b32 vcc_hi, 0xaaaaaaaa')
        e('v_cndmask_b32 v24, v24, v25, vcc'); e('v_cndmask_b32 v26, v26, v27, vcc')
        e('s_mov_b32 vcc_lo, 0xcccccccc'); e('s_mov_b32 vcc_hi, 0xcccccccc')
        e('v_cndmask_b32 v24, v24, v26, vcc')
        tag(24, 1, 19)
        e('buffer_store_dword v24, v11, s[36:39], s59 offen sc1')
    else:
        tag(24, 4, 19)
        e('s_mov_b32 exec_lo, 0x11111111'); e('s_mov_b32 exec_hi, 0x11111111')
        e('buffer_store_dwordx4 v[24:27], v11, s[36:39], s59 offen sc1')
    stamp(9)
    endwave()
    lab('L_A_mlp')
    e('s_cmp_eq_u32 s3, 7'); e('s_cbranch_scc1 L_A_fin')
    e('s_cmp_eq_u32 s3, 6'); e('s_cbranch_scc1 L_exit')
    e('s_cmp_ge_u32 s52, 3'); e('s_cselect_b32 s54, 1, 0')
    e('s_mul_i32 s55, s54, 3'); e('s_add_u32 s56, s55, s3'); e('s_sub_u32 s55, s52, s55')
    e('s_cmp_ge_u32 s3, 3'); e('s_cbranch_scc1 L_A_wd')
    e('s_cmp_ge_u32 s56, 4'); e('s_cselect_b32 s44, 7, 8'); e('s_cselect_b32 s47, 1024, 0')
    e('v_bfe_u32 v13, v0, 2, 2'); e('v_lshlrev_b32 v13, s44, v13'); e('v_and_b32 v9, 1, v3'); e(f'v_mul_u32_u24 v9, {3*RS}, v9'); e('v_add_u32 v13, v13, v9')
    e('v_and_b32 v9, 3, v0'); e('v_lshl_add_u32 v13, v9, 4, v13')
    e('s_and_b32 s44, s56, 3'); e('s_lshl_b32 s44, s44, 6'); e('s_add_u32 s44, s44, s47'); e('v_add_u32 v13, s44, v13')
    e(f'v_add_u32 v12, {2*RS}, v13')
    e('s_mov_b32 exec_lo, 0')
    e(f'v_add_u32 v13, {RS}, v13')
    e('v_and_b32 v12, 31, v0'); e('v_min_u32 v12, 5, v12'); e(f'v_mul_u32_u24 v12, {RS}, v12'); e('v_add_u32 v12, 1536, v12')
    e('s_mov_b32 exec_lo, -1')
    e(f's_mul_i32 s57, s51, {6*RS}'); e(f's_add_u32 s57, s57, {HB}')
    e('v_bfe_u32 v10, v0, 2, 1'); e('v_lshl_add_u32 v10, v10, 2, v3'); e('v_lshl_add_u32 v10, v9, 3, v10'); e('s_lshl_b32 s44, s3, 5'); e('v_add_u32 v10, s44, v10')
    e('v_bfe_u32 v11, v0, 3, 1'); e('v_mul_u32_u24 v11, 192, v11'); e('v_lshl_add_u32 v11, v10, 1, v11'); e('v_add_u32 v11, v15, v11')
    e('v_lshl_add_u32 v10, v10, 2, v15')
    if opts.get('nopoll1'):
        for k in range(12): e(f'v_mov_b32 v{32+k}, 1.0')
        e('s_branch L_hnear')
    lab('L_hpoll')
    e('buffer_load_dwordx4 v[32:35], v13, s[36:39], s57 offen sc1')
    e('buffer_load_dwordx4 v[36:39], v12, s[36:39], s57 offen sc1')
    e('s_waitcnt vmcnt(0)')
    untag(list(range(32, 40)), 48)
    poll_tail(48, 'L_hpoll', 'L_hok', sleep=8)
    lab('L_hok')
    e('s_getreg_b32 s44, hwreg(HW_REG_XCC_ID, 0, 4)'); e('s_lshl_b32 s44, s44, 16')
    e('s_mov_b32 exec_lo, 0')
    e('v_cmp_ne_u32 vcc, s44, v36')
    e('s_mov_b32 exec_lo, -1')
    e('s_cbranch_vccz L_hnear')
    e('buffer_wbl2 sc1'); e('s_waitcnt vmcnt(0)')
    lab('L_hnear')
    e('s_mov_b32 exec_hi, 0')
    for k in (0, 2): e(f'v_pk_add_f32 v[{32+k}:{33+k}], v[{32+k}:{33+k}], v[{36+k}:{37+k}]')
    e('s_mov_b32 exec_hi, -1')
    e('v_permlane32_swap_b32 v32, v34'); e('v_permlane32_swap_b32 v33, v35')
    e('v_add_f32 v32, v32, v34'); e('v_add_f32 v33, v33, v35')
    e('v_permlane16_swap_b32 v32, v33')
    e('v_cvt_pk_bf16_f32 v24, v32, v33')
    e('v_and_b32 v25, s50, v24'); e('v_lshlrev_b32 v24, 16, v24')
    e('v_cmp_lt_f32 vcc, 0, v24'); e('v_cndmask_b32 v26, 0, 1.0, vcc')
    e('v_mul_f32 v24, v24, v26'); e('v_mul_f32 v24, v24, v25')
    e('v_cvt_pk_bf16_f32 v24, v24, v24')
    e(f'ds_write_b16 v11, v24 offset:{O_HS}')
    e(f'v_or_b32_dpp v25, v24, v24 {DPP("row_ror:8")}'); e('v_lshlrev_b32 v25, 17, v25')
    e(f'ds_write_b32 v10, v25 offset:{O_NZ}')
    signal(O_CH)
    stamp(5)
    lab('L_A_wd')
    e('s_lshl_b32 s56, s51, 1'); e('s_add_u32 s56, s56, s54')
    e('s_mul_i32 s44, s56, 6'); e('s_add_u32 s44, s44, s3'); e(f's_mul_i32 s44, s44, {16*1152}')
    e('s_mul_i32 s47, s55, 384'); e('s_add_u32 s44, s44, s47')
    srd(32, 24, 25, 's44', 15 * 1152 + 384)
    e('s_lshl_b32 s44, s3, 6'); e('v_add_u32 v57, s44, v15')
    tile_addr(rows=54)
    e(f's_mul_i32 s59, s56, {FS}'); e('s_mul_i32 s47, s55, 1536'); e('s_add_u32 s59, s59, s47')
    e('s_lshl_b32 s44, s3, 8'); e('s_add_u32 s59, s59, s44'); e(f's_add_u32 s59, s59, {FB}')
    e('v_lshrrev_b32 v9, 3, v2'); e('v_mul_u32_u24 v9, 192, v9'); e('v_lshl_add_u32 v9, v3, 4, v9'); e('v_add_u32 v9, v15, v9')
    e('s_mul_i32 s44, s3, 6144'); e('s_mov_b32 m0, s44'); e('s_movk_i32 s47, 9216')
    spin('L_h_wait', O_CH, 3, sleep=4)
    for s in range(3): e(f'ds_read_b128 v[{32+4*s}:{35+4*s}], v9 offset:{O_HS+64*s}')
    if opts.get('skip', 1):
        for m in range(3):
            e(f'ds_read_b32 v{58+m}, v{54+m} offset:{O_NZ}'); e(f'ds_read_b32 v{61+m}, v{54+m} offset:{O_NZ+32}')
        e('v_bfrev_b32 v8, 1')
        e('s_waitcnt lgkmcnt(0)')
        for n in range(6):
            r = 4 + n if n < 3 else 46 + n
            e(f'v_cmp_ne_u32 vcc, 0, v{58+n}'); e(f'v_cndmask_b32 v{r}, v8, v{r}, vcc')
    spin('L_wd_pwait', O_CP, 8, sleep=2)
    WPRE = opts.get('wdpre', 2)
    def wdload(n):
        e(f"buffer_load_dwordx4 v{4+n if n < 3 else 46+n}, s[32:35], {'0' if n < 3 else 's47'} offen{NT3} lds")
        if n < 5: e('s_add_u32 m0, m0, 0x400')
    if WPRE:
        spin('L_v_wait', O_CV, opts.get('cvwd', 8))
        for n in range(WPRE): wdload(n)
    stamp(8)
    if BAR and not ONE: e('s_barrier')
    if WPRE < 6:
        if not BAR: spin('L_o_wait', O_CO, opts.get('wdco', 9), sleep=0)
        for n in range(WPRE, 6): wdload(n)
    stamp(10)
    e('s_waitcnt vmcnt(0)')
    stamp(7)
    if BAR: e('s_barrier')
    else:
        signal(O_CW)
        spin('L_wd_wait', O_CW, 6, sleep=0)
    for s in range(3):
        for tl in range(2):
            for hf in range(2):
                r = 64 + 16 * tl + 4 * s + 2 * hf
                e(f'ds_read_b64_tr_b16 v[{r}:{r+1}], v{52 if tl else 10} offset:{12288*s + 1536*hf}')
    for s in range(3):
        for tl in range(2):
            e(f's_waitcnt lgkmcnt({10-4*s-2*tl})')
            d = 24 + 4 * tl
            c = '0' if s == 0 else f'v[{d}:{d+3}]'
            e(f'v_mfma_f32_16x16x32_bf16 v[{d}:{d+3}], v[{64+16*tl+4*s}:{67+16*tl+4*s}], v[{32+4*s}:{35+4*s}], {c}')
    stamp(11)
    for r in range(4): e(f'v_mov_b32_dpp v{24+r}, v{28+r} quad_perm:[0,1,2,3] row_mask:0xf bank_mask:0xa')
    if opts.get('dwst'):
        e('s_mov_b32 vcc_lo, 0xaaaaaaaa'); e('s_mov_b32 vcc_hi, 0xaaaaaaaa')
        e('v_cndmask_b32 v24, v24, v25, vcc'); e('v_cndmask_b32 v26, v26, v27, vcc')
        e('s_mov_b32 vcc_lo, 0xcccccccc'); e('s_mov_b32 vcc_hi, 0xcccccccc')
        e('v_cndmask_b32 v24, v24, v26, vcc')
        tag(24, 1, 19)
        e('buffer_store_dword v24, v11, s[36:39], s59 offen sc1')
    else:
        tag(24, 4, 19)
        e('s_mov_b32 exec_lo, 0x11111111'); e('s_mov_b32 exec_hi, 0x11111111')
        e('buffer_store_dwordx4 v[24:27], v11, s[36:39], s59 offen sc1')
    endwave()
    lab('L_A_fin')
    srd(40, 8, 9, None, 2304)
    e('v_and_b32 v5, 1, v0'); e('v_and_b32 v4, 1, v3'); e('v_lshlrev_b32 v4, 2, v4'); e('v_lshl_add_u32 v4, v5, 5, v4')
    e('s_and_b32 s44, s53, 1'); e('s_mul_i32 s44, s44, 1152'); e('s_lshr_b32 s47, s53, 3'); e('s_lshl_b32 s47, s47, 6'); e('s_add_u32 s44, s44, s47')
    e('s_and_b32 s47, s53, 6'); e('s_lshl_b32 s47, s47, 2'); e('s_add_u32 s44, s44, s47')
    e('v_add_u32 v4, s44, v4'); e('v_lshrrev_b32 v7, 5, v0'); e('v_lshl_add_u32 v4, v7, 1, v4')
    e('buffer_load_ushort v10, v4, s[40:43], 0 offen')
    srd(40, 26, 27, None, 2304)
    e('v_lshrrev_b32 v6, 1, v0'); e(f'v_mul_u32_u24 v6, {FS}, v6'); e('v_lshl_add_u32 v6, v5, 4, v6')
    e('s_lshl_b32 s57, s53, 5'); e(f's_add_u32 s57, s57, {FB}'); e(f's_add_u32 s58, s57, {32*FS}'); e(f's_add_u32 s59, s57, {64*FS}')
    for k in range(4): e(f'v_mov_b32 v{68+k}, s7')
    e('s_mov_b32 s54, 0'); e('s_mov_b32 s55, 0')
    if opts.get('ptf'):
        if opts['ptf'] & 1: e('buffer_load_dwordx4 v[72:75], v6, s[36:39], s59 offen sc1')
        if opts['ptf'] & 2:
            e('buffer_load_dwordx4 v[64:67], v6, s[36:39], s57 offen sc1')
            e('s_mov_b32 exec_hi, 0'); e('buffer_load_dwordx4 v[68:71], v6, s[36:39], s58 offen sc1'); e('s_mov_b32 exec_hi, -1')
    if BAR:
        if not ONE: e('s_barrier')
        if opts.get('warm'):
            e(f's_sleep {opts["warm"]}')
            e('buffer_load_dwordx4 v[72:75], v6, s[36:39], s59 offen sc1')
            e('buffer_load_dwordx4 v[64:67], v6, s[36:39], s57 offen sc1')
            e('s_mov_b32 exec_hi, 0'); e('buffer_load_dwordx4 v[68:71], v6, s[36:39], s58 offen sc1'); e('s_mov_b32 exec_hi, -1')
        e('s_barrier')
        if opts.get('fdelay'): e(f's_sleep {opts["fdelay"]}')
    elif opts.get('fco'): spin('L_s_start', O_CO, 9, sleep=opts['fco'])
    elif opts.get('fcw'): spin('L_s_start', O_CW, opts['fcw'], sleep=1)
    else: spin('L_s_start', O_CYS, opts.get('fstart', 6), sleep=2)
    e('s_waitcnt vmcnt(0)')
    e('v_lshlrev_b32 v10, 16, v10')
    stamp(11)
    lab('L_fpoll')
    e('s_cmp_lg_u32 s54, 0'); e('s_cbranch_scc1 L_f1')
    e('buffer_load_dwordx4 v[64:67], v6, s[36:39], s57 offen sc1')
    e('s_mov_b32 exec_hi, 0')
    e('buffer_load_dwordx4 v[68:71], v6, s[36:39], s58 offen sc1')
    e('s_mov_b32 exec_hi, -1')
    lab('L_f1')
    e('s_cmp_lg_u32 s55, 0'); e('s_cbranch_scc1 L_f2')
    e('buffer_load_dwordx4 v[72:75], v6, s[36:39], s59 offen sc1')
    e('s_waitcnt vmcnt(0)')
    untag([72, 73, 74, 75], 88, dst=[84, 85, 86, 87])
    e('v_and_b32 v88, s45, v88'); e('v_cmp_ne_u32 vcc, 0, v88'); e('s_cbranch_vccnz L_f2')
    stamp(9)
    red32(84)
    rnd(84)
    e('s_mov_b32 s55, 1')
    e('s_cmp_lg_u32 s54, 0'); e('s_cbranch_scc1 L_fok')
    lab('L_f2')
    e('s_cmp_lg_u32 s54, 0'); e('s_cbranch_scc1 L_f3')
    e('s_waitcnt vmcnt(0)')
    untag(list(range(64, 72)), 104, dst=list(range(96, 104)))
    e('v_and_b32 v104, s45, v104'); e('v_cmp_ne_u32 vcc, 0, v104'); e('s_cbranch_vccnz L_f3')
    stamp(12)
    for k in (0, 2): e(f'v_pk_add_f32 v[{96+k}:{97+k}], v[{96+k}:{97+k}], v[{100+k}:{101+k}]')
    red32(96)
    rnd(96)
    e('v_mul_f32 v97, s49, v96'); e('v_exp_f32 v97, -v97'); e('v_add_f32 v97, 1.0, v97'); e('v_rcp_f32 v97, v97')
    e('v_mul_f32 v96, v96, v97')
    rnd(96)
    e('s_mov_b32 s54, 1')
    e('s_cmp_lg_u32 s55, 0'); e('s_cbranch_scc1 L_fok')
    lab('L_f3')
    if opts.get('ssleep'): e(f's_sleep {opts["ssleep"]}')
    e('s_add_u32 s46, s46, 1'); e('s_and_b32 s44, s46, 0xff'); e('s_cbranch_scc1 L_fpoll')
    e('buffer_wbl2 sc1'); e('buffer_inv sc1'); e('s_waitcnt vmcnt(0)')
    e(f's_cmp_le_u32 s46, {SPIN_MAX}'); e('s_cbranch_scc1 L_fpoll')
    lab('L_fok')
    e('v_mul_f32 v84, v84, v96')
    rnd(84)
    e('v_add_f32 v84, v84, v10')
    if opts.get('perturb'):
        e('s_cmp_lg_u32 s53, 0'); e('s_cbranch_scc1 L_nopert'); e('s_mov_b64 exec, 1'); e(f'v_add_f32 v84, {hex(f2u(opts["perturb"]))}, v84'); e('s_mov_b64 exec, -1')
        lab('L_nopert')
    e('v_cvt_pk_bf16_f32 v96, v84, v84')
    if opts.get('hold'):
        if opts.get('holdmul'):
            e('s_memrealtime s[94:95]'); e('s_waitcnt lgkmcnt(0)'); e('s_sub_u32 s93, s94, s62'); e(f's_mul_i32 s93, s93, {opts["holdmul"]}')
        else:
            e(f's_mov_b32 s93, {opts["hold"]}')
            if opts.get('holdpos') in (4, 5):
                e('ds_read_b32 v20, v15 offset:200'); e('s_waitcnt lgkmcnt(0)'); e('v_readfirstlane_b32 s62, v20')
            if 'holdx' in opts:
                e('s_and_b32 s92, s2, 7'); e(f's_cmp_eq_u32 s92, {opts["holdx"]}'); e('s_cselect_b32 s93, s93, 0')
        lab('L_hold')
        e('s_memrealtime s[94:95]'); e('s_waitcnt lgkmcnt(0)'); e('s_sub_u32 s94, s94, s62'); e('s_cmp_lt_u32 s94, s93'); e('s_cbranch_scc1 L_hold')
    e('s_mov_b32 exec_lo, 0x00030003'); e('s_mov_b32 exec_hi, 0x00030003')
    e(f'buffer_store_short v96, v4, s[40:43], 0 offen{opts.get("outfl", "")}')
    e('s_cmp_lg_u32 s53, 0'); e('s_cbranch_scc1 L_exit')
    e('s_mov_b64 exec, 3')
    e(f'v_mul_u32_u24 v4, {EPB}, v0'); e('v_mov_b32 v5, s60')
    e(f'buffer_store_dword v5, v4, s[36:39], 0 offen{opts.get("epfl", "")}')
    endwave()

    lab('L_exit')
    if diag:
        lab('L_fin')
        e('s_mov_b64 exec, -1')
        stamp(14)
        e('s_waitcnt vmcnt(0)')
        stamp(15)
        e('s_waitcnt lgkmcnt(0)')
        e('s_lshl_b32 s44, s2, 4'); e('s_add_u32 s44, s44, s61'); e('s_lshl_b32 s44, s44, 6'); e(f's_add_u32 s44, s44, {STAMP_OFF}')
        srd(40, 30, 31, 's44', 64)
        for i in range(16): e(f'v_mov_b32 v{64+i}, s{64+2*i}')
        e('v_mov_b32 v4, 0'); e('s_mov_b64 exec, 1')
        for i in range(4): e(f'buffer_store_dwordx4 v[{64+4*i}:{67+4*i}], v4, s[40:43], 0 offen offset:{16*i}')
    lab('L_end')
    e('s_endpgm')
    if opts.get('codepf'):
        lab('L_codeend')
        L.append(f'.fill (12288-(L_codeend-{KNAME}))/4, 4, 0xbf810000')
    L.append('.section .rodata,"a"'); L.append('.p2align 6'); L.append(f'.amdhsa_kernel {KNAME}')
    L.append('  .amdhsa_next_free_vgpr 128'); L.append('  .amdhsa_next_free_sgpr 96'); L.append('  .amdhsa_accum_offset 128')
    L.append('  .amdhsa_group_segment_fixed_size 0'); L.append('  .amdhsa_kernarg_size 96'); L.append('  .amdhsa_user_sgpr_count 2')
    L.append('  .amdhsa_user_sgpr_kernarg_segment_ptr 1'); L.append('  .amdhsa_system_sgpr_workgroup_id_x 1')
    L.append('  .amdhsa_float_denorm_mode_32 3')
    L.append('.end_amdhsa_kernel')
    return '\n'.join(hazard_pass(L)) + '\n'

if __name__ == '__main__':
    import json
    open('k_diag.s', 'w').write(gen(diag=True))
    open('k_prod.s', 'w').write(gen(diag=False))
    for a in sys.argv[1:]:
        name, o = a.split('=', 1)
        open(f'exp/{name}.s', 'w').write(gen(diag=('diag' in name), opts=json.loads(o)))
```

```python
import sys, struct
from asmlib import hazard_pass

KNAME = "recurrent_scan__sliding_block_cached__glu_gated_reglu__decode_kernel"
def f2u(x): return struct.unpack('<I', struct.pack('<f', x))[0]

BASE = 131072
O_CP, O_CO, O_CK, O_CG, O_CQ, O_CH, O_CY, O_CX = 0, 4, 8, 12, 16, 20, 24, 28
O_FAR, O_CGF, O_CV, O_CYS, O_CW = 32, 36, 40, 44, 48
STG = 49152
O_NZ = 1024
O_KD, O_VD, O_PD = 64, 96, 128
O_ZERO = 256
O_QT = 512
O_XB = 1024
O_ML = 3328
O_HS = 3456
O_PT = 3840
O_GP = 7936
O_OP = 20480
LDS_TOTAL = BASE + 28672
OB = 0x1000; MLB = 0x41000; FB = 0x51000; HB = 0xD0000; RS = 1664; EPB = 0x140000; WS_SPAN = 0x200000
STAMP_OFF = 512 << 20
TAGM = 0x3ff
LOG2E = f2u(1.4426950408889634)
SCALE = f2u(128 ** -0.5)
SPIN_MAX = 200000

HEADER = """; Kernarg layout for this problem (96 bytes, ptrs only, base s[0:1]):
;
; GEMV on n-contiguous weights: MFMA with a diagonal A operand, or LDS + transposing reads.
"""

def gen(diag=False, opts=None):
    opts = dict(dict(p3all=8, fast=1, bprio=3, lanes=4, dk=5, dv=6, dvt=16, hov=4, ksig=8, ckn=5, ho=1, wdpre=6, do=4, pto=0, codepf=0, fcw=1, dwst=1, po=1, py=1, ps=1, osleep=1, ssleep=1, slate=1), **(opts or {}))
    NTK = ' nt' if opts.get('ntk', True) else ''
    NTV = ' nt' if opts.get('ntv', True) else ''
    NT = ' nt' if opts.get('ntw', True) else ''
    NT3 = ' nt' if opts.get('nt3', opts.get('ntw', True)) else ''
    P1 = ' sc1' if opts.get('p1sc1') else ''
    FS = opts.get('fs', 4736)
    BAR = opts.get('bar', 1)
    PAT = opts.get('pat', 'r'); KVN = 131072 if PAT == 'i' else 0x100000
    LN = opts.get('lanes', 8); LB = {8: 3, 4: 2, 2: 1, 1: 0}[LN]
    SM = opts.get('smooth', 0)
    ONE = opts.get('onebar', 0)
    if opts.get('sfl'): NTK = NTV = NT = NT3 = opts['sfl']
    L = []
    def e(s): L.append('    ' + s)
    NOTES = {
        'L_B_nx': 'first-layer tile loads (gate/up: 9 per wave, wq: 5 or 6)',
        'L_B_isd': 'hand the stream to the K waves; wave 0 computes the layer norm (bf16 roundings as the reference)',
        'L_x_wait': 'wait for xn, build diagonal A operands, MFMA, partials to LDS',
        'L_gu_wait': 'wave 7: sum the 8 row blocks and publish the record',
        'L_B_q': 'wave 0: gather q partials, round to bf16, q table in LDS',
        'L_B_x1': 'V stream into registers',
        'L_p_wait': 'P.V with diagonal p operands; last wave sums the 8 partials and publishes o',
        'L_A': 'A waves: clear flags, K stream into LDS (swizzled)',
        'L_q_wait': 'Q.K, scores rounded as the reference, per-wave max, exp, sums; last wave publishes (max, sum)',
        'L_A_role': 'role dispatch',
        'L_wo_pwait': 'WO role: wo tile into LDS, softmax weights of the 16 producers, gather o, MFMA, publish s',
        'L_A_mlp': 'MLP role: waves 0..2 gather gate/up partials -> h = relu(gate)*up',
        'L_A_wd': 'W_down tile into LDS (rows whose h is zero for both batch rows are not fetched), MFMA, publish y',
        'L_A_fin': 'wave 7: gather y and s for 8 outputs, out = x + s*silu(y)',
    }
    def lab(s):
        if s in NOTES: L.append('    ; ---- ' + NOTES[s])
        L.append(s + ':')
        if opts.get('jitter') and (s.endswith('ok') or s in NOTES or s in ('L_k_done', 'L_v_done', 'L_odone', 'L_near', 'L_hnear', 'L_B_m0', 'L_mldone')) and 'wait' not in s.replace('wait_ok', ''):
            import zlib
            h = zlib.crc32((s + str(opts['jitter'])).encode())
            reg = 's3' if h & 1 else 's2'
            bit = (h >> 1) % 3 if h & 1 else (h >> 1) % 8
            L.append(f'    s_bitcmp{(h >> 8) & 1}_b32 {reg}, {bit}'); L.append(f'    s_cbranch_scc1 {s}_j'); L.append(f'    s_sleep {20 + (h >> 10) % 100}'); L.append(f'{s}_j:')
    stamp_idx = {}
    def stamp(i):
        if diag: e(f's_memrealtime s[{64+2*i}:{65+2*i}]')
    def srd(d, lo, hi, off, nrec):
        if off is None:
            e(f's_mov_b32 s{d}, s{lo}'); e(f's_mov_b32 s{d+1}, s{hi}')
        else:
            e(f's_add_u32 s{d}, s{lo}, {off}'); e(f's_addc_u32 s{d+1}, s{hi}, 0')
        e(f's_mov_b32 s{d+2}, {nrec}'); e(f's_mov_b32 s{d+3}, 0x20000')
    DPP = lambda m: f'{m} row_mask:0xf bank_mask:0xf'
    X1 = DPP('quad_perm:[1,0,3,2]'); X2 = DPP('quad_perm:[2,3,0,1]'); HM = DPP('row_half_mirror'); RM = DPP('row_mirror')
    def masks(d):
        t, h = d + 4, d + 5
        e(f'v_and_b32 v{t}, 1, v2'); e(f'v_lshlrev_b32 v{t}, 4, v{t}')
        e(f'v_mov_b32 v{h}, 0xffff'); e(f'v_lshlrev_b32 v{h}, v{t}, v{h}')
        e(f'v_bfe_u32 v{t}, v2, 1, 2')
        for j in range(4):
            e(f'v_cmp_eq_u32 vcc, {j}, v{t}')
            e(f'v_cndmask_b32 v{d+j}, 0, v{h}, vcc')
    def tag(d, n=4, tv=None):
        for k in range(n): e(f'v_bfi_b32 v{d+k}, s45, v{tv}, v{d+k}')
    def finish_tag_setup(tv):
        e(f's_movk_i32 s45, {TAGM}')
        e('s_add_u32 s60, s7, 1'); e('s_xor_b32 s58, s58, s60'); e('s_and_b32 s58, s58, s45'); e('s_cselect_b32 s58, 0, 1'); e('s_add_u32 s60, s60, s58')
        e('s_and_b32 s7, s60, s45')
        e(f'v_mov_b32 v{tv}, s7')
    def epoch_load():
        e('s_load_dword s7, s[30:31], 0'); e(f's_mov_b32 s44, {EPB}'); e('s_load_dword s58, s[30:31], s44')
    def untag(regs, acc, dst=None):
        dst = dst or regs
        for r, d in zip(regs, dst): e(f'v_xor_b32 v{d}, s7, v{r}')
        e(f'v_or3_b32 v{acc}, v{dst[0]}, v{dst[1]}, v{dst[2]}')
        rest = dst[3:]
        while rest:
            if len(rest) >= 2:
                e(f'v_or3_b32 v{acc}, v{acc}, v{rest[0]}, v{rest[1]}'); rest = rest[2:]
            else:
                e(f'v_or_b32 v{acc}, v{acc}, v{rest[0]}'); rest = rest[1:]
    def poll_tail(acc, lpoll, lok, sleep=2):
        e(f'v_and_b32 v{acc}, s45, v{acc}')
        e(f'v_cmp_ne_u32 vcc, 0, v{acc}')
        e(f's_cbranch_vccz {lok}')
        if sleep: e(f's_sleep {sleep}')
        e('s_add_u32 s46, s46, 1'); e(f's_and_b32 s44, s46, {opts.get("flushmask", 0xff)}'); e(f's_cbranch_scc1 {lpoll}')
        e('buffer_wbl2 sc1'); e('buffer_inv sc1'); e('s_waitcnt vmcnt(0)')
        e(f's_cmp_le_u32 s46, {SPIN_MAX}'); e(f's_cbranch_scc1 {lpoll}')
    DK = opts.get('dk', 3); DV = opts.get('dv', 3); DG = opts.get('dg', 0); DW = opts.get('dw', 0); DO = opts.get('do', 3)
    def thr(i, d):
        if isinstance(d, list): d = d[i % len(d)]
        if d and i >= d: e(f's_waitcnt vmcnt({d-1})')
    def spin(name, off, target, areg=15, treg=16, sleep=1):
        lab(name)
        e(f'ds_read_b32 v{treg}, v{areg} offset:{off}')
        e('s_waitcnt lgkmcnt(0)')
        e(f'v_readfirstlane_b32 s44, v{treg}')
        e(f's_cmp_ge_u32 s44, {target}'); e(f's_cbranch_scc1 {name}_ok')
        e(f's_sleep {sleep}'); e(f's_branch {name}')
        lab(name + '_ok')
    def signal(off, areg=15, one=18, rtn=None):
        e('s_mov_b64 exec, 1')
        if rtn is None: e(f'ds_add_u32 v{areg}, v{one} offset:{off}')
        else: e(f'ds_add_rtn_u32 v{rtn}, v{areg}, v{one} offset:{off}')
        e('s_mov_b64 exec, -1')
    def ppoll(name, D, base, dst, addr, soff, pre=None, post=None, sleep=0):
        def ld(k):
            if pre: e(pre)
            e(f'buffer_load_dwordx4 v[{base+4*k}:{base+4*k+3}], v{addr}, s[36:39], {soff} offen sc1')
            if post: e(post)
        acc = dst + 4
        lab(name)
        for k in range(D - 1): ld(k)
        lab(name + '_l')
        for k in range(D):
            ld((k + D - 1) % D)
            e(f's_waitcnt vmcnt({D-1})')
            untag([base + 4 * k + i for i in range(4)], acc, dst=[dst + i for i in range(4)])
            e(f'v_and_b32 v{acc}, s45, v{acc}')
            e(f'v_cmp_ne_u32 vcc, 0, v{acc}')
            e(f's_cbranch_vccz {name}_ok')
            if sleep: e(f's_sleep {sleep}')
        e('s_add_u32 s46, s46, 1'); e(f's_and_b32 s44, s46, {max(1, 256 // D) * 2 - 1 if False else 63}'); e(f's_cbranch_scc1 {name}_l')
        e('s_waitcnt vmcnt(0)')
        e('buffer_wbl2 sc1'); e('buffer_inv sc1'); e('s_waitcnt vmcnt(0)')
        e(f's_cmp_le_u32 s46, {SPIN_MAX}'); e(f's_cbranch_scc1 {name}')
        lab(name + '_ok')
    def tile_addr(rows=None):
        for m in range(3):
            e(f'v_add_u32 v8, {64*m}, v0'); e('v_mul_u32_u24 v9, 2731, v8'); e('v_lshrrev_b32 v9, 16, v9')
            if rows is not None: e(f'v_lshl_add_u32 v{rows+m}, v9, 2, v{rows+3}')
            e('v_and_b32 v10, 2, v9'); e('v_lshlrev_b32 v10, 4, v10')
            e(f'v_mul_u32_u24 v9, {1152-384}, v9'); e(f'v_lshl_add_u32 v{4+m}, v8, 4, v9')
            e(f'v_xor_b32 v{4+m}, v{4+m}, v10'); e(f'v_xor_b32 v{49+m}, 64, v{4+m}')
        e('v_bfe_u32 v10, v0, 2, 2'); e('v_lshl_add_u32 v10, v3, 3, v10'); e('v_mul_u32_u24 v10, 384, v10'); e('v_and_b32 v11, 3, v0'); e('v_lshl_add_u32 v10, v11, 3, v10')
        e('s_lshl_b32 s44, s3, 6'); e('v_add_u32 v10, s44, v10')
        e('v_and_b32 v11, 24, v0'); e('v_lshlrev_b32 v11, 2, v11'); e('v_xor_b32 v10, v10, v11'); e('v_xor_b32 v52, 32, v10')
        e('v_lshlrev_b32 v11, 2, v0')
    def drain(d, off, areg):
        e('s_mov_b64 exec, 1')
        for k in range(d - 1, -1, -1):
            e(f's_waitcnt vmcnt({k})'); e(f'ds_add_u32 v{areg}, v18 offset:{off}')
        e('s_mov_b64 exec, -1')
    def credit(name, need, areg):
        e(f's_cmp_ge_u32 s62, {need}'); e(f's_cbranch_scc1 {name}_ok')
        lab(name)
        e(f'ds_read_b32 v16, v{areg}')
        e('s_waitcnt lgkmcnt(0)')
        e('v_readfirstlane_b32 s62, v16')
        e(f's_cmp_lt_u32 s62, {need}'); e(f's_cbranch_scc1 {name}')
        lab(name + '_ok')
    def red32(r):
        e(f'v_permlane16_swap_b32 v{r}, v{r+2}'); e(f'v_permlane16_swap_b32 v{r+1}, v{r+3}')
        e(f'v_add_f32 v{r}, v{r}, v{r+2}'); e(f'v_add_f32 v{r+1}, v{r+1}, v{r+3}')
        e(f'v_permlane32_swap_b32 v{r}, v{r+1}')
        e(f'v_add_f32 v{r}, v{r}, v{r+1}')
        for m in ('row_ror:8', 'row_ror:4', 'row_ror:2'):
            e(f'v_add_f32_dpp v{r}, v{r}, v{r} {DPP(m)}')
    def rnd(r):
        e(f'v_cvt_pk_bf16_f32 v{r}, v{r}, v{r}'); e(f'v_and_b32 v{r}, s50, v{r}')
    def endwave():
        e('s_branch L_fin' if diag else 's_endpgm')


    L.append(HEADER.rstrip())
    L.append(f"; @launch grid=(256,1,1) block=(1024,1,1) lds={LDS_TOTAL}")
    L.append('.amdgcn_target "amdgcn-amd-amdhsa--gfx950"')
    L.append('.text'); L.append(f'.globl {KNAME}'); L.append('.p2align 8'); L.append(f'.type {KNAME},@function'); lab(KNAME)
    if opts.get('hold') and opts.get('holdpos') == 0: e('s_memrealtime s[62:63]'); e('s_waitcnt lgkmcnt(0)')
    KA = opts.get('ka', 0)
    if KA: e('s_load_dwordx16 s[8:23], s[0:1], 0')
    e('s_cmp_ge_u32 s2, 256'); e('s_cbranch_scc1 L_end')
    if not KA:
        e('s_load_dwordx16 s[8:23], s[0:1], 0')
        e('s_load_dwordx8 s[24:31], s[0:1], 64')
    if diag:
        for i in range(64, 96): e(f's_mov_b32 s{i}, 0')
    stamp(0)
    if opts.get('hold') and opts.get('holdpos') == 2: e('s_waitcnt lgkmcnt(0)'); e('s_memrealtime s[62:63]')
    FAST = opts.get('fast', 0)
    def decode():
        e('s_and_b32 s4, s2, 7')
        e('s_lshl_b32 s4, s4, 1'); e('s_lshr_b32 s5, s2, 7'); e('s_add_u32 s4, s4, s5')
        e('s_bfe_u32 s5, s2, 0x40003')
        e('v_and_b32 v2, 15, v0'); e('v_lshrrev_b32 v3, 4, v0')
        e('s_mul_i32 s53, s4, 9'); e('s_add_u32 s53, s53, s5')
        e('s_mul_i32 s51, s53, 171'); e('s_lshr_b32 s51, s51, 10')
        e('s_mul_i32 s52, s51, 6'); e('s_sub_u32 s52, s53, s52')
    if FAST:
        e('v_readfirstlane_b32 s3, v0'); e('v_and_b32 v0, 63, v0'); e('s_lshr_b32 s3, s3, 6')
    else:
        e('v_lshrrev_b32 v1, 6, v0'); e('v_and_b32 v0, 63, v0'); e('v_readfirstlane_b32 s3, v1')
        decode()
    if diag: e('s_mov_b32 s61, s3')
    for i in range(opts.get('padn', 0)): e('s_mov_b32 s46, 0x12345678')
    for i in range(opts.get('jumps', 0)):
        e(f's_branch L_j{i}'); L.append('.fill 255, 4, 0xbf810000'); lab(f'L_j{i}')
    e('s_cmp_ge_u32 s3, 8'); e('s_cbranch_scc1 L_A')
    def layernorm():
        e(f'v_add_u32 v113, {BASE+O_XB}, v113')
        e('s_mov_b32 s50, 0xffff0000'); e(f's_mov_b32 s48, {f2u(1.0/576)}'); e(f's_mov_b32 s49, {f2u(1e-5)}')
        e('s_waitcnt vmcnt(3)')
        X = list(range(22, 40))
        for k in range(9):
            e(f'v_lshlrev_b32 v{X[2*k]}, 16, v{104+k}'); e(f'v_and_b32 v{X[2*k+1]}, s50, v{104+k}')
        def half_allreduce(a, t):
            for m in (X1, X2, HM, RM): e(f'v_add_f32_dpp v{a}, v{a}, v{a} {m}')
            e(f'v_mov_b32 v{t}, v{a}'); e(f'v_permlane16_swap_b32 v{a}, v{t}'); e(f'v_add_f32 v{a}, v{a}, v{t}')
        e(f'v_pk_add_f32 v[40:41], v[22:23], v[24:25]')
        for k in range(4, 18, 2): e(f'v_pk_add_f32 v[40:41], v[40:41], v[{X[k]}:{X[k+1]}]')
        e('v_add_f32 v40, v40, v41')
        half_allreduce(40, 41)
        e('v_mul_f32 v40, s48, v40')
        e('v_mov_b32 v42, 0'); e('v_mov_b32 v43, 0')
        for k in range(0, 18, 2):
            e(f'v_sub_f32 v44, v{X[k]}, v40'); e(f'v_sub_f32 v45, v{X[k+1]}, v40')
            e('v_fmac_f32 v42, v44, v44'); e('v_fmac_f32 v43, v45, v45')
        e('v_add_f32 v42, v42, v43')
        half_allreduce(42, 43)
        e('v_mul_f32 v42, s48, v42')
        e('v_cvt_pk_bf16_f32 v40, v40, v42')
        e('v_and_b32 v42, s50, v40'); e('v_lshlrev_b32 v40, 16, v40')
        e('v_add_f32 v42, s49, v42'); e('v_cvt_pk_bf16_f32 v42, v42, v42'); e('v_and_b32 v42, s50, v42')
        e('v_sqrt_f32 v42, v42'); e('v_cvt_pk_bf16_f32 v42, v42, v42'); e('v_and_b32 v42, s50, v42')
        e('v_rcp_f32 v42, v42')
        for k in range(9):
            a, b = X[2*k], X[2*k+1]
            e(f'v_sub_f32 v{a}, v{a}, v40'); e(f'v_sub_f32 v{b}, v{b}, v40')
            e(f'v_cvt_pk_bf16_f32 v{104+k}, v{a}, v{b}')
            e(f'v_lshlrev_b32 v{a}, 16, v{104+k}'); e(f'v_and_b32 v{b}, s50, v{104+k}')
            e(f'v_mul_f32 v{a}, v{a}, v42'); e(f'v_mul_f32 v{b}, v{b}, v42')
            e(f'v_cvt_pk_bf16_f32 v{104+k}, v{a}, v{b}')
        for k in range(0, 8, 2): e(f'ds_write2_b32 v113, v{104+k}, v{105+k} offset0:{k} offset1:{k+1}')
        e('ds_write_b32 v113, v112 offset:32')
        signal(O_CX)
        stamp(11)
    if FAST: decode()
    if opts.get('bprio'): e(f's_setprio {opts["bprio"]}')
    e('s_sub_u32 s44, s5, 9'); e('s_lshl_b32 s59, s4, 3'); e('s_add_u32 s59, s59, s44'); e('s_add_u32 s59, s59, 144')
    e('s_movk_i32 s49, 0x2000')
    e('s_cmp_lt_u32 s5, 9')
    e('s_cselect_b32 s44, s52, s44')
    e('s_cselect_b32 s55, 9216, s49')
    e('s_cselect_b32 s59, s53, s59')
    e('s_cmp_ge_u32 s44, 3'); e('s_cselect_b32 s62, 1, 0')
    e('s_mul_i32 s47, s62, 3'); e('s_sub_u32 s44, s44, s47')
    e('s_lshr_b32 s49, s3, 2'); e('s_cmp_eq_u32 s5, 15'); e('s_cselect_b32 s49, s49, s62')
    e('s_lshl_b32 s49, s49, 8'); e('s_lshl_b32 s48, s4, 9'); e('s_add_u32 s48, s48, s49'); e('s_mul_i32 s47, s51, 384')
    e('s_cmp_lt_u32 s5, 9'); e('s_cselect_b32 s47, s47, s48')
    e('s_and_b32 s58, s3, 3'); e('s_mul_i32 s58, s58, 144'); e('s_add_u32 s58, s58, 5')
    e('s_lshl_b32 s44, s44, 3'); e('s_add_u32 s54, s3, s44'); e('s_mul_i32 s54, s54, 24')
    e('s_cmp_eq_u32 s5, 15'); e('s_cselect_b32 s54, s58, s54')
    e('s_mul_i32 s44, s54, s55'); e('s_cselect_b32 s55, 0xc000, s55'); e('s_add_u32 s44, s44, s47')
    e('s_mul_i32 s47, s55, 6'); e('v_mul_u32_u24 v10, s47, v3'); e('v_lshl_add_u32 v10, v2, 4, v10')
    e('v_lshrrev_b32 v11, 3, v2'); e(f'v_mul_u32_u24 v11, {9216-128}, v11'); e('v_add_u32 v11, v10, v11')
    e('s_mul_i32 s34, s55, 23'); e('s_add_u32 s34, s34, 256'); e('s_mov_b32 s35, 0x20000')
    if FAST: e('s_cmp_eq_u32 s62, 0')
    e('s_waitcnt lgkmcnt(0)')
    if FAST:
        e('s_cselect_b64 s[56:57], s[20:21], s[22:23]')
        e('s_cmp_lt_u32 s5, 9'); e('s_cselect_b64 s[56:57], s[56:57], s[14:15]')
    else:
        e('s_cmp_eq_u32 s62, 0'); e('s_cselect_b32 s56, s20, s22'); e('s_cselect_b32 s57, s21, s23')
        e('s_cmp_lt_u32 s5, 9'); e('s_cselect_b32 s56, s56, s14'); e('s_cselect_b32 s57, s57, s15')
    e('s_add_u32 s32, s56, s44'); e('s_addc_u32 s33, s57, 0')
    if FAST:
        e(f'buffer_load_dwordx4 v[64:67], v10, s[32:35], 0 offen{NT}'); e(f'buffer_load_dwordx4 v[68:71], v10, s[32:35], s55 offen{NT}')
    e('s_cmp_lg_u32 s3, 0'); e('s_cbranch_scc1 L_B_nx')
    srd(40, 8, 9, None, 2304)
    e('v_lshrrev_b32 v22, 5, v0'); e('v_and_b32 v23, 31, v0')
    e('v_mul_u32_u24 v113, 1152, v22'); e('v_mad_u32_u24 v113, v23, 36, v113')
    e('buffer_load_dwordx4 v[104:107], v113, s[40:43], 0 offen')
    e('buffer_load_dwordx4 v[108:111], v113, s[40:43], 0 offen offset:16')
    e('buffer_load_dword v112, v113, s[40:43], 0 offen offset:32')
    lab('L_B_nx')
    D1 = opts.get('d1', 3)
    def d0load(t, so): e(f'buffer_load_dwordx4 v[{64+4*t}:{67+4*t}], v10, s[32:35], {so} offen{NT}')
    def d1load(p, so): e(f'buffer_load_dwordx4 v[{88+4*p}:{91+4*p}], v11, s[32:35], {so} offen offset:256{NT}')
    if not FAST: d0load(0, '0'); d0load(1, 's55')
    if opts.get('holdpos') in (4, 5): e('s_memrealtime s[90:91]')
    if KA: e('s_load_dwordx8 s[24:31], s[0:1], 64')
    e('s_lshl_b32 s44, s55, 1')
    e('s_cmp_ge_u32 s5, 9'); e('s_cbranch_scc1 L_B_dq')
    e('s_add_u32 s34, s34, 128')
    seq = [('1', 0, 0), ('0', 2, 2), ('0', 3, 3), ('1', 1, 2), ('0', 4, 4), ('0', 5, 5), ('1', 2, 4)]
    for n, (kind, idx, row) in enumerate(seq):
        i = n + 2
        if i == D1: e('s_barrier')
        thr(i, D1)
        if row: e(f's_mov_b32 s44, {row*9216}')
        so = 's44' if row else '0'
        (d0load if kind == '0' else d1load)(idx, so)
    e('s_branch L_B_isd')
    lab('L_B_dq')
    for t in range(2, 5):
        if t == D1: e('s_barrier')
        thr(t, D1)
        d0load(t, 's44')
        e('s_add_u32 s44, s44, s55')
    if D1 >= 5: e('s_barrier')
    e('s_cmp_lg_u32 s5, 15'); e('s_cbranch_scc1 L_B_isd')
    thr(5, D1)
    d0load(5, 's44')
    lab('L_B_isd')
    if opts.get('bprio') and opts.get('bprio0', 1): e('s_setprio 0')
    e(f'v_mov_b32 v15, {BASE}'); e('v_mov_b32 v18, 1')
    e(f's_and_b32 s44, s3, {LN-1}'); e('s_lshl_b32 s44, s44, 2'); e('v_add_u32 v9, s44, v15')
    if SM: drain(D1, O_PD, 9)
    else:
        if 'ho' in opts: e(f's_waitcnt vmcnt({opts["ho"]})')
        signal(O_PD, areg=9)
    e('s_cmp_lg_u32 s3, 0'); e('s_cbranch_scc1 L_B_noln')
    layernorm()
    lab('L_B_noln')
    if opts.get('holdpos') in (4, 5):
        e('s_waitcnt lgkmcnt(0)'); e('v_mov_b32 v20, s90'); e('s_cmp_lg_u32 s3, %d' % opts.get('holdw', 7)); e('s_cbranch_scc1 L_hw'); e('ds_write_b32 v15, v20 offset:200'); lab('L_hw')
    if KA: e('s_waitcnt lgkmcnt(0)')
    stamp(1)
    epoch_load()
    masks(4)
    e('s_cmp_eq_u32 s5, 15'); e('s_cselect_b32 s44, 72, 12')
    e('v_lshrrev_b32 v9, 3, v2'); e('v_mul_u32_u24 v9, 1152, v9'); e('v_mad_u32_u24 v9, v3, s44, v9')
    e('s_lshl_b32 s44, s54, 1'); e('s_and_b32 s44, s44, -4'); e(f's_add_u32 s44, s44, {BASE+O_XB}'); e('v_add_u32 v9, s44, v9')
    e('s_mov_b32 s48, 0x01000100'); e('s_mov_b32 s49, 0x03020302')
    e('v_lshlrev_b32 v8, 4, v0')
    e('v_lshlrev_b32 v12, 4, v2'); e('v_lshl_add_u32 v12, v3, 7, v12')
    e('s_mul_i32 s44, s3, 1536'); e(f's_add_u32 s44, s44, {BASE+O_GP}'); e('v_add_u32 v13, s44, v8'); e('v_add_u32 v14, s44, v12')
    for k in range(4): e(f'v_mov_b32 v{56+k}, 0')
    spin('L_x_wait', O_CX, 1, sleep=2)
    e('s_cmp_eq_u32 s5, 15'); e('s_cbranch_scc1 L_B_xs')
    for p in range(3): e(f'ds_read2_b32 v[{24+2*p}:{25+2*p}], v9 offset0:{p} offset1:{p}')
    e('s_branch L_B_xd')
    lab('L_B_xs')
    for p in range(3): e(f'ds_read2_b32 v[{24+2*p}:{25+2*p}], v9 offset0:{6*p} offset1:{6*p+3}')
    e('s_mov_b32 s48, s49')
    lab('L_B_xd')
    e('s_waitcnt lgkmcnt(0)')
    stamp(2)
    for t in range(6):
        e(f'v_perm_b32 v31, v{24+t}, v{24+t}, s{48+(t&1)}')
        for j in range(4): e(f'v_and_b32 v{32+4*t+j}, v31, v{4+j}')
    e('s_waitcnt vmcnt(0)')
    e('s_cmp_eq_u32 s5, 15'); e('s_cbranch_scc1 L_B_m5')
    e('s_cmp_ge_u32 s5, 9'); e('s_cbranch_scc1 L_B_m0')
    for t in range(6):
        d = 60 if t % 2 == 0 else 100
        c = '0' if t < 2 else f'v[{d}:{d+3}]'
        e(f'v_mfma_f32_16x16x32_bf16 v[{d}:{d+3}], v[{32+4*t}:{35+4*t}], v[{88+4*(t>>1)}:{91+4*(t>>1)}], {c}')
    for k in range(4): e(f'v_add_f32_dpp v{60+k}, v{100+k}, v{60+k} {DPP("row_ror:8")}')
    lab('L_B_m5')
    e('v_mfma_f32_16x16x32_bf16 v[56:59], v[52:55], v[84:87], v[56:59]')
    lab('L_B_m0')
    for t in range(5):
        e(f'v_mfma_f32_16x16x32_bf16 v[56:59], v[{32+4*t}:{35+4*t}], v[{64+4*t}:{67+4*t}], v[56:59]')
    e('ds_write_b128 v13, v[56:59]')
    e('s_mov_b32 exec_lo, 0x00ff00ff'); e('s_mov_b32 exec_hi, 0x00ff00ff')
    e('ds_write_b128 v14, v[60:63] offset:1024')
    signal(O_CG)
    stamp(3)
    srd(36, 30, 31, None, WS_SPAN)
    finish_tag_setup(21)
    e('s_mov_b32 s46, 0')
    if opts.get('nopub1'): e('s_branch L_B_q')
    e('s_cmp_lg_u32 s3, 7'); e('s_cbranch_scc1 L_B_q')
    e(f'v_add_u32 v13, {BASE+O_GP}, v8'); e(f'v_add_u32 v14, {BASE+O_GP}, v12')
    e(f's_mul_i32 s56, s59, {RS}'); e(f's_add_u32 s56, s56, {HB}')
    spin('L_gu_wait', O_CG, 8)
    for m in range(2):
        for qd in range(4):
            r = 64 + 32 * m + 8 * qd
            e(f'ds_read_b128 v[{r}:{r+3}], v13 offset:{(4*m+qd)*1536}')
            e(f'ds_read_b128 v[{r+4}:{r+7}], v14 offset:{(4*m+qd)*1536+1024}')
        e('s_waitcnt lgkmcnt(0)')
        r0 = 64 + 32 * m
        for qd in range(1, 4):
            for k in range(0, 8, 2): e(f'v_pk_add_f32 v[{r0+k}:{r0+k+1}], v[{r0+k}:{r0+k+1}], v[{r0+8*qd+k}:{r0+8*qd+k+1}]')
    def rtag(r0, n):
        for k in range(n): e(f'v_add_u32 v{r0+k}, 0x200, v{r0+k}')
        tag(r0, n, 21)
    e('s_cmp_lg_u32 s5, 15'); e('s_cbranch_scc1 L_B_pl')
    for m in range(2):
        rtag(64 + 32 * m, 4)
        e(f'buffer_store_dwordx4 v[{64+32*m}:{67+32*m}], v8, s[36:39], s56 offen offset:{RS*m} sc1')
    e('s_branch L_B_x1')
    lab('L_B_pl')
    for k in range(0, 8, 2): e(f'v_pk_add_f32 v[{64+k}:{65+k}], v[{64+k}:{65+k}], v[{96+k}:{97+k}]')
    rtag(64, 8)
    e(f'buffer_store_dwordx4 v[64:67], v8, s[36:39], s56 offen{P1}')
    e('s_cmp_ge_u32 s5, 9'); e('s_cbranch_scc1 L_B_xcc')
    e('s_mov_b32 exec_lo, 0x00ff00ff'); e('s_mov_b32 exec_hi, 0x00ff00ff')
    e(f'buffer_store_dwordx4 v[68:71], v12, s[36:39], s56 offen offset:1024{P1}')
    lab('L_B_xcc')
    e('s_getreg_b32 s44, hwreg(HW_REG_XCC_ID, 0, 4)'); e('s_lshl_b32 s44, s44, 16'); e('s_or_b32 s44, s44, s7')
    e('s_mov_b64 exec, 0xff')
    for k in range(4): e(f'v_mov_b32 v{72+k}, s44')
    e(f'buffer_store_dwordx4 v[72:75], v8, s[36:39], s56 offen offset:1536{P1}')
    e('s_mov_b64 exec, -1')
    e('s_branch L_B_x1')
    lab('L_B_q')
    e('s_cmp_lg_u32 s3, 0'); e('s_cbranch_scc1 L_B_x1')
    e('v_lshrrev_b32 v10, 5, v0'); e('v_and_b32 v11, 31, v0'); e(f'v_mul_u32_u24 v9, {3*RS}, v10'); e('v_lshl_add_u32 v9, v11, 4, v9')
    e(f'v_mul_u32_u24 v13, {RS}, v10'); e('v_lshl_add_u32 v13, v11, 4, v13')
    e(f's_mul_i32 s58, s4, {8*RS}'); e(f's_add_u32 s58, s58, {HB+144*RS}'); e('s_lshr_b32 s47, s5, 3'); e('s_lshl_b32 s47, s47, 9'); e('s_add_u32 s54, s58, s47')
    e(f's_add_u32 s55, s54, {6*RS}')
    e('v_min_u32 v12, 5, v0'); e(f'v_mul_u32_u24 v12, {RS}, v12')
    spin('L_k_wait', O_CK, opts.get('ckn', 1), sleep=4)
    stamp(9)
    if opts.get('nopoll1'): e('s_branch L_qok')
    lab('L_qpoll')
    for p in range(3):
        e(f'buffer_load_dwordx4 v[{24+4*p}:{27+4*p}], v9, s[36:39], s54 offen offset:{p*RS} sc1')
    e('buffer_load_dwordx4 v[36:39], v13, s[36:39], s55 offen sc1')
    e('buffer_load_dwordx4 v[40:43], v12, s[36:39], s58 offen offset:1536 sc1')
    e('s_waitcnt vmcnt(0)')
    untag(list(range(24, 44)), 22)
    poll_tail(22, 'L_qpoll', 'L_qok', sleep=8)
    lab('L_qok')
    for p in range(1, 4):
        for k in (0, 2): e(f'v_pk_add_f32 v[{24+k}:{25+k}], v[{24+k}:{25+k}], v[{24+4*p+k}:{25+4*p+k}]')
    e('v_cvt_pk_bf16_f32 v24, v24, v25'); e('v_cvt_pk_bf16_f32 v25, v26, v27')
    e('v_lshlrev_b32 v9, 8, v10'); e('v_lshl_add_u32 v9, v2, 4, v9'); e('v_and_b32 v10, 1, v3'); e('v_lshl_add_u32 v9, v10, 3, v9'); e(f'v_add_u32 v9, {BASE}, v9')
    e(f'ds_write_b64 v9, v[24:25] offset:{O_QT}')
    e('s_getreg_b32 s44, hwreg(HW_REG_XCC_ID, 0, 4)'); e('s_lshl_b32 s44, s44, 16')
    e('v_cmp_ne_u32 vcc, s44, v40')
    e('s_branch L_near' if opts.get('nopoll1') else 's_cbranch_vccz L_near')
    signal(O_FAR)
    lab('L_near')
    signal(O_CQ)
    lab('L_B_x1')
    def kvoff():
        e('s_lshr_b32 s6, s5, 3'); e('s_lshl_b32 s6, s6, 4'); e('s_add_u32 s6, s6, s4'); e('s_lshl_b32 s6, s6, 23')
        if PAT == 'i': e('s_and_b32 s44, s5, 7'); e('s_lshl_b32 s44, s44, 17'); e('s_add_u32 s6, s6, s44')
        e('s_add_u32 s6, s6, 0x700000')
    kvoff()
    srd(32, 12, 13, 's6', KVN)
    def kvstart(d):
        if LN < 8:
            e(f's_and_b32 s{d}, s5, 7'); e(f's_lshl_b32 s{d}, s{d}, 15')
            e(f's_lshr_b32 s44, s3, {LB}'); e(f's_lshl_b32 s44, s44, {4+LB}'); e('s_lshr_b32 s44, s44, 5'); e('s_lshl_b32 s44, s44, 18'); e(f's_add_u32 s{d}, s{d}, s44')
            e(f's_lshr_b32 s44, s3, {LB}'); e(f's_lshl_b32 s44, s44, {4+LB}'); e('s_add_u32 s49, s5, s4'); e('s_lshl_b32 s49, s49, 3'); e('s_add_u32 s44, s44, s49')
            e(f's_and_b32 s49, s3, {LN-1}'); e('s_add_u32 s44, s44, s49'); e('s_and_b32 s44, s44, 31'); e('s_lshl_b32 s44, s44, 10'); e(f's_add_u32 s{d}, s{d}, s44')
            return
        if PAT == 'i': e(f's_lshl_b32 s{d}, s5, 13')
        elif PAT == 'm': e(f's_and_b32 s{d}, s5, 7'); e(f's_lshl_b32 s{d}, s{d}, 13')
        elif PAT == 'j': e(f's_and_b32 s{d}, s5, 7'); e(f's_lshl_b32 s{d}, s{d}, 15')
        elif PAT == 'r':
            e(f's_and_b32 s{d}, s5, 7'); e(f's_lshl_b32 s{d}, s{d}, 15'); e('s_add_u32 s44, s5, s4'); e('s_and_b32 s44, s44, 3'); e('s_lshl_b32 s44, s44, 13'); e(f's_add_u32 s{d}, s{d}, s44')
        elif PAT == 'r2':
            e(f's_and_b32 s{d}, s5, 7'); e(f's_lshl_b32 s{d}, s{d}, 15'); e('s_lshr_b32 s44, s5, 2'); e('s_and_b32 s44, s44, 2'); e('s_add_u32 s44, s44, s4'); e('s_and_b32 s44, s44, 3'); e('s_lshl_b32 s44, s44, 13'); e(f's_add_u32 s{d}, s{d}, s44')
        elif PAT in ('h', 'h2', 'h3'):
            e(f's_and_b32 s{d}, s5, 7'); e(f's_lshl_b32 s{d}, s{d}, 12')
            if PAT == 'h2': e('s_and_b32 s44, s4, 3'); e('s_lshl_b32 s44, s44, 10'); e(f's_add_u32 s{d}, s{d}, s44')
            if PAT == 'h3': e('s_add_u32 s44, s4, s3'); e('s_and_b32 s44, s44, 3'); e('s_lshl_b32 s44, s44, 10'); e(f's_add_u32 s{d}, s{d}, s44')
            e('s_lshl_b32 s44, s3, 15'); e(f's_add_u32 s{d}, s{d}, s44')
            return
        elif PAT == 'p':
            e(f's_and_b32 s{d}, s5, 7'); e(f's_lshl_b32 s{d}, s{d}, 13'); e('s_lshr_b32 s44, s3, 1'); e('s_lshl_b32 s44, s44, 16'); e(f's_add_u32 s{d}, s{d}, s44')
            e('s_and_b32 s44, s3, 1'); e('s_lshl_b32 s44, s44, 10'); e(f's_add_u32 s{d}, s{d}, s44')
            return
        e('s_lshl_b32 s44, s3, 10'); e(f's_add_u32 s{d}, s{d}, s44')
    def kvnext(d, n):
        if LN < 8:
            e(f's_add_u32 s44, s{d}, {LN*1024}'); e('s_and_b32 s44, s44, 0x7c00'); e(f's_andn2_b32 s{d}, s{d}, 0x7c00'); e(f's_or_b32 s{d}, s{d}, s44')
            if ((n + 1) * LN) % 32 == 0: e(f's_add_u32 s{d}, s{d}, 0x40000')
        elif PAT == 'i':
            e(f's_add_u32 s{d}, s{d}, 0x2000'); e(f's_and_b32 s{d}, s{d}, 0x1ffff')
        elif PAT == 'm':
            e(f's_add_u32 s{d}, s{d}, 0x2000'); e(f's_and_b32 s{d}, s{d}, 0xffff'); e(f's_or_b32 s{d}, s{d}, {(n+1)*65536}')
        elif PAT == 'j':
            e(f's_add_u32 s{d}, s{d}, {0x2000 if n % 4 < 3 else 0x40000 - 0x6000}')
        elif PAT in ('h', 'h2', 'h3'):
            e(f's_add_u32 s44, s{d}, 0x400'); e('s_and_b32 s44, s44, 0xc00'); e(f's_andn2_b32 s{d}, s{d}, 0xc00'); e(f's_or_b32 s{d}, s{d}, s44')
            if n % 4 == 3:
                e(f's_add_u32 s44, s{d}, 0x1000'); e('s_and_b32 s44, s44, 0x7000'); e(f's_andn2_b32 s{d}, s{d}, 0x7000'); e(f's_or_b32 s{d}, s{d}, s44'); e(f's_add_u32 s{d}, s{d}, 0x40000')
        elif PAT == 'p':
            e(f's_add_u32 s{d}, s{d}, {0x800 if n % 4 < 3 else 0x40000 - 0x1800}')
        elif PAT in ('r', 'r2'):
            e(f's_add_u32 s44, s{d}, 0x2000'); e('s_and_b32 s44, s44, 0x6000'); e(f's_andn2_b32 s{d}, s{d}, 0x6000'); e(f's_or_b32 s{d}, s{d}, s44')
            if n % 4 == 3: e(f's_add_u32 s{d}, s{d}, 0x40000')
    kvstart(47)
    e('s_lshl_b32 s44, s3, 2'); e('v_add_u32 v9, s44, v15')
    stamp(5)
    spin('L_kd_wait', O_VD - 4 * LN, 1, areg=9, sleep=opts.get('pdsleep', 1))
    if SM: e('s_mov_b32 s62, s44'); e(f'v_add_u32 v17, {O_VD - 4 * LN}, v9')
    stamp(4)
    def vloop(dv, dvt):
        for n in range(16):
            if SM and 0 < n < dv: credit(f'L_vc{n}', min(n + 1 - opts.get('sml', 0), DK), 17)
            if n < dvt: thr(n, dv)
            else: thr(n, opts.get('dv2', 0))
            e(f'buffer_load_dwordx4 v[{64+4*n}:{67+4*n}], v8, s[32:35], s47 offen{NTV}')
            if n < 15: kvnext(47, n)
            if n == 15:
                signal(O_CV)
                if SM:
                    e(f's_cmp_ge_u32 s3, {8-LN}'); e('s_cbranch_scc1 L_v_done')
                    drain(dv, O_VD, 9)
                elif LN < 8:
                    e(f's_cmp_ge_u32 s3, {8-LN}'); e('s_cbranch_scc1 L_v_done')
                    e(f's_waitcnt vmcnt({opts.get("hov", opts["ho"])})')
                    signal(O_VD, areg=9)
    if opts.get('dvwo'):
        e('s_sub_u32 s44, s5, 9'); e('s_cmp_ge_u32 s44, 6'); e('s_cbranch_scc1 L_v_mlp')
        vloop(opts['dvwo'], opts.get('dvtwo', 16))
        e('s_branch L_v_done')
        lab('L_v_mlp')
    vloop(DV, opts.get('dvt', 16))
    lab('L_v_done')
    stamp(6)
    e('v_lshrrev_b32 v10, 3, v2'); e('v_lshlrev_b32 v10, 11, v10'); e('v_lshl_add_u32 v10, v3, 6, v10')
    e('s_lshl_b32 s44, s3, 8'); e(f's_add_u32 s44, s44, {BASE+O_PT}'); e('v_add_u32 v10, s44, v10')
    e('v_lshrrev_b32 v12, 5, v0'); e('v_lshlrev_b32 v12, 3, v12'); e(f'v_add_u32 v12, {BASE+O_ML}, v12')
    e('v_and_b32 v11, 7, v0'); e('v_lshl_add_u32 v11, v11, 4, v12')
    e('s_lshl_b32 s44, s3, 4'); e('v_add_u32 v12, s44, v12')
    e(f's_mov_b32 s49, {LOG2E}')
    e(f'v_add_u32 v13, {BASE+O_OP}, v8'); e('s_lshl_b32 s44, s3, 10'); e('v_add_u32 v14, s44, v13')
    e('s_lshl_b32 s56, s4, 4'); e('s_add_u32 s56, s56, s5'); e('s_lshl_b32 s56, s56, 10'); e(f's_add_u32 s56, s56, {OB}')
    spin('L_p_wait', O_CP, 8)
    stamp(7)
    for k in range(4): e(f'ds_read_b128 v[{40+4*k}:{43+4*k}], v10 offset:{16*k}')
    e('ds_read_b32 v16, v11'); e('ds_read_b32 v17, v12'); e(f'ds_read_b32 v19, v15 offset:{O_FAR}')
    e('s_waitcnt lgkmcnt(6)')
    def pv_and(n):
        a = 24 + 4 * (n & 1)
        for j in range(4): e(f'v_and_b32 v{a+j}, v{40+n}, v{4+j}')
    pv_and(0)
    for n in range(16):
        if n == 3:
            e('s_waitcnt lgkmcnt(0)')
            e(f'v_max_f32_dpp v16, v16, v16 {X1}')
        if n == 4: e(f'v_max_f32_dpp v16, v16, v16 {X2}')
        if n == 5: e(f'v_max_f32_dpp v16, v16, v16 {HM}')
        if n == 6: e('v_sub_f32 v17, v17, v16'); e('v_mul_f32 v17, s49, v17')
        if n == 7: e('v_exp_f32 v17, v17')
        if n == 8: e('v_readfirstlane_b32 s57, v19')
        if n < 15: pv_and(n + 1)
        a = 24 + 4 * (n & 1)
        e(f's_waitcnt vmcnt({15-n})')
        c = '0' if n == 0 else 'v[32:35]'
        e(f'v_mfma_f32_16x16x32_bf16 v[32:35], v[{a}:{a+3}], v[{64+4*n}:{67+4*n}], {c}')
    stamp(8)
    e('v_pk_mul_f32 v[32:33], v[32:33], v[16:17] op_sel:[0,1]'); e('v_pk_mul_f32 v[34:35], v[34:35], v[16:17] op_sel:[0,1]')
    e('ds_write_b128 v14, v[32:35]')
    signal(O_CO, rtn=20)
    for w in range(8): e(f'ds_read_b128 v[{64+4*w}:{67+4*w}], v13 offset:{w*1024}')
    e('s_waitcnt lgkmcnt(8)')
    e('v_readfirstlane_b32 s44, v20')
    e('s_cmp_lg_u32 s44, 7'); e('s_cbranch_scc1 L_exit')
    def padd(a, b):
        for k in (0, 2): e(f'v_pk_add_f32 v[{a+k}:{a+k+1}], v[{a+k}:{a+k+1}], v[{b+k}:{b+k+1}]')
    e('s_waitcnt lgkmcnt(6)'); padd(64, 68)
    e('s_waitcnt lgkmcnt(4)'); padd(72, 76); padd(64, 72)
    e('s_waitcnt lgkmcnt(2)'); padd(80, 84); padd(64, 80)
    e('s_waitcnt lgkmcnt(0)'); padd(88, 92); padd(64, 88)
    tag(64, 4, 21)
    if opts.get('omlp'): e('s_cmp_lt_u32 s5, 9'); e('s_cbranch_scc1 L_ofar')
    e('s_cmp_lg_u32 s57, 0'); e('s_cbranch_scc1 L_ofar')
    e(f'buffer_store_dwordx4 v[64:67], v8, s[36:39], s56 offen{opts.get("ofl", "")}')
    lab('L_odone')
    if opts.get('wb') == 1:
        e('s_cmp_lg_u32 s5, 15'); e('s_cbranch_scc1 L_nowb'); e('s_bitcmp1_b32 s4, 0'); e('s_cbranch_scc1 L_nowb')
        e('buffer_wbl2 sc1')
        lab('L_nowb')
    stamp(10)
    if BAR and ONE == 1: pass
    elif BAR:
        e('s_cmp_ge_u32 s5, 9'); e('s_cbranch_scc1 L_exit')
        e('s_barrier')
    else:
        signal(O_CO)
    endwave()
    lab('L_ofar')
    e('buffer_store_dwordx4 v[64:67], v8, s[36:39], s56 offen sc1')
    e('s_branch L_odone')

    lab('L_A')
    if FAST: decode()
    if KA: e('s_load_dwordx8 s[24:31], s[0:1], 64')
    e('s_sub_u32 s3, s3, 8')
    e(f'v_mov_b32 v15, {BASE}'); e('v_mov_b32 v18, 1')
    e('s_cmp_lg_u32 s3, 0'); e('s_cbranch_scc1 L_A_n0')
    e('v_lshl_add_u32 v9, v0, 3, v15'); e('v_mov_b32 v10, 0'); e('v_mov_b32 v11, 0')
    e('ds_write_b64 v9, v[10:11]')
    lab('L_A_n0')
    if opts.get('codepf', True):
        e('s_cmp_lg_u32 s3, 1'); e('s_cbranch_scc1 L_A_n1')
        e('s_getpc_b64 s[40:41]')
        lab('L_pc')
        e(f's_sub_u32 s40, s40, L_pc-{KNAME}'); e('s_subb_u32 s41, s41, 0')
        e('s_bfe_u32 s44, s2, 0x20003'); e('s_mul_i32 s44, s44, 3072')
        e('v_lshlrev_b32 v9, 4, v0'); e('v_add_u32 v9, s44, v9')
        e('global_load_dwordx4 v[20:23], v9, s[40:41]'); e('global_load_dwordx4 v[24:27], v9, s[40:41] offset:1024')
        e('global_load_dwordx4 v[28:31], v9, s[40:41] offset:2048')
        lab('L_A_n1')
    kvoff()
    e('v_xor_b32 v4, v2, v3'); e('v_lshlrev_b32 v4, 4, v4'); e('v_lshl_add_u32 v4, v3, 8, v4')
    e('v_xor_b32 v5, 64, v4'); e('v_xor_b32 v6, 0x80, v4'); e('v_xor_b32 v7, 0xc0, v4')
    e('s_lshl_b32 s47, s3, 14'); e('s_mov_b32 m0, s47')
    kvstart(48)
    e('s_lshl_b32 s44, s3, 2'); e('v_add_u32 v53, s44, v15')
    e('s_mov_b32 s46, 0')
    e('s_waitcnt lgkmcnt(0)')
    srd(32, 10, 11, 's6', KVN)
    if opts.get('tlb'):
        e('s_cmp_lg_u32 s3, 7'); e('s_cbranch_scc1 L_A_nt')
        e('s_mov_b64 exec, 1')
        e('v_mov_b32 v20, s6'); e('global_load_dword v21, v20, s[10:11] nt'); e('global_load_dword v22, v20, s[12:13] nt')
        e('s_mov_b64 exec, 7')
        e('v_lshlrev_b32 v20, 21, v0'); e('global_load_dword v23, v20, s[16:17] nt'); e('global_load_dword v24, v20, s[24:25] nt')
        e('s_mov_b64 exec, 1')
        e('global_load_dword v25, v20, s[30:31] offset:128 nt'); e('global_load_dword v26, v20, s[26:27] nt')
        e('s_mov_b64 exec, -1')
        lab('L_A_nt')
    epoch_load()
    e('s_barrier')
    if LN < 8:
        e(f's_cmp_lt_u32 s3, {LN}'); e('s_cbranch_scc1 L_pd_wait')
        spin('L_kc_wait', O_KD - 4 * LN, 1, areg=53, sleep=opts.get('pdsleep', 1))
        e('s_branch L_pd_wait_ok')
    spin('L_pd_wait', O_PD, 1 if SM else 8 // LN, areg=53, sleep=opts.get('pdsleep', 1))
    if SM:
        e('s_mov_b32 s62, s44')
        e(f's_cmp_lt_u32 s3, {LN}'); e(f's_cselect_b32 s44, {O_PD}, {O_KD - 4 * LN}'); e('v_add_u32 v17, s44, v53')
    def kloop(dk):
        for n in range(16):
            if SM and 0 < n < dk: credit(f'L_kc{n}', n + 1 - opts.get('sml', 0), 17)
            thr(n, dk)
            e(f'buffer_load_dwordx4 v{4+(n&3)}, s[32:35], s48 offen{NTK} lds')
            if n < 15: e('s_add_u32 m0, m0, 0x400'); kvnext(48, n)
            if n == opts.get('ksig', 10): signal(O_CK)
            if n == opts.get('kdsig', 15):
                if SM: drain(dk, O_KD, 53)
                else:
                    if 'ho' in opts: e(f's_waitcnt vmcnt({opts.get("hok", opts.get("hov", opts["ho"]))})')
                    signal(O_KD, areg=53)
    if opts.get('dkwo'):
        e('s_sub_u32 s44, s5, 9'); e('s_cmp_ge_u32 s44, 6'); e('s_cbranch_scc1 L_k_mlp')
        kloop(opts['dkwo'])
        e('s_branch L_k_done')
        lab('L_k_mlp')
    kloop(DK)
    lab('L_k_done')
    if opts.get('hold') and opts.get('holdpos') == 3: e('s_memrealtime s[62:63]')
    stamp(1)
    srd(36, 30, 31, None, WS_SPAN)
    for s in range(4):
        e(f'v_or_b32 v{4+s}, {4*s}, v3'); e(f'v_xor_b32 v{4+s}, v{4+s}, v2'); e(f'v_lshlrev_b32 v{4+s}, 4, v{4+s}')
        e(f'v_lshl_add_u32 v{4+s}, v2, 8, v{4+s}'); e(f'v_add_u32 v{4+s}, s47, v{4+s}')
    e('v_and_b32 v12, 1, v2'); e('v_lshlrev_b32 v12, 8, v12'); e('v_lshl_add_u32 v12, v3, 4, v12')
    e(f'v_add_u32 v12, {BASE+O_QT}, v12')
    e(f'v_mov_b32 v13, {BASE+O_ZERO}')
    e('v_lshrrev_b32 v14, 2, v2')
    for T in range(4):
        e(f'v_cmp_eq_u32 vcc, {T}, v14'); e(f'v_cndmask_b32 v{8+T}, v13, v12, vcc')
    spin('L_q_wait', O_CQ, 1)
    stamp(2)
    for T in range(4):
        for s in range(4):
            r = 64 + 16 * T + 4 * s
            e(f'ds_read_b128 v[{r}:{r+3}], v{8+T} offset:{64*s}')
        if T in (1, 2): e('s_waitcnt lgkmcnt(4)')
    def kread(T):
        e(f's_waitcnt vmcnt({12-4*T})')
        for s in range(4):
            r = 32 + 16 * (T & 1) + 4 * s
            e(f'ds_read_b128 v[{r}:{r+3}], v{4+s} offset:{4096*T}')
    e('s_waitcnt lgkmcnt(0)')
    kread(0)
    for T in range(4):
        if T < 3: kread(T + 1)
        e(f's_waitcnt lgkmcnt({4 if T < 3 else 0})')
        for s in range(4):
            r = 32 + 16 * (T & 1) + 4 * s; q = 64 + 16 * T + 4 * s
            c = '0' if (T == 0 and s == 0) else 'v[20:23]'
            e(f'v_mfma_f32_16x16x32_bf16 v[20:23], v[{q}:{q+3}], v[{r}:{r+3}], {c}')
        if T < 2: e('s_nop 7')
    finish_tag_setup(19)
    e(f's_mov_b32 s48, {SCALE}'); e(f's_mov_b32 s49, {LOG2E}'); e('s_mov_b32 s50, 0xffff0000')
    e('v_cvt_pk_bf16_f32 v24, v20, v21')
    e('v_lshlrev_b32 v20, 16, v24'); e('v_and_b32 v21, s50, v24')
    e('v_mul_f32 v20, s48, v20'); e('v_mul_f32 v21, s48, v21')
    e('v_cvt_pk_bf16_f32 v24, v20, v21')
    e('v_lshlrev_b32 v20, 16, v24'); e('v_and_b32 v21, s50, v24')
    def wave_reduce2(op, a, b, sa, sb):
        e(f'{op}_dpp v{a}, v{sa}, v{sa} {X1}'); e(f'{op}_dpp v{b}, v{sb}, v{sb} {X1}')
        for m in (X2, HM, RM, 'row_bcast:15 row_mask:0xa bank_mask:0xf', 'row_bcast:31 row_mask:0xc bank_mask:0xf'):
            e(f'{op}_dpp v{a}, v{a}, v{a} {m}'); e(f'{op}_dpp v{b}, v{b}, v{b} {m}')
    wave_reduce2('v_max_f32', 24, 26, 20, 21)
    e('v_readlane_b32 s54, v24, 63'); e('v_readlane_b32 s55, v26, 63')
    e('v_subrev_f32 v20, s54, v20'); e('v_subrev_f32 v21, s55, v21')
    e('v_mul_f32 v20, s49, v20'); e('v_mul_f32 v21, s49, v21')
    e('v_exp_f32 v20, v20'); e('v_exp_f32 v21, v21')
    e('v_and_b32 v28, 3, v0'); e('v_lshlrev_b32 v28, 6, v28'); e('v_and_b32 v29, 0x3c, v0'); e('v_add_u32 v28, v28, v29')
    e('s_lshl_b32 s44, s3, 8'); e(f's_add_u32 s44, s44, {BASE}'); e('v_add_u32 v28, s44, v28')
    e('v_cvt_pk_bf16_f32 v22, v20, v20'); e('v_cvt_pk_bf16_f32 v23, v21, v21')
    e(f'ds_write_b32 v28, v22 offset:{O_PT}'); e(f'ds_write_b32 v28, v23 offset:{O_PT+2048}')
    wave_reduce2('v_add_f32', 25, 27, 20, 21)
    e('s_lshl_b32 s44, s3, 4'); e(f's_add_u32 s44, s44, {BASE}'); e('v_mov_b32 v28, s44')
    e('s_mov_b32 exec_lo, 0'); e('s_mov_b32 exec_hi, 0x80000000')
    e(f'ds_write_b128 v28, v[24:27] offset:{O_ML}')
    signal(O_CP, rtn=17)
    e('s_waitcnt lgkmcnt(0)')
    stamp(4)
    e('v_readfirstlane_b32 s44, v17')
    if opts.get('nopub1'): e('s_branch L_A_role')
    e('s_cmp_lg_u32 s44, 7'); e('s_cbranch_scc1 L_A_role')
    e('v_and_b32 v20, 7, v0'); e('v_lshlrev_b32 v20, 4, v20'); e('v_and_b32 v21, 8, v0'); e('v_add_u32 v20, v21, v20')
    e(f'v_add_u32 v20, {BASE}, v20')
    e(f'ds_read_b64 v[22:23], v20 offset:{O_ML}'); e(f'ds_read_b32 v28, v15 offset:{O_FAR}')
    e('s_lshl_b32 s44, s4, 12'); e('s_lshl_b32 s47, s5, 8'); e('s_add_u32 s44, s44, s47'); e(f's_add_u32 s44, s44, {MLB}')
    e('v_lshlrev_b32 v21, 4, v0')
    e('s_waitcnt lgkmcnt(0)')
    e(f'v_max_f32_dpp v24, v22, v22 {X1}'); e(f'v_max_f32_dpp v24, v24, v24 {X2}'); e(f'v_max_f32_dpp v24, v24, v24 {HM}')
    e('v_sub_f32 v22, v22, v24'); e('v_mul_f32 v22, s49, v22'); e('v_exp_f32 v22, v22')
    e('v_mul_f32 v25, v22, v23')
    e(f'v_add_f32_dpp v25, v25, v25 {X1}'); e(f'v_add_f32_dpp v25, v25, v25 {X2}'); e(f'v_add_f32_dpp v25, v25, v25 {HM}')
    tag(24, 2, 19)
    e('v_mov_b32 v26, v24'); e('v_mov_b32 v27, v25')
    e('v_readfirstlane_b32 s47, v28')
    e('s_mov_b64 exec, 0xffff')
    e('s_cmp_lg_u32 s47, 0'); e('s_cbranch_scc1 L_mlfar')
    e(f'buffer_store_dwordx4 v[24:27], v21, s[36:39], s44 offen{P1}')
    e('s_branch L_mldone')
    lab('L_mlfar')
    e('buffer_store_dwordx4 v[24:27], v21, s[36:39], s44 offen sc1')
    lab('L_mldone')
    e('s_mov_b64 exec, -1')
    lab('L_A_role')
    if opts.get('ptp'):
        e('s_cmp_lg_u32 s3, 6'); e('s_cbranch_scc1 L_A_role2')
        e('s_lshl_b32 s44, s4, 4'); e('s_add_u32 s44, s44, s5'); e('s_lshl_b32 s44, s44, 10'); e(f's_add_u32 s44, s44, {OB}')
        e('v_lshlrev_b32 v20, 4, v0')
        e('buffer_load_dwordx4 v[60:63], v20, s[36:39], s44 offen sc1')
        lab('L_A_role2')
    e('s_cmp_lt_u32 s5, 9'); e('s_cbranch_scc1 L_A_mlp')
    e('s_cmp_eq_u32 s5, 15'); e('s_cbranch_scc1 L_exit')
    e('s_cmp_ge_u32 s5, 12'); e('s_cselect_b32 s53, 1, 0')
    e('s_mul_i32 s44, s53, 3'); e('s_sub_u32 s54, s5, 9'); e('s_sub_u32 s54, s54, s44')
    e('s_lshl_b32 s55, s4, 1'); e('s_add_u32 s55, s55, s53')
    e('s_lshl_b32 s44, s55, 3'); e('s_add_u32 s44, s44, s3'); e(f's_mul_i32 s44, s44, {16*1152}')
    e('s_mul_i32 s47, s54, 384'); e('s_add_u32 s44, s44, s47')
    srd(32, 16, 17, 's44', 15 * 1152 + 384)
    tile_addr()
    e('s_lshl_b32 s57, s4, 12'); e('s_lshl_b32 s47, s53, 7'); e('s_add_u32 s57, s57, s47'); e(f's_add_u32 s57, s57, {MLB}')
    e('v_lshlrev_b32 v8, 8, v2')
    e('s_lshl_b32 s58, s4, 4'); e('s_add_u32 s58, s58, s3'); e('s_lshl_b32 s58, s58, 10'); e('s_lshl_b32 s47, s53, 9'); e('s_add_u32 s58, s58, s47'); e(f's_add_u32 s58, s58, {OB}')
    e('v_lshrrev_b32 v12, 5, v0'); e('v_and_b32 v13, 31, v0'); e('v_lshlrev_b32 v7, 13, v12'); e('v_lshl_add_u32 v7, v13, 4, v7')
    e(f'v_mul_u32_u24 v12, {8*272}, v12'); e('v_lshl_add_u32 v12, v2, 4, v12'); e('v_and_b32 v13, 1, v3'); e('v_lshl_add_u32 v12, v13, 3, v12')
    e('s_mul_i32 s44, s3, 272'); e(f's_add_u32 s44, s44, {STG}'); e('v_add_u32 v12, s44, v12')
    e('v_mul_u32_u24 v9, 272, v2'); e('v_lshl_add_u32 v9, v3, 4, v9'); e(f'v_add_u32 v9, {STG}, v9')
    e('s_add_u32 s59, s55, 64'); e(f's_mul_i32 s59, s59, {FS}'); e('s_mul_i32 s47, s54, 1536'); e('s_add_u32 s59, s59, s47')
    e('s_lshl_b32 s44, s3, 8'); e('s_add_u32 s59, s59, s44'); e(f's_add_u32 s59, s59, {FB}')
    e('s_mul_i32 s44, s3, 6144'); e('s_mov_b32 m0, s44'); e('s_movk_i32 s47, 9216'); e('s_add_u32 s52, s3, 8')
    spin('L_wo_pwait', O_CP, 8, sleep=2)
    e('s_lshl_b32 s44, s3, 2'); e('v_add_u32 v53, s44, v15')
    spin('L_wo_vwait', O_CV, opts.get('cvwo', 8))
    stamp(5)
    if opts.get('pto', 1): e('buffer_load_dwordx4 v[28:31], v7, s[36:39], s58 offen sc1')
    e('buffer_load_dwordx4 v[20:23], v8, s[36:39], s57 offen sc1')
    for n in range(6):
        thr(n, DO)
        e(f"buffer_load_dwordx4 v{4+n if n < 3 else 46+n}, s[32:35], {'0' if n < 3 else 's47'} offen{NT3} lds")
        if n < 5: e('s_add_u32 m0, m0, 0x400')
    stamp(6)
    e('s_waitcnt vmcnt(6)')
    e('s_branch L_mlok' if opts.get('nopoll1') else 's_branch L_mlchk')
    lab('L_mlpoll')
    e('buffer_load_dwordx4 v[20:23], v8, s[36:39], s57 offen sc1')
    e('s_waitcnt vmcnt(0)')
    lab('L_mlchk')
    untag([20, 21, 22, 23], 24)
    poll_tail(24, 'L_mlpoll', 'L_mlok', sleep=4)
    lab('L_mlok')
    e(f'v_max_f32_dpp v24, v20, v20 {X1}'); e(f'v_max_f32_dpp v24, v24, v24 {X2}'); e(f'v_max_f32_dpp v24, v24, v24 {HM}')
    e('v_sub_f32 v20, v20, v24'); e('v_mul_f32 v20, s49, v20'); e('v_exp_f32 v20, v20')
    e('v_mul_f32 v25, v20, v21')
    e(f'v_add_f32_dpp v25, v25, v25 {X1}'); e(f'v_add_f32_dpp v25, v25, v25 {X2}'); e(f'v_add_f32_dpp v25, v25, v25 {HM}')
    e('v_rcp_f32 v25, v25'); e('v_mul_f32 v14, v20, v25')
    e('v_readlane_b32 s54, v14, s3'); e('v_readlane_b32 s55, v14, s52')
    e('v_mov_b32 v14, s55'); e('s_mov_b32 exec_hi, 0'); e('v_mov_b32 v14, s54'); e('s_mov_b32 exec_hi, -1')
    e('s_waitcnt vmcnt(0)')
    e('buffer_load_dwordx4 v[20:23], v7, s[36:39], s58 offen sc1')
    stamp(7)
    if BAR:
        e('s_barrier')
        e('s_cmp_ge_u32 s3, 6'); e('s_cbranch_scc1 L_ochk')
    else:
        signal(O_CW)
        e('s_cmp_ge_u32 s3, 6'); e('s_cbranch_scc1 L_ochk')
        spin('L_w_wait', O_CW, 8, sleep=0)
    for tl in range(2):
        for s in range(4):
            for hf in range(2):
                r = 64 + 16 * tl + 4 * s + 2 * hf
                e(f'ds_read_b64_tr_b16 v[{r}:{r+1}], v{52 if tl else 10} offset:{12288*s + 1536*hf}')
        if tl == 0: e('s_waitcnt lgkmcnt(4)')
    e('s_branch L_ochk')
    lab('L_opoll')
    e('buffer_load_dwordx4 v[20:23], v7, s[36:39], s58 offen sc1')
    lab('L_ochk')
    e('s_waitcnt vmcnt(0)')
    untag([20, 21, 22, 23], 24)
    poll_tail(24, 'L_opoll', 'L_ook', sleep=opts.get('osleep', 1))
    lab('L_ook')
    stamp(8)
    e('v_pk_mul_f32 v[20:21], v[20:21], v[14:15] op_sel_hi:[1,0]'); e('v_pk_mul_f32 v[22:23], v[22:23], v[14:15] op_sel_hi:[1,0]')
    e('v_cvt_pk_bf16_f32 v20, v20, v21'); e('v_cvt_pk_bf16_f32 v21, v22, v23')
    e('ds_write_b64 v12, v[20:21]')
    e('s_waitcnt lgkmcnt(0)')
    e('s_barrier')
    stamp(11)
    if opts.get('wb') == 2:
        e('s_cmp_lg_u32 s3, 7'); e('s_cbranch_scc1 L_nowb'); e('s_cmp_lg_u32 s5, 9'); e('s_cbranch_scc1 L_nowb'); e('s_bitcmp1_b32 s4, 0'); e('s_cbranch_scc1 L_nowb')
        e('buffer_wbl2 sc1')
        lab('L_nowb')
    e('s_cmp_ge_u32 s3, 6'); e('s_cbranch_scc1 L_exit')
    for s in range(4): e(f'ds_read_b128 v[{32+4*s}:{35+4*s}], v9 offset:{64*s}')
    for s in range(4):
        e(f's_waitcnt lgkmcnt({3-s})')
        for tl in range(2):
            d = 24 + 4 * tl
            c = '0' if s == 0 else f'v[{d}:{d+3}]'
            e(f'v_mfma_f32_16x16x32_bf16 v[{d}:{d+3}], v[{64+16*tl+4*s}:{67+16*tl+4*s}], v[{32+4*s}:{35+4*s}], {c}')
    for r in range(4): e(f'v_add_f32_dpp v{24+r}, v{24+r}, v{24+r} row_half_mirror row_mask:0xf bank_mask:0x5')
    for r in range(4): e(f'v_add_f32_dpp v{24+r}, v{28+r}, v{28+r} row_half_mirror row_mask:0xf bank_mask:0xa')
    for m in (X1, X2):
        for r in range(4): e(f'v_add_f32_dpp v{24+r}, v{24+r}, v{24+r} {m}')
    if opts.get('dwst'):
        e('s_mov_b32 vcc_lo, 0xaaaaaaaa'); e('s_mov_b32 vcc_hi, 0xaaaaaaaa')
        e('v_cndmask_b32 v24, v24, v25, vcc'); e('v_cndmask_b32 v26, v26, v27, vcc')
        e('s_mov_b32 vcc_lo, 0xcccccccc'); e('s_mov_b32 vcc_hi, 0xcccccccc')
        e('v_cndmask_b32 v24, v24, v26, vcc')
        tag(24, 1, 19)
        e('buffer_store_dword v24, v11, s[36:39], s59 offen sc1')
    else:
        tag(24, 4, 19)
        e('s_mov_b32 exec_lo, 0x11111111'); e('s_mov_b32 exec_hi, 0x11111111')
        e('buffer_store_dwordx4 v[24:27], v11, s[36:39], s59 offen sc1')
    stamp(9)
    endwave()
    lab('L_A_mlp')
    e('s_cmp_eq_u32 s3, 7'); e('s_cbranch_scc1 L_A_fin')
    e('s_cmp_eq_u32 s3, 6'); e('s_cbranch_scc1 L_exit')
    e('s_cmp_ge_u32 s52, 3'); e('s_cselect_b32 s54, 1, 0')
    e('s_mul_i32 s55, s54, 3'); e('s_add_u32 s56, s55, s3'); e('s_sub_u32 s55, s52, s55')
    e('s_cmp_ge_u32 s3, 3'); e('s_cbranch_scc1 L_A_wd')
    e('s_cmp_ge_u32 s56, 4'); e('s_cselect_b32 s44, 7, 8'); e('s_cselect_b32 s47, 1024, 0')
    e('v_bfe_u32 v13, v0, 2, 2'); e('v_lshlrev_b32 v13, s44, v13'); e('v_and_b32 v9, 1, v3'); e(f'v_mul_u32_u24 v9, {3*RS}, v9'); e('v_add_u32 v13, v13, v9')
    e('v_and_b32 v9, 3, v0'); e('v_lshl_add_u32 v13, v9, 4, v13')
    e('s_and_b32 s44, s56, 3'); e('s_lshl_b32 s44, s44, 6'); e('s_add_u32 s44, s44, s47'); e('v_add_u32 v13, s44, v13')
    e(f'v_add_u32 v12, {2*RS}, v13')
    e('s_mov_b32 exec_lo, 0')
    e(f'v_add_u32 v13, {RS}, v13')
    e('v_and_b32 v12, 31, v0'); e('v_min_u32 v12, 5, v12'); e(f'v_mul_u32_u24 v12, {RS}, v12'); e('v_add_u32 v12, 1536, v12')
    e('s_mov_b32 exec_lo, -1')
    e(f's_mul_i32 s57, s51, {6*RS}'); e(f's_add_u32 s57, s57, {HB}')
    e('v_bfe_u32 v10, v0, 2, 1'); e('v_lshl_add_u32 v10, v10, 2, v3'); e('v_lshl_add_u32 v10, v9, 3, v10'); e('s_lshl_b32 s44, s3, 5'); e('v_add_u32 v10, s44, v10')
    e('v_bfe_u32 v11, v0, 3, 1'); e('v_mul_u32_u24 v11, 192, v11'); e('v_lshl_add_u32 v11, v10, 1, v11'); e('v_add_u32 v11, v15, v11')
    e('v_lshl_add_u32 v10, v10, 2, v15')
    if opts.get('nopoll1'):
        for k in range(12): e(f'v_mov_b32 v{32+k}, 1.0')
        e('s_branch L_hnear')
    lab('L_hpoll')
    e('buffer_load_dwordx4 v[32:35], v13, s[36:39], s57 offen sc1')
    e('buffer_load_dwordx4 v[36:39], v12, s[36:39], s57 offen sc1')
    e('s_waitcnt vmcnt(0)')
    untag(list(range(32, 40)), 48)
    poll_tail(48, 'L_hpoll', 'L_hok', sleep=8)
    lab('L_hok')
    e('s_getreg_b32 s44, hwreg(HW_REG_XCC_ID, 0, 4)'); e('s_lshl_b32 s44, s44, 16')
    e('s_mov_b32 exec_lo, 0')
    e('v_cmp_ne_u32 vcc, s44, v36')
    e('s_mov_b32 exec_lo, -1')
    e('s_cbranch_vccz L_hnear')
    e('buffer_wbl2 sc1'); e('s_waitcnt vmcnt(0)')
    lab('L_hnear')
    e('s_mov_b32 exec_hi, 0')
    for k in (0, 2): e(f'v_pk_add_f32 v[{32+k}:{33+k}], v[{32+k}:{33+k}], v[{36+k}:{37+k}]')
    e('s_mov_b32 exec_hi, -1')
    e('v_permlane32_swap_b32 v32, v34'); e('v_permlane32_swap_b32 v33, v35')
    e('v_add_f32 v32, v32, v34'); e('v_add_f32 v33, v33, v35')
    e('v_permlane16_swap_b32 v32, v33')
    e('v_cvt_pk_bf16_f32 v24, v32, v33')
    e('v_and_b32 v25, s50, v24'); e('v_lshlrev_b32 v24, 16, v24')
    e('v_cmp_lt_f32 vcc, 0, v24'); e('v_cndmask_b32 v26, 0, 1.0, vcc')
    e('v_mul_f32 v24, v24, v26'); e('v_mul_f32 v24, v24, v25')
    e('v_cvt_pk_bf16_f32 v24, v24, v24')
    e(f'ds_write_b16 v11, v24 offset:{O_HS}')
    e(f'v_or_b32_dpp v25, v24, v24 {DPP("row_ror:8")}'); e('v_lshlrev_b32 v25, 17, v25')
    e(f'ds_write_b32 v10, v25 offset:{O_NZ}')
    signal(O_CH)
    stamp(5)
    lab('L_A_wd')
    e('s_lshl_b32 s56, s51, 1'); e('s_add_u32 s56, s56, s54')
    e('s_mul_i32 s44, s56, 6'); e('s_add_u32 s44, s44, s3'); e(f's_mul_i32 s44, s44, {16*1152}')
    e('s_mul_i32 s47, s55, 384'); e('s_add_u32 s44, s44, s47')
    srd(32, 24, 25, 's44', 15 * 1152 + 384)
    e('s_lshl_b32 s44, s3, 6'); e('v_add_u32 v57, s44, v15')
    tile_addr(rows=54)
    e(f's_mul_i32 s59, s56, {FS}'); e('s_mul_i32 s47, s55, 1536'); e('s_add_u32 s59, s59, s47')
    e('s_lshl_b32 s44, s3, 8'); e('s_add_u32 s59, s59, s44'); e(f's_add_u32 s59, s59, {FB}')
    e('v_lshrrev_b32 v9, 3, v2'); e('v_mul_u32_u24 v9, 192, v9'); e('v_lshl_add_u32 v9, v3, 4, v9'); e('v_add_u32 v9, v15, v9')
    e('s_mul_i32 s44, s3, 6144'); e('s_mov_b32 m0, s44'); e('s_movk_i32 s47, 9216')
    spin('L_h_wait', O_CH, 3, sleep=4)
    for s in range(3): e(f'ds_read_b128 v[{32+4*s}:{35+4*s}], v9 offset:{O_HS+64*s}')
    if opts.get('skip', 1):
        for m in range(3):
            e(f'ds_read_b32 v{58+m}, v{54+m} offset:{O_NZ}'); e(f'ds_read_b32 v{61+m}, v{54+m} offset:{O_NZ+32}')
        e('v_bfrev_b32 v8, 1')
        e('s_waitcnt lgkmcnt(0)')
        for n in range(6):
            r = 4 + n if n < 3 else 46 + n
            e(f'v_cmp_ne_u32 vcc, 0, v{58+n}'); e(f'v_cndmask_b32 v{r}, v8, v{r}, vcc')
    spin('L_wd_pwait', O_CP, 8, sleep=2)
    WPRE = opts.get('wdpre', 2)
    def wdload(n):
        e(f"buffer_load_dwordx4 v{4+n if n < 3 else 46+n}, s[32:35], {'0' if n < 3 else 's47'} offen{NT3} lds")
        if n < 5: e('s_add_u32 m0, m0, 0x400')
    if WPRE:
        spin('L_v_wait', O_CV, opts.get('cvwd', 8))
        for n in range(WPRE): wdload(n)
    stamp(8)
    if BAR and not ONE: e('s_barrier')
    if WPRE < 6:
        if not BAR: spin('L_o_wait', O_CO, opts.get('wdco', 9), sleep=0)
        for n in range(WPRE, 6): wdload(n)
    stamp(10)
    e('s_waitcnt vmcnt(0)')
    stamp(7)
    if BAR: e('s_barrier')
    else:
        signal(O_CW)
        spin('L_wd_wait', O_CW, 6, sleep=0)
    for s in range(3):
        for tl in range(2):
            for hf in range(2):
                r = 64 + 16 * tl + 4 * s + 2 * hf
                e(f'ds_read_b64_tr_b16 v[{r}:{r+1}], v{52 if tl else 10} offset:{12288*s + 1536*hf}')
    for s in range(3):
        for tl in range(2):
            e(f's_waitcnt lgkmcnt({10-4*s-2*tl})')
            d = 24 + 4 * tl
            c = '0' if s == 0 else f'v[{d}:{d+3}]'
            e(f'v_mfma_f32_16x16x32_bf16 v[{d}:{d+3}], v[{64+16*tl+4*s}:{67+16*tl+4*s}], v[{32+4*s}:{35+4*s}], {c}')
    stamp(11)
    for r in range(4): e(f'v_mov_b32_dpp v{24+r}, v{28+r} quad_perm:[0,1,2,3] row_mask:0xf bank_mask:0xa')
    if opts.get('dwst'):
        e('s_mov_b32 vcc_lo, 0xaaaaaaaa'); e('s_mov_b32 vcc_hi, 0xaaaaaaaa')
        e('v_cndmask_b32 v24, v24, v25, vcc'); e('v_cndmask_b32 v26, v26, v27, vcc')
        e('s_mov_b32 vcc_lo, 0xcccccccc'); e('s_mov_b32 vcc_hi, 0xcccccccc')
        e('v_cndmask_b32 v24, v24, v26, vcc')
        tag(24, 1, 19)
        e('buffer_store_dword v24, v11, s[36:39], s59 offen sc1')
    else:
        tag(24, 4, 19)
        e('s_mov_b32 exec_lo, 0x11111111'); e('s_mov_b32 exec_hi, 0x11111111')
        e('buffer_store_dwordx4 v[24:27], v11, s[36:39], s59 offen sc1')
    endwave()
    lab('L_A_fin')
    srd(40, 8, 9, None, 2304)
    e('v_and_b32 v5, 1, v0'); e('v_and_b32 v4, 1, v3'); e('v_lshlrev_b32 v4, 2, v4'); e('v_lshl_add_u32 v4, v5, 5, v4')
    e('s_and_b32 s44, s53, 1'); e('s_mul_i32 s44, s44, 1152'); e('s_lshr_b32 s47, s53, 3'); e('s_lshl_b32 s47, s47, 6'); e('s_add_u32 s44, s44, s47')
    e('s_and_b32 s47, s53, 6'); e('s_lshl_b32 s47, s47, 2'); e('s_add_u32 s44, s44, s47')
    e('v_add_u32 v4, s44, v4'); e('v_lshrrev_b32 v7, 5, v0'); e('v_lshl_add_u32 v4, v7, 1, v4')
    e('buffer_load_ushort v10, v4, s[40:43], 0 offen')
    srd(40, 26, 27, None, 2304)
    e('v_lshrrev_b32 v6, 1, v0'); e(f'v_mul_u32_u24 v6, {FS}, v6'); e('v_lshl_add_u32 v6, v5, 4, v6')
    e('s_lshl_b32 s57, s53, 5'); e(f's_add_u32 s57, s57, {FB}'); e(f's_add_u32 s58, s57, {32*FS}'); e(f's_add_u32 s59, s57, {64*FS}')
    for k in range(4): e(f'v_mov_b32 v{68+k}, s7')
    e('s_mov_b32 s54, 0'); e('s_mov_b32 s55, 0')
    if opts.get('ptf'):
        if opts['ptf'] & 1: e('buffer_load_dwordx4 v[72:75], v6, s[36:39], s59 offen sc1')
        if opts['ptf'] & 2:
            e('buffer_load_dwordx4 v[64:67], v6, s[36:39], s57 offen sc1')
            e('s_mov_b32 exec_hi, 0'); e('buffer_load_dwordx4 v[68:71], v6, s[36:39], s58 offen sc1'); e('s_mov_b32 exec_hi, -1')
    if BAR:
        if not ONE: e('s_barrier')
        if opts.get('warm'):
            e(f's_sleep {opts["warm"]}')
            e('buffer_load_dwordx4 v[72:75], v6, s[36:39], s59 offen sc1')
            e('buffer_load_dwordx4 v[64:67], v6, s[36:39], s57 offen sc1')
            e('s_mov_b32 exec_hi, 0'); e('buffer_load_dwordx4 v[68:71], v6, s[36:39], s58 offen sc1'); e('s_mov_b32 exec_hi, -1')
        e('s_barrier')
        if opts.get('fdelay'): e(f's_sleep {opts["fdelay"]}')
    elif opts.get('fco'): spin('L_s_start', O_CO, 9, sleep=opts['fco'])
    elif opts.get('fcw'): spin('L_s_start', O_CW, opts['fcw'], sleep=1)
    else: spin('L_s_start', O_CYS, opts.get('fstart', 6), sleep=2)
    e('s_waitcnt vmcnt(0)')
    e('v_lshlrev_b32 v10, 16, v10')
    stamp(11)
    lab('L_fpoll')
    e('s_cmp_lg_u32 s54, 0'); e('s_cbranch_scc1 L_f1')
    e('buffer_load_dwordx4 v[64:67], v6, s[36:39], s57 offen sc1')
    e('s_mov_b32 exec_hi, 0')
    e('buffer_load_dwordx4 v[68:71], v6, s[36:39], s58 offen sc1')
    e('s_mov_b32 exec_hi, -1')
    lab('L_f1')
    e('s_cmp_lg_u32 s55, 0'); e('s_cbranch_scc1 L_f2')
    e('buffer_load_dwordx4 v[72:75], v6, s[36:39], s59 offen sc1')
    e('s_waitcnt vmcnt(0)')
    untag([72, 73, 74, 75], 88, dst=[84, 85, 86, 87])
    e('v_and_b32 v88, s45, v88'); e('v_cmp_ne_u32 vcc, 0, v88'); e('s_cbranch_vccnz L_f2')
    stamp(9)
    red32(84)
    rnd(84)
    e('s_mov_b32 s55, 1')
    e('s_cmp_lg_u32 s54, 0'); e('s_cbranch_scc1 L_fok')
    lab('L_f2')
    e('s_cmp_lg_u32 s54, 0'); e('s_cbranch_scc1 L_f3')
    e('s_waitcnt vmcnt(0)')
    untag(list(range(64, 72)), 104, dst=list(range(96, 104)))
    e('v_and_b32 v104, s45, v104'); e('v_cmp_ne_u32 vcc, 0, v104'); e('s_cbranch_vccnz L_f3')
    stamp(12)
    for k in (0, 2): e(f'v_pk_add_f32 v[{96+k}:{97+k}], v[{96+k}:{97+k}], v[{100+k}:{101+k}]')
    red32(96)
    rnd(96)
    e('v_mul_f32 v97, s49, v96'); e('v_exp_f32 v97, -v97'); e('v_add_f32 v97, 1.0, v97'); e('v_rcp_f32 v97, v97')
    e('v_mul_f32 v96, v96, v97')
    rnd(96)
    e('s_mov_b32 s54, 1')
    e('s_cmp_lg_u32 s55, 0'); e('s_cbranch_scc1 L_fok')
    lab('L_f3')
    if opts.get('ssleep'): e(f's_sleep {opts["ssleep"]}')
    e('s_add_u32 s46, s46, 1'); e('s_and_b32 s44, s46, 0xff'); e('s_cbranch_scc1 L_fpoll')
    e('buffer_wbl2 sc1'); e('buffer_inv sc1'); e('s_waitcnt vmcnt(0)')
    e(f's_cmp_le_u32 s46, {SPIN_MAX}'); e('s_cbranch_scc1 L_fpoll')
    lab('L_fok')
    e('v_mul_f32 v84, v84, v96')
    rnd(84)
    e('v_add_f32 v84, v84, v10')
    if opts.get('perturb'):
        e('s_cmp_lg_u32 s53, 0'); e('s_cbranch_scc1 L_nopert'); e('s_mov_b64 exec, 1'); e(f'v_add_f32 v84, {hex(f2u(opts["perturb"]))}, v84'); e('s_mov_b64 exec, -1')
        lab('L_nopert')
    e('v_cvt_pk_bf16_f32 v96, v84, v84')
    if opts.get('hold'):
        if opts.get('holdmul'):
            e('s_memrealtime s[94:95]'); e('s_waitcnt lgkmcnt(0)'); e('s_sub_u32 s93, s94, s62'); e(f's_mul_i32 s93, s93, {opts["holdmul"]}')
        else:
            e(f's_mov_b32 s93, {opts["hold"]}')
            if opts.get('holdpos') in (4, 5):
                e('ds_read_b32 v20, v15 offset:200'); e('s_waitcnt lgkmcnt(0)'); e('v_readfirstlane_b32 s62, v20')
            if 'holdx' in opts:
                e('s_and_b32 s92, s2, 7'); e(f's_cmp_eq_u32 s92, {opts["holdx"]}'); e('s_cselect_b32 s93, s93, 0')
        lab('L_hold')
        e('s_memrealtime s[94:95]'); e('s_waitcnt lgkmcnt(0)'); e('s_sub_u32 s94, s94, s62'); e('s_cmp_lt_u32 s94, s93'); e('s_cbranch_scc1 L_hold')
    e('s_mov_b32 exec_lo, 0x00030003'); e('s_mov_b32 exec_hi, 0x00030003')
    e(f'buffer_store_short v96, v4, s[40:43], 0 offen{opts.get("outfl", "")}')
    e('s_cmp_lg_u32 s53, 0'); e('s_cbranch_scc1 L_exit')
    e('s_mov_b64 exec, 3')
    e(f'v_mul_u32_u24 v4, {EPB}, v0'); e('v_mov_b32 v5, s60')
    e(f'buffer_store_dword v5, v4, s[36:39], 0 offen{opts.get("epfl", "")}')
    endwave()

    lab('L_exit')
    if diag:
        lab('L_fin')
        e('s_mov_b64 exec, -1')
        stamp(14)
        e('s_waitcnt vmcnt(0)')
        stamp(15)
        e('s_waitcnt lgkmcnt(0)')
        e('s_lshl_b32 s44, s2, 4'); e('s_add_u32 s44, s44, s61'); e('s_lshl_b32 s44, s44, 6'); e(f's_add_u32 s44, s44, {STAMP_OFF}')
        srd(40, 30, 31, 's44', 64)
        for i in range(16): e(f'v_mov_b32 v{64+i}, s{64+2*i}')
        e('v_mov_b32 v4, 0'); e('s_mov_b64 exec, 1')
        for i in range(4): e(f'buffer_store_dwordx4 v[{64+4*i}:{67+4*i}], v4, s[40:43], 0 offen offset:{16*i}')
    lab('L_end')
    e('s_endpgm')
    if opts.get('codepf'):
        lab('L_codeend')
        L.append(f'.fill (12288-(L_codeend-{KNAME}))/4, 4, 0xbf810000')
    L.append('.section .rodata,"a"'); L.append('.p2align 6'); L.append(f'.amdhsa_kernel {KNAME}')
    L.append('  .amdhsa_next_free_vgpr 128'); L.append('  .amdhsa_next_free_sgpr 96'); L.append('  .amdhsa_accum_offset 128')
    L.append('  .amdhsa_group_segment_fixed_size 0'); L.append('  .amdhsa_kernarg_size 96'); L.append('  .amdhsa_user_sgpr_count 2')
    L.append('  .amdhsa_user_sgpr_kernarg_segment_ptr 1'); L.append('  .amdhsa_system_sgpr_workgroup_id_x 1')
    L.append('  .amdhsa_float_denorm_mode_32 3')
    L.append('.end_amdhsa_kernel')
    return '\n'.join(hazard_pass(L)) + '\n'

if __name__ == '__main__':
    import json
    open('k_diag.s', 'w').write(gen(diag=True))
    open('k_prod.s', 'w').write(gen(diag=False))
    for a in sys.argv[1:]:
        name, o = a.split('=', 1)
        open(f'exp/{name}.s', 'w').write(gen(diag=('diag' in name), opts=json.loads(o)))
```
